```python
import torch

def _softmax(x, axis=-1):
    return torch.softmax(x, dim=axis)
def _gelu(x):
    return torch.nn.functional.gelu(x, approximate="tanh")
def _silu(x):
    return torch.nn.functional.silu(x)
def _sigmoid(x):
    return torch.sigmoid(x)
def _layernorm(x, axis=-1, eps=1e-5):
    m = x.mean(dim=axis, keepdim=True)
    v = x.var(dim=axis, keepdim=True, unbiased=False)
    return (x - m) / torch.sqrt(v + eps)
def _scatter_add(tgt, idx, src, axis=0):
    return tgt.clone().index_add_(axis, idx, src)
def _segment_sum(src, seg, n):
    out = torch.zeros((n,) + src.shape[1:], dtype=src.dtype)
    return out.index_add_(0, seg, src)
def _pad(x, pw):
    flat = tuple(v for pair in reversed(pw) for v in pair)
    return torch.nn.functional.pad(x, flat)

kernel_name = 'recurrent_scan__mha_block_cached__geglu_ffn__decode'

def setup_inputs():

    _w = (lambda a: (lambda t: t.to(torch.bfloat16) if t.is_floating_point() else t)(torch.as_tensor(a)))
    def _A_setup():
        B, Sq, D = 2, 1, 640
        H, Sk, Dh = 32, 4096, 192
        return {
            "x": _w((lambda *s: torch.randn(*s, dtype=torch.bfloat16) * 0.05)(B, Sq, D)),
            "k_cache": _w((lambda *s: torch.randn(*s, dtype=torch.bfloat16) * 1.6)(B, H, Sk, Dh)),
            "v_cache": _w((lambda *s: torch.randn(*s, dtype=torch.bfloat16) * 0.2)(B, H, Sk, Dh)),
            "wq": _w((lambda *s: torch.randn(*s, dtype=torch.bfloat16) * 1.6)(D, H * Dh) * (D ** -0.5)),
            "wo": _w((lambda *s: torch.randn(*s, dtype=torch.bfloat16) * 0.2)(H * Dh, D) * ((H * Dh) ** -0.5)),
        }
    _A_in = _A_setup()

    def _B_setup():
        B, S, D, F = 2, 1, 640, 1536
        return {
            "x": _w((lambda *s: torch.randn(*s, dtype=torch.bfloat16) * 0.05)(B, S, D)),
            "w_gate": _w((lambda *s: torch.randn(*s, dtype=torch.bfloat16) * 0.1)(D, F)),
            "w_up": _w((lambda *s: torch.randn(*s, dtype=torch.bfloat16) * 0.1)(D, F)),
            "w_down": _w((lambda *s: torch.randn(*s, dtype=torch.bfloat16) * 0.1)(F, D)),
        }
    _B_in = _B_setup()

    return {
        "A_x": _A_in["x"],
        "A_k_cache": _A_in["k_cache"],
        "A_v_cache": _A_in["v_cache"],
        "A_wq": _A_in["wq"],
        "A_wo": _A_in["wo"],
        "B_x": _B_in["x"],
        "B_w_gate": _B_in["w_gate"],
        "B_w_up": _B_in["w_up"],
        "B_w_down": _B_in["w_down"],
    }

def reference(A_x, A_k_cache, A_v_cache, A_wq, A_wo, B_x, B_w_gate, B_w_up, B_w_down):
    def _A_ref(x, k_cache, v_cache, wq, wo):
        B, Sq, D = x.shape
        H, Dh = 32, 192
        q = (lambda x, *d: x.permute(*d))((x @ wq).reshape(B, Sq, H, Dh), 0, 2, 1, 3)
        scores = torch.einsum("bhqd,bhkd->bhqk", q, k_cache) * (Dh ** -0.5)
        p = _softmax(scores, axis=-1)
        o = torch.einsum("bhqk,bhkd->bhqd", p, v_cache)
        return (lambda x, *d: x.permute(*d))(o, 0, 2, 1, 3).reshape(B, Sq, H * Dh) @ wo

    def _B_ref(x, w_gate, w_up, w_down):
        return (_gelu(x @ w_gate) * (x @ w_up)) @ w_down

    x = A_x
    xn = _layernorm(x, axis=-1)
    s = _A_ref(xn, A_k_cache, A_v_cache, A_wq, A_wo)
    g = _silu(_B_ref(xn, B_w_gate, B_w_up, B_w_down))
    return x + s * g
```

```python
import re

class Asm:
    def __init__(self):
        self.L = []
    def e(self, s):
        for line in s.split("\n"):
            line = line.strip()
            if line:
                self.L.append(line)
    def label(self, n):
        self.L.append(n + ":")
    def c(self, s):
        self.L.append("; " + s)

_reg = re.compile(r"(?<![\w.])([vs])(\d+)(?![\w\[])|(?<![\w.])([vs])\[(\d+):(\d+)\]|(?<![\w.])(vcc|exec|m0)(?![\w])")

def regs_of(op):
    out = []
    for m in _reg.finditer(op):
        if m.group(1):
            out.append((m.group(1), int(m.group(2))))
        elif m.group(3):
            for i in range(int(m.group(4)), int(m.group(5)) + 1):
                out.append((m.group(3), i))
        else:
            out.append((m.group(6), 0))
    return out

TRANS = ("v_exp_f32", "v_log_f32", "v_rcp_f32", "v_rsq_f32", "v_sqrt_f32", "v_sin_f32", "v_cos_f32")

def split_ops(rest):
    ops, depth, cur = [], 0, ""
    for ch in rest:
        if ch == "[": depth += 1
        if ch == "]": depth -= 1
        if ch == "," and depth == 0:
            ops.append(cur.strip()); cur = ""
        else:
            cur += ch
    if cur.strip(): ops.append(cur.strip())
    return ops

def analyze(line):
    code = line.split(";")[0].strip()
    if not code or code.endswith(":") or code.startswith("."):
        return None
    parts = code.split(None, 1)
    opc = parts[0]
    rest = parts[1] if len(parts) > 1 else ""
    ops = split_ops(rest)
    info = dict(opc=opc, valu=False, vmem=False, ds=False, vw=set(), vr=set(), sw=set(), sr=set(), dpp=False, perm=False,
                trans=False, states=1, lane=False, store_wide=False, cnd=False)
    if opc == "s_nop":
        info["states"] = int(rest, 0) + 1
        return info
    if opc.startswith("v_"):
        info["valu"] = True
        info["dpp"] = "_dpp" in opc or "quad_perm" in rest or "row_" in rest
        info["perm"] = "permlane" in opc
        info["trans"] = any(opc.startswith(t) for t in TRANS)
        info["lane"] = opc.startswith("v_readlane") or opc.startswith("v_readfirstlane")
        dst = regs_of(ops[0].split()[0]) if ops else []
        srcs = []
        for o in ops[1:]:
            srcs += regs_of(o.split(" quad_perm")[0].split(" row_")[0].split(" op_sel")[0])
        ndst = 1
        if opc.startswith(("v_add_co", "v_sub_co", "v_addc_co", "v_subb_co", "v_mad_u64", "v_div_scale")):
            dst += regs_of(ops[1]); srcs = []
            for o in ops[2:]: srcs += regs_of(o)
        for r in dst:
            (info["vw"] if r[0] == "v" else info["sw"]).add(r)
        for r in srcs:
            (info["vr"] if r[0] == "v" else info["sr"]).add(r)
        info["ab"] = set(r for r in srcs[:2] if r[0] == "v") if opc.startswith("v_dot2c") else set(r for r in srcs if r[0] == "v")
        if info["perm"] and "swap" in opc:
            info["vw"] |= info["vr"]; info["vr"] |= set(r for r in dst if r[0] == "v")
        if opc.startswith(("v_dot2c", "v_fmac", "v_mac")) or info["dpp"]:
            info["vr"] |= set(r for r in dst if r[0] == "v")
        if opc.startswith("v_cndmask") and len(ops) == 3:
            info["sr"].add(("vcc", 0))
        if opc.startswith("v_cmpx"):
            info["sw"].add(("exec", 0))
        return info
    if opc.startswith(("buffer_", "global_", "flat_")):
        info["vmem"] = True
        allr = regs_of(rest)
        for r in allr:
            (info["vr"] if r[0] == "v" else info["sr"]).add(r)
        if "store" in opc and ("x4" in opc or "x3" in opc):
            info["store_wide"] = True
            d = regs_of(ops[0]) if opc.startswith("buffer_") else regs_of(ops[1])
            info["store_data"] = set(d)
        return info
    if opc.startswith("ds_"):
        info["ds"] = True
        for r in regs_of(rest):
            (info["vr"] if r[0] == "v" else info["sr"]).add(r)
        return info
    return info

def expand_sw(s):
    out = set()
    for r in s:
        out.add(r)
    return out

def fix_hazards(lines):
    out = []
    hist = []
    def dist_to(pred):
        d = 0
        for inf in reversed(hist):
            if pred(inf):
                return d
            d += inf["states"]
            if d > 8: break
        return 99
    for line in lines:
        inf = analyze(line)
        if inf is None:
            out.append(line)
            continue
        need = 0
        def req(n, pred):
            nonlocal need
            d = dist_to(pred)
            if d < n: need = max(need, n - d)
        if inf["valu"]:
            vr = inf["vr"]
            if inf["dpp"] or inf["perm"]:
                req(2, lambda p: p["valu"] and (p["vw"] & vr))
            if inf["lane"]:
                req(1, lambda p: p["valu"] and (p["vw"] & vr))
            if not inf["trans"]:
                req(1, lambda p: p["trans"] and (p["vw"] & (vr | inf["vw"])))
            sr = inf["sr"]
            if sr:
                req(2, lambda p: p["valu"] and (p["sw"] & sr))
            if inf["lane"]:
                req(4, lambda p: p["valu"] and (("exec", 0) in p["sw"]))
            vw = inf["vw"]
            req(2, lambda p: p.get("store_wide") and (p["store_data"] & vw))
        touched = inf["vr"] | inf["vw"]
        if touched:
            if inf["opc"].startswith("v_dot"):
                ab = inf.get("ab", set())
                req(3, lambda p: p["opc"].startswith("v_dot") and ((p["vw"] & ab) if p["opc"] == inf["opc"] else (p["vw"] & touched)))
            else:
                req(3, lambda p: p["opc"].startswith("v_dot") and (p["vw"] & touched))
        if inf["vmem"]:
            sr = inf["sr"]
            req(5, lambda p: p["valu"] and (p["sw"] & sr))
        if need > 0:
            out.append(f"s_nop {need-1}")
            hist.append(dict(opc="s_nop", valu=False, vmem=False, ds=False, vw=set(), vr=set(), sw=set(), sr=set(), dpp=False, perm=False, trans=False, states=need, lane=False, store_wide=False))
        out.append(line)
        hist.append(inf)
        if len(hist) > 16: hist.pop(0)
    return out
```

```python
import sys
sys.path.insert(0, "gen")
from asmlib import Asm, fix_hazards

KNAME = "recurrent_scan__mha_block_cached__geglu_ffn__decode_kernel"

XN, QP, UP, Q, PART, STAT, SEL, YP, RED, H, DP = 0, 2560, 4608, 6656, 7168, 10240, 10368, 11264, 15360, 16384, 16640
LDS_BYTES = 37376
QBOX, OBOX, YBOX, FBOX, PROFO = 0x1000, 0x20000, 0xA0000, 0xF0000, 0x200000
WS_REC = 0x400000
NFFN = 24
NWG = NFFN + 256
SPIN = 1 << 17

sK, sV, sAUX, sWS, sX, sOUT, sAUX2 = 28, 32, 36, 40, 44, 48, 52
sWAVE, sH, sR, sB, sTAG, sE, sT0, sT1, sCNT = 56, 57, 58, 59, 60, 61, 62, 63, 3
vLANE, vKV = 1, 3
vQ, vACC, vM, vL = 8, 20, 44, 45
RING, AUX, XP = 60, 156, 236

def srd(s): return f"s[{s}:{s+3}]"

def gen(PROF=0, NT=1, D=4):
    a = Asm(); e = a.e
    nt = " nt" if NT else ""
    prof_n = [0]
    def stamp():
        if PROF:
            i = prof_n[0]; prof_n[0] += 1
            e(f"s_memrealtime s[{64+2*i}:{65+2*i}]")
    def allreduce(regs, op, tmps, bits):
        for bit in bits:
            if bit in (0, 1, 2, 3, "m"):
                mod = {0: "quad_perm:[1,0,3,2]", 1: "quad_perm:[2,3,0,1]", 2: "row_half_mirror", 3: "row_ror:8", "m": "row_mirror"}[bit]
                for r in regs:
                    e(f"{op}_dpp v{r}, v{r}, v{r} {mod} row_mask:0xf bank_mask:0xf")
            else:
                sw = "v_permlane16_swap_b32" if bit == 4 else "v_permlane32_swap_b32"
                for r, t in zip(regs, tmps): e(f"v_mov_b32 v{t}, v{r}")
                for r, t in zip(regs, tmps): e(f"{sw} v{r}, v{t}")
                for r, t in zip(regs, tmps): e(f"{op} v{r}, v{r}, v{t}")
    def swapred(pairs, bit):
        sw = "v_permlane16_swap_b32" if bit == 4 else "v_permlane32_swap_b32"
        for x, y in pairs: e(f"{sw} v{x}, v{y}")
        for x, y in pairs: e(f"v_add_f32 v{x}, v{x}, v{y}")
    def poll_begin(name):
        e(f"s_mov_b32 s{sCNT}, {SPIN}")
        a.label(name)
    def poll_end(name, tagregs, tmp):
        e("s_waitcnt vmcnt(0)")
        e(f"v_xor_b32 v{tmp}, s{sTAG}, v{tagregs[0]}")
        for t in tagregs[1:]:
            e(f"v_xor_b32 v{tmp+1}, s{sTAG}, v{t}")
            e(f"v_or_b32 v{tmp}, v{tmp}, v{tmp+1}")
        e(f"v_cmp_ne_u32 vcc, 0, v{tmp}")
        e(f"s_cbranch_vccz {name}_done")
        e("s_sleep 1")
        e(f"s_sub_u32 s{sCNT}, s{sCNT}, 1")
        e(f"s_cmp_lg_u32 s{sCNT}, 0")
        e(f"s_cbranch_scc1 {name}")
        a.label(name + "_done")

    def layernorm():
        D_ = [[8, 9, 10, 11, 12], [14, 15, 16, 17, 18]]
        X = [[20 + i for i in range(10)], [30 + i for i in range(10)]]
        for b in range(2):
            for i in range(5):
                e(f"v_lshlrev_b32 v{X[b][2*i]}, 16, v{D_[b][i]}")
                e(f"v_and_b32 v{X[b][2*i+1]}, 0xffff0000, v{D_[b][i]}")
        for b in range(2):
            e(f"v_add_f32 v{40+b}, v{X[b][0]}, v{X[b][1]}")
            for i in range(2, 10): e(f"v_add_f32 v{40+b}, v{40+b}, v{X[b][i]}")
        allreduce([40, 41], "v_add_f32", [46, 47], [0, 1, 2, "m", 4, 5])
        e(f"s_mov_b32 s{sT0}, 0x3acccccd")
        for b in range(2): e(f"v_mul_f32 v{40+b}, s{sT0}, v{40+b}")
        for b in range(2):
            e(f"v_sub_f32 v48, v{X[b][0]}, v{40+b}")
            e(f"v_mul_f32 v{42+b}, v48, v48")
            for i in range(1, 10):
                e(f"v_sub_f32 v{48+(i&1)}, v{X[b][i]}, v{40+b}")
                e(f"v_fmac_f32 v{42+b}, v{48+(i&1)}, v{48+(i&1)}")
        allreduce([42, 43], "v_add_f32", [46, 47], [0, 1, 2, "m", 4, 5])
        for b in range(2): e(f"v_mul_f32 v{42+b}, s{sT0}, v{42+b}")
        e("v_cvt_pk_bf16_f32 v46, v40, v41")
        e("v_lshlrev_b32 v40, 16, v46"); e("v_and_b32 v41, 0xffff0000, v46")
        e("v_cvt_pk_bf16_f32 v46, v42, v43")
        e("v_lshlrev_b32 v42, 16, v46"); e("v_and_b32 v43, 0xffff0000, v46")
        e("v_add_f32 v42, 0x3727c5ac, v42"); e("v_add_f32 v43, 0x3727c5ac, v43")
        e("v_cvt_pk_bf16_f32 v46, v42, v43")
        e("v_lshlrev_b32 v42, 16, v46"); e("v_and_b32 v43, 0xffff0000, v46")
        e("v_sqrt_f32 v42, v42"); e("v_sqrt_f32 v43, v43")
        e("v_cvt_pk_bf16_f32 v46, v42, v43")
        e("v_lshlrev_b32 v42, 16, v46"); e("v_and_b32 v43, 0xffff0000, v46")
        e("v_rcp_f32 v42, v42"); e("v_rcp_f32 v43, v43")
        e(f"v_mul_u32_u24 v5, 20, v{vLANE}")
        for b in range(2):
            for i in range(5):
                x0, x1 = X[b][2*i], X[b][2*i+1]
                e(f"v_sub_f32 v{x0}, v{x0}, v{40+b}"); e(f"v_sub_f32 v{x1}, v{x1}, v{40+b}")
                e(f"v_cvt_pk_bf16_f32 v46, v{x0}, v{x1}")
                e(f"v_lshlrev_b32 v{x0}, 16, v46"); e(f"v_and_b32 v{x1}, 0xffff0000, v46")
                e(f"v_mul_f32 v{x0}, v{x0}, v{42+b}"); e(f"v_mul_f32 v{x1}, v{x1}, v{42+b}")
                e(f"v_cvt_pk_bf16_f32 v{x0}, v{x0}, v{x1}")
                e(f"ds_write_b32 v5, v{x0} offset:{XN + 1280*b + 4*i}")
        e(f"v_lshrrev_b32 v6, 3, v{vLANE}")
        e("v_mul_u32_u24 v6, 160, v6")
        e(f"s_mul_i32 s{sT0}, s{sWAVE}, 40")
        e(f"v_add_u32 v6, s{sT0}, v6")
        e("s_waitcnt lgkmcnt(0)")
        for b in range(2):
            for p in range(5):
                e(f"ds_read_b64 v[{XP+10*b+2*p}:{XP+10*b+2*p+1}], v6 offset:{XN + 1280*b + 8*p}")
        e("s_waitcnt lgkmcnt(0)")

    def xloads():
        e(f"v_mul_u32_u24 v4, 20, v{vLANE}")
        e(f"buffer_load_dwordx4 v[8:11], v4, {srd(sX)}, 0 offen")
        e(f"buffer_load_dword v12, v4, {srd(sX)}, 0 offen offset:16")
        e(f"buffer_load_dwordx4 v[14:17], v4, {srd(sX)}, 0 offen offset:1280")
        e(f"buffer_load_dword v18, v4, {srd(sX)}, 0 offen offset:1296")

    def unit_loads(srdn, RS, dst):
        e(f"v_lshrrev_b32 v6, 3, v{vLANE}")
        e("v_mul_u32_u24 v6, 80, v6")
        e(f"s_mul_i32 s{sT0}, s{sWAVE}, 20")
        e(f"v_add_u32 v6, s{sT0}, v6")
        e(f"s_mov_b32 s{sT0}, {RS}")
        e(f"v_mul_lo_u32 v6, v6, s{sT0}")
        e(f"v_and_b32 v7, 7, v{vLANE}")
        e("v_lshl_add_u32 v6, v7, 4, v6")
        e(f"s_mov_b32 s{sT1}, 0")
        for i in range(20):
            e(f"buffer_load_dwordx4 v[{dst+4*i}:{dst+4*i+3}], v6, {srd(srdn)}, s{sT1} offen{nt}")
            if i < 19: e(f"s_add_u32 s{sT1}, s{sT1}, {RS}")

    def sel_ops(src, odd, d):
        for b in range(2):
            if not odd:
                e(f"v_and_b32 v{d+2*b}, 0xffff, v{src[b]}")
                e(f"v_lshlrev_b32 v{d+2*b+1}, 16, v{src[b]}")
            else:
                e(f"v_lshrrev_b32 v{d+2*b}, 16, v{src[b]}")
                e(f"v_and_b32 v{d+2*b+1}, 0xffff0000, v{src[b]}")

    def mac16(W, A, sel):
        for dd in range(4):
            for b in range(2):
                e(f"v_dot2c_f32_bf16 v{A+8*b+2*dd}, v{W+dd}, v{sel+2*b}")
                e(f"v_dot2c_f32_bf16 v{A+8*b+2*dd+1}, v{W+dd}, v{sel+2*b+1}")

    def unit_compute(W, A, younger):
        for i in range(16): e(f"v_mov_b32 v{A+i}, 0")
        for i in range(20):
            e(f"s_waitcnt vmcnt({min(63, younger + 19 - i)})")
            sel_ops([XP + (i >> 1), XP + 10 + (i >> 1)], i & 1, 52)
            mac16(W + 4*i, A, 52)

    def unit_reduce(A, ldsbase):
        swapred([(A+i, A+8+i) for i in range(8)], 5)
        swapred([(A+i, A+4+i) for i in range(4)], 4)
        allreduce([A, A+1, A+2, A+3], "v_add_f32", None, [3])
        e(f"v_lshrrev_b32 v6, 5, v{vLANE}"); e("v_lshlrev_b32 v6, 8, v6")
        e(f"v_and_b32 v7, 7, v{vLANE}"); e("v_lshl_add_u32 v6, v7, 5, v6")
        e(f"v_bfe_u32 v7, v{vLANE}, 4, 1"); e("v_lshl_add_u32 v6, v7, 4, v6")
        e(f"s_lshl_b32 s{sT0}, s{sWAVE}, 9")
        e(f"v_add_u32 v6, s{sT0}, v6")
        e(f"ds_write_b128 v6, v[{A}:{A+3}] offset:{ldsbase}")

    hdr = open("recurrent_scan__mha_block_cached__geglu_ffn__decode.s.ref").read().split("\n")
    head = [l for l in hdr if l.startswith(";") and "@launch" not in l and "Override launch" not in l and "grid=ceil" not in l]
    out = []
    for l in hdr:
        if not l.startswith(";"): break
        if "@launch" in l or "Override" in l or "grid=ceil" in l: continue
        out.append(l)
    out.append(f"; @launch grid=({NWG},1,1) block=(256,1,1) lds={LDS_BYTES}")
    out += ['.amdgcn_target "amdgcn-amd-amdhsa--gfx950"', ".text", f".globl {KNAME}", ".p2align 8", f".type {KNAME},@function", f"{KNAME}:"]

    e(f"s_cmp_ge_u32 s2, {NWG}"); e("s_cbranch_scc1 L_end")
    stamp()
    e("s_load_dwordx8 s[4:11], s[0:1], 0")
    e("s_load_dwordx2 s[12:13], s[0:1], 32")
    e("s_load_dwordx4 s[16:19], s[0:1], 48")
    e("s_load_dwordx4 s[20:23], s[0:1], 64")
    e("s_load_dwordx4 s[24:27], s[0:1], 80")
    e(f"v_and_b32 v{vLANE}, 63, v0")
    e("v_lshrrev_b32 v2, 6, v0")
    e(f"v_readfirstlane_b32 s{sWAVE}, v2")
    e("s_waitcnt lgkmcnt(0)")
    e(f"s_load_dword s{sE}, s[26:27], 0")
    e(f"s_mov_b32 s{sWS}, s26"); e(f"s_mov_b32 s{sWS+1}, s27"); e(f"s_mov_b32 s{sWS+2}, {WS_REC}"); e(f"s_mov_b32 s{sWS+3}, 0x20000")
    e(f"s_mov_b32 s{sX}, s4"); e(f"s_mov_b32 s{sX+1}, s5"); e(f"s_mov_b32 s{sX+2}, 2560"); e(f"s_mov_b32 s{sX+3}, 0x20000")
    e(f"s_mov_b32 s{sOUT}, s22"); e(f"s_mov_b32 s{sOUT+1}, s23"); e(f"s_mov_b32 s{sOUT+2}, 2560"); e(f"s_mov_b32 s{sOUT+3}, 0x20000")
    e(f"s_cmp_lt_u32 s2, {NFFN}"); e("s_cbranch_scc1 L_ffn")

    e(f"s_sub_u32 s{sT0}, s2, {NFFN}")
    e(f"s_and_b32 s{sR}, s{sT0}, 7")
    e(f"s_lshr_b32 s{sH}, s{sT0}, 3")
    e(f"s_lshr_b32 s{sB}, s{sR}, 2")
    e(f"s_lshl_b32 s{sT1}, s{sB}, 5"); e(f"s_add_u32 s{sT1}, s{sT1}, s{sH}"); e(f"s_mul_i32 s{sT1}, s{sT1}, 1572864")
    e(f"s_and_b32 s14, s{sR}, 3"); e("s_mul_i32 s14, s14, 393216"); e(f"s_add_u32 s{sT1}, s{sT1}, s14")
    e(f"s_add_u32 s{sK}, s6, s{sT1}"); e(f"s_addc_u32 s{sK+1}, s7, 0"); e(f"s_mov_b32 s{sK+3}, 0x20000")
    e(f"s_add_u32 s{sV}, s8, s{sT1}"); e(f"s_addc_u32 s{sV+1}, s9, 0"); e(f"s_mov_b32 s{sV+3}, 0x20000")
    e(f"s_cmp_eq_u32 s{sWAVE}, 0")
    e(f"s_cselect_b32 s{sK+2}, 0, 393216"); e(f"s_cselect_b32 s{sV+2}, 0, 393216")
    def kv_voff():
        e(f"v_lshrrev_b32 v6, 3, v{vLANE}"); e(f"v_mul_u32_u24 v{vKV}, 384, v6")
        e(f"v_and_b32 v7, 7, v{vLANE}"); e(f"v_lshl_add_u32 v{vKV}, v7, 4, v{vKV}")
        e(f"s_mul_i32 s{sT0}, s{sWAVE}, 3072"); e(f"v_add_u32 v{vKV}, s{sT0}, v{vKV}")
    def kv_loads(d):
        b = RING + 24 * d
        for s in range(3): e(f"buffer_load_dwordx4 v[{b+4*s}:{b+4*s+3}], v{vKV}, {srd(sK)}, 0 offen offset:{128*s}{nt}")
        for s in range(3): e(f"buffer_load_dwordx4 v[{b+12+4*s}:{b+12+4*s+3}], v{vKV}, {srd(sV)}, 0 offen offset:{128*s}{nt}")
        e(f"v_add_u32 v{vKV}, 12288, v{vKV}")
    e(f"s_cmp_ge_u32 s{sR}, 3"); e("s_cbranch_scc1 L_nonprod")
    e(f"s_mul_i32 s{sT0}, s{sH}, 384"); e(f"s_lshl_b32 s{sT1}, s{sR}, 7"); e(f"s_add_u32 s{sT0}, s{sT0}, s{sT1}")
    e(f"s_add_u32 s{sAUX}, s10, s{sT0}"); e(f"s_addc_u32 s{sAUX+1}, s11, 0")
    e(f"s_mov_b32 s{sAUX+2}, {639*12288+128}"); e(f"s_mov_b32 s{sAUX+3}, 0x20000")
    xloads()
    unit_loads(sAUX, 12288, AUX)
    kv_voff()
    for d in range(D): kv_loads(d)
    e(f"s_waitcnt vmcnt({20 + 6*D})")
    layernorm()
    unit_compute(AUX, 20, 6*D)
    unit_reduce(20, QP)
    e("s_waitcnt lgkmcnt(0)")
    e("s_barrier")
    e(f"s_cmp_lg_u32 s{sWAVE}, 0"); e("s_cbranch_scc1 L_qwait")
    e(f"v_lshlrev_b32 v6, 3, v{vLANE}")
    for w in range(4): e(f"ds_read_b64 v[{20+2*w}:{21+2*w}], v6 offset:{QP + 512*w}")
    e("s_waitcnt lgkmcnt(0)")
    e("v_add_f32 v20, v20, v22"); e("v_add_f32 v21, v21, v23"); e("v_add_f32 v24, v24, v26"); e("v_add_f32 v25, v25, v27")
    e("v_add_f32 v20, v20, v24"); e("v_add_f32 v21, v21, v25")
    e("v_cvt_pk_bf16_f32 v20, v20, v21")
    e(f"s_mul_i32 s{sTAG}, s{sE}, 0x9E3779B1"); e(f"s_add_u32 s{sTAG}, s{sTAG}, 0x7F4A7C15")
    e(f"v_mov_b32 v21, s{sTAG}")
    e(f"v_lshrrev_b32 v6, 5, v{vLANE}"); e("v_mul_u32_u24 v6, 768, v6")
    e(f"v_and_b32 v7, 31, v{vLANE}"); e("v_lshl_add_u32 v6, v7, 3, v6")
    e(f"s_lshl_b32 s{sT0}, s{sH}, 11"); e(f"s_lshl_b32 s{sT1}, s{sR}, 8"); e(f"s_add_u32 s{sT0}, s{sT0}, s{sT1}")
    e(f"s_add_u32 s{sT0}, s{sT0}, {QBOX}")
    e(f"buffer_store_dwordx2 v[20:21], v6, {srd(sWS)}, s{sT0} offen sc0 sc1")
    e("s_branch L_qwait")
    a.label("L_nonprod")
    e(f"s_mul_i32 s{sT0}, s{sH}, {192*1280}"); e(f"s_sub_u32 s{sT1}, s{sR}, 3"); e(f"s_lshl_b32 s{sT1}, s{sT1}, 8")
    e(f"s_add_u32 s{sT0}, s{sT0}, s{sT1}")
    e(f"s_add_u32 s{sAUX}, s12, s{sT0}"); e(f"s_addc_u32 s{sAUX+1}, s13, 0")
    e(f"s_mov_b32 s{sAUX+2}, {191*1280+256}"); e(f"s_mov_b32 s{sAUX+3}, 0x20000")
    e(f"v_lshrrev_b32 v6, 4, v{vLANE}"); e("v_mul_u32_u24 v6, 12, v6")
    e(f"s_mul_i32 s{sT0}, s{sWAVE}, 48"); e(f"v_add_u32 v6, s{sT0}, v6")
    e("v_mul_u32_u24 v6, 1280, v6")
    e(f"v_and_b32 v7, 15, v{vLANE}"); e("v_lshl_add_u32 v6, v7, 4, v6")
    e(f"s_mov_b32 s{sT1}, 0")
    for i in range(12):
        e(f"buffer_load_dwordx4 v[{AUX+4*i}:{AUX+4*i+3}], v6, {srd(sAUX)}, s{sT1} offen{nt}")
        if i < 11: e(f"s_add_u32 s{sT1}, s{sT1}, 1280")
    kv_voff()
    for d in range(D): kv_loads(d)
    a.label("L_qwait")
    e("s_waitcnt lgkmcnt(0)")
    e(f"s_mul_i32 s{sTAG}, s{sE}, 0x9E3779B1"); e(f"s_add_u32 s{sTAG}, s{sTAG}, 0x7F4A7C15")
    e(f"s_cmp_lg_u32 s{sWAVE}, 0"); e("s_cbranch_scc1 L_qbar")
    e(f"s_lshl_b32 s{sT0}, s{sH}, 11"); e(f"s_mul_i32 s{sT1}, s{sB}, 768"); e(f"s_add_u32 s{sT0}, s{sT0}, s{sT1}")
    e(f"s_add_u32 s{sT0}, s{sT0}, {QBOX}")
    e(f"v_lshlrev_b32 v6, 4, v{vLANE}")
    e("s_mov_b32 exec_hi, 0xffff")
    poll_begin("L_pq")
    e(f"buffer_load_dwordx4 v[48:51], v6, {srd(sWS)}, s{sT0} offen sc0 sc1")
    poll_end("L_pq", [49, 51], 52)
    e(f"v_lshlrev_b32 v6, 3, v{vLANE}")
    e(f"v_add_u32 v6, {Q}, v6")
    e("ds_write2_b32 v6, v48, v50 offset0:0 offset1:1")
    e("s_mov_b64 exec, -1")
    e(f"s_mov_b32 s{sK+2}, 393216"); e(f"s_mov_b32 s{sV+2}, 393216")
    kv_voff()
    for d in range(D): kv_loads(d)
    e("s_waitcnt lgkmcnt(0)")
    a.label("L_qbar")
    e("s_barrier")
    stamp()
    e(f"v_and_b32 v7, 7, v{vLANE}"); e("v_lshlrev_b32 v6, 4, v7")
    for s in range(3): e(f"ds_read_b128 v[{vQ+4*s}:{vQ+4*s+3}], v6 offset:{Q + 128*s}")
    for i in range(24): e(f"v_mov_b32 v{vACC+i}, 0")
    e(f"v_mov_b32 v{vM}, 0xff000000"); e(f"v_mov_b32 v{vL}, 0")
    e("s_mov_b32 s14, 0x3d93cd3a"); e("s_mov_b32 s15, 0x3fb8aa3b")
    e("s_waitcnt lgkmcnt(0)")
    NT_TILES = 32
    e(f"s_mov_b32 s{sCNT}, {NT_TILES // D}")
    a.label("L_loop")
    for d in range(D):
        b = RING + 24 * d
        e(f"s_waitcnt vmcnt({6*(D-1)+3})")
        e(f"v_mov_b32 v46, 0"); e("v_mov_b32 v47, 0")
        for i in range(12): e(f"v_dot2c_f32_bf16 v{46+(i&1)}, v{b+i}, v{vQ+i}")
        e("v_add_f32 v46, v46, v47")
        allreduce([46], "v_add_f32", None, [0, 1, 2])
        e("v_cvt_pk_bf16_f32 v46, v46, v46"); e("v_and_b32 v46, 0xffff0000, v46")
        e("v_mul_f32 v46, s14, v46")
        e("v_cvt_pk_bf16_f32 v46, v46, v46"); e("v_and_b32 v46, 0xffff0000, v46")
        e("v_mul_f32 v46, s15, v46")
        e(f"v_max_f32 v47, v{vM}, v46")
        e(f"v_sub_f32 v48, v{vM}, v47"); e("v_sub_f32 v49, v46, v47")
        e("v_exp_f32 v48, v48"); e("v_exp_f32 v49, v49")
        e(f"v_mov_b32 v{vM}, v47")
        e(f"v_fma_f32 v{vL}, v{vL}, v48, v49")
        e("v_cvt_pk_bf16_f32 v50, v49, 0"); e("v_lshlrev_b32 v51, 16, v50")
        for i in range(12):
            e(f"v_pk_mul_f32 v[{vACC+2*i}:{vACC+2*i+1}], v[{vACC+2*i}:{vACC+2*i+1}], v[48:49] op_sel_hi:[1,0]")
        e(f"s_waitcnt vmcnt({6*(D-1)})")
        for i in range(12):
            e(f"v_dot2c_f32_bf16 v{vACC+2*i}, v{b+12+i}, v50")
            e(f"v_dot2c_f32_bf16 v{vACC+2*i+1}, v{b+12+i}, v51")
        kv_loads(d)
    e(f"s_sub_u32 s{sCNT}, s{sCNT}, 1"); e(f"s_cmp_lg_u32 s{sCNT}, 0"); e("s_cbranch_scc1 L_loop")
    stamp()
    e(f"v_mov_b32 v46, v{vM}")
    allreduce([46], "v_max_f32", [47], [3, 4, 5])
    e(f"v_sub_f32 v48, v{vM}, v46"); e("v_exp_f32 v48, v48")
    e(f"v_mul_f32 v47, v{vL}, v48")
    for i in range(12):
        e(f"v_pk_mul_f32 v[{vACC+2*i}:{vACC+2*i+1}], v[{vACC+2*i}:{vACC+2*i+1}], v[48:49] op_sel_hi:[1,0]")
    allreduce([47], "v_add_f32", [49], [3, 4, 5])
    swapred([(vACC+8*s+i, vACC+8*s+4+i) for s in range(3) for i in range(4)], 5)
    swapred([(vACC+8*s+i, vACC+8*s+2+i) for s in range(3) for i in range(2)], 4)
    allreduce([vACC+8*s+i for s in range(3) for i in range(2)], "v_add_f32", None, [3])
    e(f"v_and_b32 v6, 7, v{vLANE}"); e("v_lshlrev_b32 v6, 5, v6")
    e(f"v_lshrrev_b32 v7, 5, v{vLANE}"); e("v_lshl_add_u32 v6, v7, 4, v6")
    e(f"v_bfe_u32 v7, v{vLANE}, 4, 1"); e("v_lshl_add_u32 v6, v7, 3, v6")
    e(f"s_mul_i32 s{sT0}, s{sWAVE}, 768"); e(f"v_add_u32 v6, s{sT0}, v6")
    for s in range(3): e(f"ds_write_b64 v6, v[{vACC+8*s}:{vACC+8*s+1}] offset:{PART + 256*s}")
    e(f"s_lshl_b32 s{sT0}, s{sWAVE}, 3"); e(f"v_mov_b32 v7, s{sT0}")
    e(f"ds_write_b64 v7, v[46:47] offset:{STAT}")
    e("s_waitcnt lgkmcnt(0)")
    e("s_barrier")
    e("v_cmp_gt_u32 vcc, 97, v0"); e("s_and_saveexec_b64 s[16:17], vcc"); e("s_cbranch_execz L_pub_done")
    e("v_lshlrev_b32 v6, 3, v0"); e("v_mov_b32 v7, 0")
    for w in range(4): e(f"ds_read_b64 v[{20+2*w}:{21+2*w}], v6 offset:{PART + 768*w}")
    e(f"ds_read_b128 v[28:31], v7 offset:{STAT}"); e(f"ds_read_b128 v[32:35], v7 offset:{STAT+16}")
    e("s_waitcnt lgkmcnt(0)")
    e("v_max_f32 v36, v28, v30"); e("v_max3_f32 v36, v36, v32, v34")
    for w in range(4): e(f"v_sub_f32 v{28+2*w}, v{28+2*w}, v36")
    for w in range(4): e(f"v_exp_f32 v{28+2*w}, v{28+2*w}")
    e("v_mul_f32 v40, v20, v28"); e("v_mul_f32 v42, v21, v28"); e("v_mul_f32 v37, v29, v28")
    for w in range(1, 4):
        e(f"v_fmac_f32 v40, v{20+2*w}, v{28+2*w}"); e(f"v_fmac_f32 v42, v{21+2*w}, v{28+2*w}"); e(f"v_fmac_f32 v37, v{29+2*w}, v{28+2*w}")
    e("v_cmp_eq_u32 vcc, 96, v0")
    e("v_cndmask_b32 v40, v40, v36, vcc"); e("v_cndmask_b32 v42, v42, v37, vcc")
    e(f"v_mov_b32 v41, s{sTAG}"); e(f"v_mov_b32 v43, s{sTAG}")
    e("v_lshlrev_b32 v6, 4, v0")
    e(f"s_sub_u32 s{sT0}, s2, {NFFN}"); e(f"s_lshl_b32 s{sT0}, s{sT0}, 11"); e(f"s_add_u32 s{sT0}, s{sT0}, {OBOX}")
    e(f"buffer_store_dwordx4 v[40:43], v6, {srd(sWS)}, s{sT0} offen sc0 sc1")
    a.label("L_pub_done")
    e("s_mov_b64 exec, s[16:17]")
    stamp()
    e(f"s_cmp_lt_u32 s{sR}, 3"); e("s_cbranch_scc1 L_final")
    e(f"s_cmp_eq_u32 s{sWAVE}, 3"); e("s_cbranch_scc1 L_wo_bar")
    e("v_cmp_le_u32 vcc, 96, v0")
    e("v_cndmask_b32 v7, 0, 1, vcc")
    e("v_mul_u32_u24 v5, 96, v7"); e("v_sub_u32 v5, v0, v5")
    e("v_lshlrev_b32 v6, 13, v7")
    e("v_mov_b32 v4, v6")
    e("v_lshl_add_u32 v6, v5, 4, v6")
    e(f"v_add_u32 v4, 1536, v4")
    e(f"s_lshl_b32 s{sT0}, s{sH}, 14"); e(f"s_add_u32 s{sT0}, s{sT0}, {OBOX}")
    poll_begin("L_p1")
    for s in range(4):
        off = 2048 * s
        if off < 4096:
            e(f"buffer_load_dwordx4 v[{60+4*s}:{63+4*s}], v6, {srd(sWS)}, s{sT0} offen offset:{off} sc0 sc1")
            e(f"buffer_load_dwordx4 v[{76+4*s}:{79+4*s}], v4, {srd(sWS)}, s{sT0} offen offset:{off} sc0 sc1")
        else:
            if s == 2: e(f"s_add_u32 s{sT1}, s{sT0}, 4096")
            e(f"buffer_load_dwordx4 v[{60+4*s}:{63+4*s}], v6, {srd(sWS)}, s{sT1} offen offset:{off-4096} sc0 sc1")
            e(f"buffer_load_dwordx4 v[{76+4*s}:{79+4*s}], v4, {srd(sWS)}, s{sT1} offen offset:{off-4096} sc0 sc1")
    poll_end("L_p1", [61+4*s for s in range(4)] + [63+4*s for s in range(4)] + [77+4*s for s in range(4)] + [79+4*s for s in range(4)], 52)
    e("v_max_f32 v36, v76, v80"); e("v_max3_f32 v36, v36, v84, v88")
    for s in range(4): e(f"v_sub_f32 v{76+4*s}, v{76+4*s}, v36")
    for s in range(4): e(f"v_exp_f32 v{76+4*s}, v{76+4*s}")
    e("v_mul_f32 v40, v60, v76"); e("v_mul_f32 v41, v62, v76"); e("v_mul_f32 v37, v78, v76")
    for s in range(1, 4):
        e(f"v_fmac_f32 v40, v{60+4*s}, v{76+4*s}"); e(f"v_fmac_f32 v41, v{62+4*s}, v{76+4*s}"); e(f"v_fmac_f32 v37, v{78+4*s}, v{76+4*s}")
    e("v_rcp_f32 v37, v37")
    e("v_mul_f32 v40, v40, v37"); e("v_mul_f32 v41, v41, v37")
    e("v_cvt_pk_bf16_f32 v40, v40, v41")
    e("v_mul_u32_u24 v6, 384, v7"); e("v_lshl_add_u32 v6, v5, 2, v6")
    e(f"ds_write_b32 v6, v40 offset:{SEL}")
    e("s_waitcnt lgkmcnt(0)")
    a.label("L_wo_bar")
    e("s_barrier")
    stamp()
    e(f"v_lshrrev_b32 v6, 4, v{vLANE}"); e("v_mul_u32_u24 v6, 24, v6")
    e(f"s_mul_i32 s{sT0}, s{sWAVE}, 96"); e(f"v_add_u32 v6, s{sT0}, v6")
    for b in range(2):
        for p in range(3): e(f"ds_read_b64 v[{60+6*b+2*p}:{61+6*b+2*p}], v6 offset:{SEL + 384*b + 8*p}")
    for i in range(16): e(f"v_mov_b32 v{20+i}, 0")
    e("s_waitcnt vmcnt(0) lgkmcnt(0)")
    for i in range(12):
        sel_ops([60 + (i >> 1), 66 + (i >> 1)], i & 1, 52)
        mac16(AUX + 4*i, 20, 52)
    swapred([(20+i, 28+i) for i in range(8)], 5)
    swapred([(20+i, 24+i) for i in range(4)], 4)
    e(f"v_lshrrev_b32 v6, 5, v{vLANE}"); e("v_lshlrev_b32 v6, 9, v6")
    e(f"v_and_b32 v7, 15, v{vLANE}"); e("v_lshl_add_u32 v6, v7, 5, v6")
    e(f"v_bfe_u32 v7, v{vLANE}, 4, 1"); e("v_lshl_add_u32 v6, v7, 4, v6")
    e(f"s_lshl_b32 s{sT0}, s{sWAVE}, 10"); e(f"v_add_u32 v6, s{sT0}, v6")
    e(f"ds_write_b128 v6, v[20:23] offset:{YP}")
    e("s_waitcnt lgkmcnt(0)")
    e("s_barrier")
    e(f"s_cmp_ge_u32 s{sWAVE}, 2"); e("s_cbranch_scc1 L_fin")
    e("v_lshlrev_b32 v6, 3, v0")
    for w in range(4): e(f"ds_read_b64 v[{20+2*w}:{21+2*w}], v6 offset:{YP + 1024*w}")
    e("s_waitcnt lgkmcnt(0)")
    e("v_add_f32 v20, v20, v22"); e("v_add_f32 v21, v21, v23"); e("v_add_f32 v24, v24, v26"); e("v_add_f32 v25, v25, v27")
    e("v_add_f32 v40, v20, v24"); e("v_add_f32 v42, v21, v25")
    e(f"v_mov_b32 v41, s{sTAG}"); e(f"v_mov_b32 v43, s{sTAG}")
    e("v_lshlrev_b32 v6, 4, v0")
    e(f"s_mul_i32 s{sT0}, s{sH}, 5"); e(f"s_add_u32 s{sT0}, s{sT0}, s{sR}"); e(f"s_sub_u32 s{sT0}, s{sT0}, 3")
    e(f"s_lshl_b32 s{sT0}, s{sT0}, 11"); e(f"s_add_u32 s{sT0}, s{sT0}, {YBOX}")
    e(f"buffer_store_dwordx4 v[40:43], v6, {srd(sWS)}, s{sT0} offen sc0 sc1")
    e("s_branch L_fin")
    a.label("L_final")
    e(f"s_mul_i32 s14, s{sH}, 3"); e(f"s_add_u32 s14, s14, s{sR}")
    e("s_cmp_ge_u32 s14, 40"); e("s_cbranch_scc1 L_fin")
    e("s_cmp_ge_u32 s14, 20"); e("s_cselect_b32 s15, 1, 0")
    e("s_mul_i32 s16, s15, 20"); e("s_sub_u32 s16, s14, s16")
    e("s_lshr_b32 s17, s16, 2"); e("s_and_b32 s18, s16, 3")
    e("s_mul_i32 s19, s15, 640"); e("s_lshl_b32 s20, s16, 5"); e("s_add_u32 s19, s19, s20")
    e("v_add_u32 v4, s19, v0"); e("v_lshlrev_b32 v4, 1, v4")
    e(f"buffer_load_ushort v58, v4, {srd(sX)}, 0 offen")
    e("v_lshrrev_b32 v5, 3, v0")
    e("v_and_b32 v7, 7, v0")
    e("v_mul_u32_u24 v6, 10240, v5"); e("v_lshl_add_u32 v6, v7, 5, v6")
    e("s_lshl_b32 s20, s17, 11"); e("s_lshl_b32 s21, s15, 10"); e("s_add_u32 s20, s20, s21"); e("s_lshl_b32 s21, s18, 8"); e("s_add_u32 s20, s20, s21")
    e(f"s_add_u32 s20, s20, {YBOX}")
    e("s_lshl_b32 s21, s19, 3"); e(f"s_add_u32 s21, s21, {FBOX}")
    e("v_min_u32 v5, 23, v5"); e("v_mul_u32_u24 v5, 10240, v5"); e("v_lshl_add_u32 v5, v7, 5, v5")
    poll_begin("L_p2")
    e(f"buffer_load_dwordx4 v[60:63], v6, {srd(sWS)}, s20 offen sc0 sc1")
    e(f"buffer_load_dwordx4 v[64:67], v6, {srd(sWS)}, s20 offen offset:16 sc0 sc1")
    e(f"buffer_load_dwordx4 v[68:71], v5, {srd(sWS)}, s21 offen sc0 sc1")
    e(f"buffer_load_dwordx4 v[72:75], v5, {srd(sWS)}, s21 offen offset:16 sc0 sc1")
    poll_end("L_p2", [61, 63, 65, 67, 69, 71, 73, 75], 52)
    e(f"s_cmp_eq_u32 s{sWAVE}, 3"); e("s_cselect_b32 s22, 0, 1.0")
    for r in (68, 70, 72, 74): e(f"v_mul_f32 v{r}, s22, v{r}")
    swapred([(60, 68), (62, 70), (64, 72), (66, 74)], 5)
    swapred([(60, 64), (62, 66)], 4)
    allreduce([60, 62], "v_add_f32", None, [3])
    e("v_mov_b32 v61, v62")
    e(f"v_lshrrev_b32 v6, 5, v{vLANE}"); e("v_lshlrev_b32 v6, 7, v6")
    e(f"v_and_b32 v7, 7, v{vLANE}"); e("v_lshl_add_u32 v6, v7, 4, v6")
    e(f"v_bfe_u32 v7, v{vLANE}, 4, 1"); e("v_lshl_add_u32 v6, v7, 3, v6")
    e(f"s_lshl_b32 s22, s{sWAVE}, 8"); e("v_add_u32 v6, s22, v6")
    e(f"ds_write_b64 v6, v[60:61] offset:{RED}")
    e("s_waitcnt lgkmcnt(0)")
    e("s_barrier")
    e(f"s_cmp_lg_u32 s{sWAVE}, 0"); e("s_cbranch_scc1 L_fin")
    e("s_mov_b32 exec_hi, 0")
    e("v_lshlrev_b32 v6, 2, v0")
    for w in range(4):
        e(f"ds_read_b32 v{20+w}, v6 offset:{RED + 256*w}"); e(f"ds_read_b32 v{24+w}, v6 offset:{RED + 256*w + 128}")
    e("s_waitcnt lgkmcnt(0)")
    e("v_add_f32 v20, v20, v21"); e("v_add_f32 v22, v22, v23"); e("v_add_f32 v24, v24, v25"); e("v_add_f32 v26, v26, v27")
    e("v_add_f32 v20, v20, v22"); e("v_add_f32 v24, v24, v26")
    e("v_cvt_pk_bf16_f32 v28, v20, v24")
    e("v_lshlrev_b32 v20, 16, v28"); e("v_and_b32 v24, 0xffff0000, v28")
    e("s_mov_b32 s22, 0xbfb8aa3b")
    e("v_mul_f32 v25, s22, v24"); e("v_exp_f32 v25, v25"); e("v_add_f32 v25, 1.0, v25"); e("v_rcp_f32 v25, v25")
    e("v_mul_f32 v24, v24, v25")
    e("v_cvt_pk_bf16_f32 v24, v24, v24"); e("v_and_b32 v24, 0xffff0000, v24")
    e("v_mul_f32 v20, v20, v24")
    e("v_cvt_pk_bf16_f32 v20, v20, v20"); e("v_and_b32 v20, 0xffff0000, v20")
    e("v_lshlrev_b32 v58, 16, v58")
    e("v_add_f32 v20, v58, v20")
    e("v_cvt_pk_bf16_f32 v20, v20, v20")
    e(f"buffer_store_short v20, v4, {srd(sOUT)}, 0 offen")
    e("s_cmp_lg_u32 s14, 0"); e("s_cbranch_scc1 L_fin")
    e("s_mov_b64 exec, 1")
    e(f"v_mov_b32 v21, s{sTAG}"); e("v_mov_b32 v22, 0")
    e(f"buffer_store_dword v21, v22, {srd(sWS)}, 0 offen")
    e("s_branch L_fin")

    a.label("L_ffn")
    e(f"s_lshl_b32 s{sT0}, s2, 7")
    e(f"s_add_u32 s{sAUX}, s16, s{sT0}"); e(f"s_addc_u32 s{sAUX+1}, s17, 0"); e(f"s_mov_b32 s{sAUX+2}, {639*3072+128}"); e(f"s_mov_b32 s{sAUX+3}, 0x20000")
    e(f"s_add_u32 s{sAUX2}, s18, s{sT0}"); e(f"s_addc_u32 s{sAUX2+1}, s19, 0"); e(f"s_mov_b32 s{sAUX2+2}, {639*3072+128}"); e(f"s_mov_b32 s{sAUX2+3}, 0x20000")
    e(f"s_mul_i32 s{sT0}, s2, {64*1280}")
    e(f"s_add_u32 s{sK}, s20, s{sT0}"); e(f"s_addc_u32 s{sK+1}, s21, 0"); e(f"s_mov_b32 s{sK+2}, {64*1280}"); e(f"s_mov_b32 s{sK+3}, 0x20000")
    xloads()
    unit_loads(sAUX, 3072, 60)
    unit_loads(sAUX2, 3072, 140)
    e("s_waitcnt vmcnt(40)")
    layernorm()
    unit_compute(60, 20, 20)
    unit_reduce(20, QP)
    e(f"v_lshrrev_b32 v4, 4, v{vLANE}"); e("v_lshlrev_b32 v4, 2, v4")
    e(f"s_lshl_b32 s{sT0}, s{sWAVE}, 4"); e(f"v_add_u32 v4, s{sT0}, v4")
    e("v_mul_u32_u24 v4, 1280, v4")
    e(f"v_and_b32 v7, 15, v{vLANE}"); e("v_lshl_add_u32 v4, v7, 4, v4")
    for i in range(4):
        e(f"s_mov_b32 s{sT1}, {1280*i}")
        for sg in range(5):
            e(f"buffer_load_dwordx4 v[{60+20*i+4*sg}:{63+20*i+4*sg}], v4, {srd(sK)}, s{sT1} offen offset:{256*sg}{nt}")
    unit_compute(140, 36, 20)
    unit_reduce(36, UP)
    e("s_waitcnt lgkmcnt(0)")
    e("s_barrier")
    e(f"s_cmp_ge_u32 s{sWAVE}, 2"); e("s_cbranch_scc1 L_ffn_h")
    e("v_lshlrev_b32 v6, 2, v0")
    for w in range(4):
        e(f"ds_read_b32 v{20+w}, v6 offset:{QP + 512*w}"); e(f"ds_read_b32 v{24+w}, v6 offset:{UP + 512*w}")
    e("s_waitcnt lgkmcnt(0)")
    e("v_add_f32 v20, v20, v21"); e("v_add_f32 v22, v22, v23"); e("v_add_f32 v24, v24, v25"); e("v_add_f32 v26, v26, v27")
    e("v_add_f32 v20, v20, v22"); e("v_add_f32 v24, v24, v26")
    e("v_cvt_pk_bf16_f32 v28, v20, v24")
    e("v_lshlrev_b32 v20, 16, v28"); e("v_and_b32 v24, 0xffff0000, v28")
    e("v_mul_f32 v25, v20, v20"); e("v_mul_f32 v25, v25, v20")
    e("s_mov_b32 s22, 0x3d372713"); e("v_fma_f32 v25, v25, s22, v20")
    e("s_mov_b32 s22, 0xc0135761"); e("v_mul_f32 v25, s22, v25")
    e("v_exp_f32 v25, v25"); e("v_add_f32 v25, 1.0, v25"); e("v_rcp_f32 v25, v25")
    e("v_mul_f32 v20, v20, v25")
    e("v_cvt_pk_bf16_f32 v20, v20, v20"); e("v_and_b32 v20, 0xffff0000, v20")
    e("v_mul_f32 v20, v20, v24")
    e("v_cvt_pk_bf16_f32 v20, v20, v20")
    e("v_lshlrev_b32 v6, 1, v0")
    e(f"ds_write_b16 v6, v20 offset:{H}")
    e("s_waitcnt lgkmcnt(0)")
    a.label("L_ffn_h")
    e("s_barrier")
    e(f"v_lshrrev_b32 v6, 4, v{vLANE}"); e("v_lshlrev_b32 v6, 3, v6")
    e(f"s_lshl_b32 s{sT0}, s{sWAVE}, 5"); e(f"v_add_u32 v6, s{sT0}, v6")
    e(f"ds_read_b64 v[56:57], v6 offset:{H}"); e(f"ds_read_b64 v[58:59], v6 offset:{H+128}")
    for i in range(80): e(f"v_mov_b32 v{140+i}, 0")
    e("s_waitcnt vmcnt(0) lgkmcnt(0)")
    for i in range(4):
        sel_ops([56 + (i >> 1), 58 + (i >> 1)], i & 1, 52)
        for sg in range(5):
            mac16(60 + 20*i + 4*sg, 140 + 16*sg, 52)
    for sg in range(5):
        A = 140 + 16*sg
        swapred([(A+i, A+8+i) for i in range(8)], 5)
        swapred([(A+i, A+4+i) for i in range(4)], 4)
    e(f"v_lshrrev_b32 v6, 5, v{vLANE}"); e("v_mul_u32_u24 v6, 2560, v6")
    e(f"v_and_b32 v7, 15, v{vLANE}"); e("v_lshl_add_u32 v6, v7, 5, v6")
    e(f"v_bfe_u32 v7, v{vLANE}, 4, 1"); e("v_lshl_add_u32 v6, v7, 4, v6")
    e(f"s_mul_i32 s{sT0}, s{sWAVE}, 5120"); e(f"v_add_u32 v6, s{sT0}, v6")
    for sg in range(5): e(f"ds_write_b128 v6, v[{140+16*sg}:{143+16*sg}] offset:{DP + 512*sg}")
    e("s_waitcnt lgkmcnt(0)")
    e("s_barrier")
    e(f"s_mul_i32 s{sTAG}, s{sE}, 0x9E3779B1"); e(f"s_add_u32 s{sTAG}, s{sTAG}, 0x7F4A7C15")
    e(f"s_mul_i32 s{sT0}, s2, 10240"); e(f"s_add_u32 s{sT0}, s{sT0}, {FBOX}")
    e(f"v_mov_b32 v41, s{sTAG}"); e(f"v_mov_b32 v43, s{sTAG}")
    for q in range(3):
        if q == 2:
            e(f"s_cmp_ge_u32 s{sWAVE}, 2"); e("s_cbranch_scc1 L_fin")
        e(f"v_add_u32 v5, {256*q}, v0"); e("v_lshlrev_b32 v6, 3, v5")
        for w in range(4): e(f"ds_read_b64 v[{20+2*w}:{21+2*w}], v6 offset:{DP + 5120*w}")
        e("s_waitcnt lgkmcnt(0)")
        e("v_add_f32 v20, v20, v22"); e("v_add_f32 v21, v21, v23"); e("v_add_f32 v24, v24, v26"); e("v_add_f32 v25, v25, v27")
        e("v_add_f32 v40, v20, v24"); e("v_add_f32 v42, v21, v25")
        e("v_lshlrev_b32 v6, 4, v5")
        e(f"buffer_store_dwordx4 v[40:43], v6, {srd(sWS)}, s{sT0} offen sc0 sc1")
        e("s_nop 1")

    a.label("L_fin")
    if PROF:
        stamp()
        n = prof_n[0]
        e("s_mov_b64 exec, -1")
        e(f"s_cmp_lg_u32 s{sWAVE}, 0"); e("s_cbranch_scc1 L_end")
        e("s_waitcnt lgkmcnt(0)")
        e("s_getreg_b32 s14, hwreg(HW_REG_XCC_ID)")
        e(f"s_lshl_b32 s{sT0}, s2, 7"); e(f"s_add_u32 s{sT0}, s{sT0}, {PROFO}")
        e("v_mov_b32 v6, 0")
        e("s_mov_b64 exec, 1")
        for i in range(n):
            e(f"v_mov_b32 v20, s{64+2*i}"); e(f"v_mov_b32 v21, s{65+2*i}")
            e(f"buffer_store_dwordx2 v[20:21], v6, {srd(sWS)}, s{sT0} offen offset:{8*i}")
            e("s_nop 1")
        e("v_mov_b32 v20, s14")
        e(f"buffer_store_dword v20, v6, {srd(sWS)}, s{sT0} offen offset:120")
    a.label("L_end")
    e("s_endpgm")
    body = fix_hazards([l for l in a.L if l is not None])
    out += body
    out += ['.section .rodata,"a"', ".p2align 6", f".amdhsa_kernel {KNAME}", "  .amdhsa_next_free_vgpr 256", "  .amdhsa_next_free_sgpr 96",
            "  .amdhsa_accum_offset 256", "  .amdhsa_group_segment_fixed_size 0", "  .amdhsa_kernarg_size 96", "  .amdhsa_user_sgpr_count 2",
            "  .amdhsa_user_sgpr_kernarg_segment_ptr 1", "  .amdhsa_system_sgpr_workgroup_id_x 1", ".end_amdhsa_kernel"]
    return "\n".join(out) + "\n"

if __name__ == "__main__":
    import json
    kw = json.loads(sys.argv[2]) if len(sys.argv) > 2 else {}
    open(sys.argv[1], "w").write(gen(**kw))

LAST = 5
```

```python
import sys
sys.path.insert(0, "gen")
from asmlib import Asm, fix_hazards

KNAME = "recurrent_scan__mha_block_cached__geglu_ffn__decode_kernel"

XN, QP, UP, Q, PART, STAT, SEL, YP, RED, H = 0, 2560, 4608, 6656, 7424, 13568, 13696, 14464, 18560, 19584
WOL = 19968
DP = WOL
LDS_BYTES = WOL + 49152
CNT, QBOX, OBOX, YBOX, FBOX, PROFO = 0x1000, 0x4000, 0x50000, 0x150000, 0x1A0000, 0x200000
WS_REC = 0x400000
NFFN = 24
FFN_LAST = 1
NWG = NFFN + 256
SPIN = 1 << 17

sK, sV, sAUX, sWS, sX, sOUT, sAUX2 = 28, 32, 36, 40, 44, 48, 52
sWAVE, sH, sR, sTAG, sE, sT0, sT1, sCNT = 56, 57, 58, 60, 61, 62, 63, 3
sTILE = 80
sN, sNEXT = 86, 87
sCTR = 88
vLANE, vKV, vOFF = 1, 3, 2
RING = 60
vQ0, vQ1 = 8, 204
vACC0, vM0, vL0 = 20, 44, 45
vACC1, vM1, vL1 = 216, 240, 241
WQ = 156
XP = 236
KVREC = 50331648 + 1572864

def srd(s): return f"s[{s}:{s+3}]"

def gen(PROF=0, NT=1, FLA=8, STG=1, SLP=1, EARLY=2, DL=2, NS=4, STATIC=0, CH1=1, SCS='sc0 sc1', SCL='sc0 sc1'):
    a = Asm(); e = a.e
    nt = " nt" if NT else ""
    prof_n = [0]
    SP = [64, 66, 68, 70, 72, 74, 76, 78, 90, 92, 94, 96, 98, 100]
    def stamp(level=1):
        if PROF >= level:
            i = prof_n[0]; prof_n[0] += 1
            e(f"s_memrealtime s[{SP[i]}:{SP[i]+1}]")
    def allreduce(regs, op, tmps, bits):
        for bit in bits:
            if bit in (0, 1, 2, 3, "m"):
                mod = {0: "quad_perm:[1,0,3,2]", 1: "quad_perm:[2,3,0,1]", 2: "row_half_mirror", 3: "row_ror:8", "m": "row_mirror"}[bit]
                for r in regs:
                    e(f"{op}_dpp v{r}, v{r}, v{r} {mod} row_mask:0xf bank_mask:0xf")
            else:
                sw = "v_permlane16_swap_b32" if bit == 4 else "v_permlane32_swap_b32"
                for r, t in zip(regs, tmps): e(f"v_mov_b32 v{t}, v{r}")
                for r, t in zip(regs, tmps): e(f"{sw} v{r}, v{t}")
                for r, t in zip(regs, tmps): e(f"{op} v{r}, v{r}, v{t}")
    def swapred(pairs, bit):
        sw = "v_permlane16_swap_b32" if bit == 4 else "v_permlane32_swap_b32"
        for x, y in pairs: e(f"{sw} v{x}, v{y}")
        for x, y in pairs: e(f"v_add_f32 v{x}, v{x}, v{y}")
    def mktag():
        e(f"s_mul_i32 s{sTAG}, s{sE}, 0x9E3779B1"); e(f"s_add_u32 s{sTAG}, s{sTAG}, 0x7F4A7C15")
    def lane_poll(name, loads, tagregs, tmp):
        e(f"s_mov_b32 s{sCNT}, {SPIN}")
        a.label(name)
        for l in loads: e(l)
        e("s_waitcnt vmcnt(0)")
        e(f"v_xor_b32 v{tmp}, s{sTAG}, v{tagregs[0]}")
        for t in tagregs[1:]:
            e(f"v_xor_b32 v{tmp+1}, s{sTAG}, v{t}")
            e(f"v_or_b32 v{tmp}, v{tmp}, v{tmp+1}")
        e(f"v_cmp_ne_u32 vcc, 0, v{tmp}")
        e("s_mov_b64 exec, vcc")
        e(f"s_cbranch_execz {name}_done")
        e(f"s_sleep {SLP}")
        e(f"s_sub_u32 s{sCNT}, s{sCNT}, 1")
        e(f"s_cmp_lg_u32 s{sCNT}, 0")
        e(f"s_cbranch_scc1 {name}")
        a.label(name + "_done")
        e("s_mov_b64 exec, -1")

    def layernorm():
        D_ = [[8, 9, 10, 11, 12], [14, 15, 16, 17, 18]]
        X = [[20 + i for i in range(10)], [30 + i for i in range(10)]]
        for b in range(2):
            for i in range(5):
                e(f"v_lshlrev_b32 v{X[b][2*i]}, 16, v{D_[b][i]}")
                e(f"v_and_b32 v{X[b][2*i+1]}, 0xffff0000, v{D_[b][i]}")
        for b in range(2):
            e(f"v_add_f32 v{40+b}, v{X[b][0]}, v{X[b][1]}")
        for i in range(2, 10):
            for b in range(2): e(f"v_add_f32 v{40+b}, v{40+b}, v{X[b][i]}")
        allreduce([40, 41], "v_add_f32", [46, 47], [0, 1, 2, "m", 4, 5])
        e(f"s_mov_b32 s{sT0}, 0x3acccccd")
        for b in range(2): e(f"v_mul_f32 v{40+b}, s{sT0}, v{40+b}")
        for b in range(2):
            e(f"v_sub_f32 v{48+b}, v{X[b][0]}, v{40+b}")
        for b in range(2):
            e(f"v_mul_f32 v{42+b}, v{48+b}, v{48+b}")
        for i in range(1, 10):
            for b in range(2): e(f"v_sub_f32 v{48+2*(i&1)+b}, v{X[b][i]}, v{40+b}")
            for b in range(2): e(f"v_fmac_f32 v{42+b}, v{48+2*(i&1)+b}, v{48+2*(i&1)+b}")
        allreduce([42, 43], "v_add_f32", [46, 47], [0, 1, 2, "m", 4, 5])
        for b in range(2): e(f"v_mul_f32 v{42+b}, s{sT0}, v{42+b}")
        e("v_cvt_pk_bf16_f32 v46, v40, v41")
        e("v_cvt_pk_bf16_f32 v47, v42, v43")
        e("v_lshlrev_b32 v40, 16, v46"); e("v_and_b32 v41, 0xffff0000, v46")
        e("v_lshlrev_b32 v42, 16, v47"); e("v_and_b32 v43, 0xffff0000, v47")
        e("v_add_f32 v42, 0x3727c5ac, v42"); e("v_add_f32 v43, 0x3727c5ac, v43")
        e("v_cvt_pk_bf16_f32 v46, v42, v43")
        e("v_lshlrev_b32 v42, 16, v46"); e("v_and_b32 v43, 0xffff0000, v46")
        e("v_sqrt_f32 v42, v42"); e("v_sqrt_f32 v43, v43")
        e("v_cvt_pk_bf16_f32 v46, v42, v43")
        e("v_lshlrev_b32 v42, 16, v46"); e("v_and_b32 v43, 0xffff0000, v46")
        e("v_rcp_f32 v42, v42"); e("v_rcp_f32 v43, v43")
        e(f"v_mul_u32_u24 v5, 20, v{vLANE}")
        for i in range(5):
            for b in range(2):
                x0, x1 = X[b][2*i], X[b][2*i+1]
                e(f"v_sub_f32 v{x0}, v{x0}, v{40+b}"); e(f"v_sub_f32 v{x1}, v{x1}, v{40+b}")
            for b in range(2):
                x0, x1 = X[b][2*i], X[b][2*i+1]
                e(f"v_cvt_pk_bf16_f32 v{46+b}, v{x0}, v{x1}")
            for b in range(2):
                x0, x1 = X[b][2*i], X[b][2*i+1]
                e(f"v_lshlrev_b32 v{x0}, 16, v{46+b}"); e(f"v_and_b32 v{x1}, 0xffff0000, v{46+b}")
            for b in range(2):
                x0, x1 = X[b][2*i], X[b][2*i+1]
                e(f"v_mul_f32 v{x0}, v{x0}, v{42+b}"); e(f"v_mul_f32 v{x1}, v{x1}, v{42+b}")
            for b in range(2):
                x0, x1 = X[b][2*i], X[b][2*i+1]
                e(f"v_cvt_pk_bf16_f32 v{x0}, v{x0}, v{x1}")
            for b in range(2):
                e(f"ds_write_b32 v5, v{X[b][2*i]} offset:{XN + 1280*b + 4*i}")

    def xp_read(nrows, base_sgpr=None):
        e(f"v_lshrrev_b32 v6, 3, v{vLANE}")
        e(f"v_mul_u32_u24 v6, {nrows*8}, v6")
        e(f"s_mul_i32 s{sT0}, s{sWAVE}, {nrows*2}")
        if base_sgpr is not None: e(f"s_add_u32 s{sT0}, s{sT0}, s{base_sgpr}")
        e(f"v_add_u32 v6, s{sT0}, v6")
        e("s_waitcnt lgkmcnt(0)")
        n = nrows // 2
        for b in range(2):
            for p in range(n):
                e(f"ds_read_b32 v{XP+10*b+p}, v6 offset:{XN + 1280*b + 4*p}")

    def xloads():
        e(f"v_mul_u32_u24 v4, 20, v{vLANE}")
        e(f"buffer_load_dwordx4 v[8:11], v4, {srd(sX)}, 0 offen")
        e(f"buffer_load_dword v12, v4, {srd(sX)}, 0 offen offset:16")
        e(f"buffer_load_dwordx4 v[14:17], v4, {srd(sX)}, 0 offen offset:1280")
        e(f"buffer_load_dword v18, v4, {srd(sX)}, 0 offen offset:1296")

    def unit_addr(RS, nrows, vdst):
        e(f"v_lshrrev_b32 v6, 3, v{vLANE}")
        e(f"v_mul_u32_u24 v6, {nrows*4}, v6")
        e(f"s_mul_i32 s{sT0}, s{sWAVE}, {nrows}")
        e(f"v_add_u32 v6, s{sT0}, v6")
        e(f"s_mov_b32 s{sT0}, {RS}")
        e(f"v_mul_lo_u32 v6, v6, s{sT0}")
        e(f"v_and_b32 v7, 7, v{vLANE}")
        e(f"v_lshl_add_u32 v{vdst}, v7, 4, v6")

    def sel_ops(src, odd, d):
        for b in range(2):
            if not odd:
                e(f"v_and_b32 v{d+2*b}, 0xffff, v{src[b]}")
                e(f"v_lshlrev_b32 v{d+2*b+1}, 16, v{src[b]}")
            else:
                e(f"v_lshrrev_b32 v{d+2*b}, 16, v{src[b]}")
                e(f"v_and_b32 v{d+2*b+1}, 0xffff0000, v{src[b]}")

    def mac16(W, A, sel):
        for dd in range(4):
            for b in range(2):
                e(f"v_dot2c_f32_bf16 v{A+8*b+2*dd}, v{W+dd}, v{sel+2*b}")
                e(f"v_dot2c_f32_bf16 v{A+8*b+2*dd+1}, v{W+dd}, v{sel+2*b+1}")

    def unit_reduce(A, ldsbase):
        swapred([(A+i, A+8+i) for i in range(8)], 5)
        swapred([(A+i, A+4+i) for i in range(4)], 4)
        allreduce([A, A+1, A+2, A+3], "v_add_f32", None, [3])
        e(f"v_lshrrev_b32 v6, 5, v{vLANE}"); e("v_lshlrev_b32 v6, 8, v6")
        e(f"v_and_b32 v7, 7, v{vLANE}"); e("v_lshl_add_u32 v6, v7, 5, v6")
        e(f"v_bfe_u32 v7, v{vLANE}, 4, 1"); e("v_lshl_add_u32 v6, v7, 4, v6")
        e(f"s_lshl_b32 s{sT0}, s{sWAVE}, 9")
        e(f"v_add_u32 v6, s{sT0}, v6")
        e(f"ds_write_b128 v6, v[{A}:{A+3}] offset:{ldsbase}")

    def kv_loads(slot, t):
        e(f"s_lshr_b32 s{sT0}, s{t}, 9"); e(f"s_mul_i32 s{sT0}, s{sT0}, 50331648")
        e(f"s_and_b32 s{sT1}, s{t}, 511"); e(f"s_mul_i32 s{sT1}, s{sT1}, 3072")
        e(f"s_add_u32 s{sT0}, s{sT0}, s{sT1}")
        e(f"s_cmp_ge_u32 s{t}, 1024"); e(f"s_cselect_b32 s{sT0}, 0xf0000000, s{sT0}")
        e(f"v_add_u32 v{vOFF}, s{sT0}, v{vKV}")
        b = RING + 24 * slot
        for s in range(3): e(f"buffer_load_dwordx4 v[{b+4*s}:{b+4*s+3}], v{vOFF}, {srd(sK)}, 0 offen offset:{128*s}{nt}")
        for s in range(3): e(f"buffer_load_dwordx4 v[{b+12+4*s}:{b+12+4*s+3}], v{vOFF}, {srd(sV)}, 0 offen offset:{128*s}{nt}")

    hdr = open("recurrent_scan__mha_block_cached__geglu_ffn__decode.s.ref").read().split("\n")
    out = []
    for l in hdr:
        if not l.startswith(";"): break
        if "@launch" in l or "Override" in l or "grid=ceil" in l: continue
        out.append(l)
    out.append(f"; @launch grid=({NWG},1,1) block=(256,1,1) lds={LDS_BYTES}")
    out += ['.amdgcn_target "amdgcn-amd-amdhsa--gfx950"', ".text", f".globl {KNAME}", ".p2align 8", f".type {KNAME},@function", f"{KNAME}:"]

    e(f"s_cmp_ge_u32 s2, {NWG}"); e("s_cbranch_scc1 L_end")
    stamp()
    e("s_load_dwordx8 s[4:11], s[0:1], 0")
    e("s_load_dwordx2 s[12:13], s[0:1], 32")
    e("s_load_dwordx4 s[24:27], s[0:1], 80")
    e("s_load_dwordx4 s[16:19], s[0:1], 48")
    e("s_load_dwordx4 s[20:23], s[0:1], 64")
    e(f"v_and_b32 v{vLANE}, 63, v0")
    e("v_lshrrev_b32 v2, 6, v0")
    e(f"v_readfirstlane_b32 s{sWAVE}, v2")
    e(f"s_and_b32 s{sR}, s2, 7")
    e(f"s_lshr_b32 s{sH}, s2, 3")
    e(f"s_lshl_b32 s{sT1}, s{sR}, 2"); e(f"s_add_u32 s{sH}, s{sH}, s{sT1}"); e(f"s_and_b32 s{sH}, s{sH}, 31")
    e(f"s_lshr_b32 s{sT1}, s{sH}, 2"); e(f"s_sub_u32 s{sR}, s{sR}, s{sT1}"); e(f"s_add_u32 s{sR}, s{sR}, 7"); e(f"s_and_b32 s{sR}, s{sR}, 7")
    e(f"s_cmp_ge_u32 s{sR}, 3"); e("s_cselect_b32 s15, 1, 0") if False else None
    e(f"s_mov_b32 s{sX+2}, 2560"); e(f"s_mov_b32 s{sX+3}, 0x20000")
    e(f"s_mov_b32 s{sWS+2}, {WS_REC}"); e(f"s_mov_b32 s{sWS+3}, 0x20000")
    e(f"s_mov_b32 s{sOUT+2}, 2560"); e(f"s_mov_b32 s{sOUT+3}, 0x20000")
    e(f"v_mul_u32_u24 v4, 20, v{vLANE}")
    e("s_waitcnt lgkmcnt(0)")
    stamp(2)
    e(f"s_mov_b32 s{sX}, s4"); e(f"s_mov_b32 s{sX+1}, s5")
    e(f"s_load_dword s{sE}, s[26:27], 0")
    e(f"s_mov_b32 s{sWS}, s26"); e(f"s_mov_b32 s{sWS+1}, s27")
    e(f"s_mov_b32 s{sOUT}, s22"); e(f"s_mov_b32 s{sOUT+1}, s23")
    e(f"s_cmp_ge_u32 s2, 256"); e("s_cbranch_scc1 L_ffn")

    e(f"s_cmp_ge_u32 s{sR}, 6"); e("s_cbranch_scc1 L_setup")
    xloads()
    e(f"s_cmp_ge_u32 s{sR}, 3"); e("s_cselect_b32 s15, 1, 0")
    e(f"s_mul_i32 s14, s15, 3"); e(f"s_sub_u32 s14, s{sR}, s14")
    e(f"s_mul_i32 s{sT0}, s{sH}, 384"); e(f"s_lshl_b32 s{sT1}, s14, 7"); e(f"s_add_u32 s{sT0}, s{sT0}, s{sT1}")
    e(f"s_mul_i32 s{sT1}, s15, {320*12288}"); e(f"s_add_u32 s{sT0}, s{sT0}, s{sT1}")
    e(f"s_add_u32 s{sAUX}, s10, s{sT0}"); e(f"s_addc_u32 s{sAUX+1}, s11, 0")
    e(f"s_mov_b32 s{sAUX+2}, {319*12288+128}"); e(f"s_mov_b32 s{sAUX+3}, 0x20000")
    unit_addr(12288, 10, 4)
    e(f"s_mov_b32 s{sT1}, 0")
    for i in range(10):
        e(f"buffer_load_dwordx4 v[{WQ+4*i}:{WQ+4*i+3}], v4, {srd(sAUX)}, s{sT1} offen{nt}")
        if i < 9: e(f"s_add_u32 s{sT1}, s{sT1}, 12288")
    a.label("L_setup")
    e(f"s_mul_i32 s{sT1}, s{sH}, 1572864")
    e(f"s_add_u32 s{sK}, s6, s{sT1}"); e(f"s_addc_u32 s{sK+1}, s7, 0"); e(f"s_mov_b32 s{sK+3}, 0x20000")
    e(f"s_add_u32 s{sV}, s8, s{sT1}"); e(f"s_addc_u32 s{sV+1}, s9, 0"); e(f"s_mov_b32 s{sV+3}, 0x20000")
    e(f"s_cmp_eq_u32 s{sWAVE}, 0")
    e(f"s_cselect_b32 s{sK+2}, 0, {KVREC}"); e(f"s_cselect_b32 s{sV+2}, 0, {KVREC}")
    e(f"s_lshl_b32 s{sT1}, s{sH}, 8"); e(f"s_add_u32 s{sT1}, s{sT1}, {CNT}")
    e(f"s_add_u32 s{sCTR}, s26, s{sT1}"); e(f"s_addc_u32 s{sCTR+1}, s27, 0")
    e(f"v_lshrrev_b32 v6, 3, v{vLANE}"); e(f"v_mul_u32_u24 v{vKV}, 384, v6")
    e(f"v_and_b32 v7, 7, v{vLANE}"); e(f"v_lshl_add_u32 v{vKV}, v7, 4, v{vKV}")
    e(f"s_lshl_b32 s{sT0}, s{sR}, 2"); e(f"s_add_u32 s{sT0}, s{sT0}, s{sWAVE}"); e(f"s_mul_i32 s{sT0}, s{sT0}, {NS}")
    for d in range(NS): e(f"s_add_u32 s{sTILE+d}, s{sT0}, {d}")
    e(f"s_or_b32 s{sT0}, s{sR}, s{sWAVE}"); e(f"s_cmp_lg_u32 s{sT0}, 0"); e("s_cbranch_scc1 L_noinit")
    e(f"s_mov_b32 s{sN}, {32*NS}")
    e(f"s_atomic_swap s{sN}, s[{sCTR}:{sCTR+1}], 0 glc")
    a.label("L_noinit")
    e(f"s_cmp_ge_u32 s{sR}, 6"); e("s_cbranch_scc1 L_nowq")
    stamp(2)
    e("s_waitcnt vmcnt(10)")
    stamp(2)
    layernorm()
    e(f"s_mul_i32 s{sT1}, s15, 640")
    xp_read(10, sT1)
    for d in range(EARLY): kv_loads(d, sTILE + d)
    for i in range(16): e(f"v_mov_b32 v{20+i}, 0")
    e("s_waitcnt lgkmcnt(0)")
    stamp(2)
    for i in range(10):
        e(f"s_waitcnt vmcnt({6*EARLY + 9 - i})")
        sel_ops([XP + (i >> 1), XP + 10 + (i >> 1)], i & 1, 52)
        mac16(WQ + 4*i, 20, 52)
    stamp(2)
    unit_reduce(20, QP)
    e("s_waitcnt lgkmcnt(0)")
    e("s_barrier")
    stamp(2)
    e(f"s_cmp_lg_u32 s{sWAVE}, 0"); e("s_cbranch_scc1 L_kvrest")
    e(f"v_lshlrev_b32 v6, 3, v{vLANE}")
    for w in range(4): e(f"ds_read_b64 v[{20+2*w}:{21+2*w}], v6 offset:{QP + 512*w}")
    mktag()
    e(f"v_lshrrev_b32 v6, 5, v{vLANE}"); e("v_mul_u32_u24 v6, 3072, v6")
    e(f"v_and_b32 v7, 31, v{vLANE}"); e("v_lshl_add_u32 v6, v7, 5, v6")
    e(f"s_lshl_b32 s{sT0}, s{sH}, 13"); e(f"s_lshl_b32 s{sT1}, s14, 10"); e(f"s_add_u32 s{sT0}, s{sT0}, s{sT1}")
    e(f"s_lshl_b32 s{sT1}, s15, 4"); e(f"s_add_u32 s{sT0}, s{sT0}, s{sT1}")
    e(f"s_add_u32 s{sT0}, s{sT0}, {QBOX}")
    e("s_waitcnt vmcnt(0) lgkmcnt(0)")
    e("v_add_f32 v20, v20, v22"); e("v_add_f32 v21, v21, v23"); e("v_add_f32 v24, v24, v26"); e("v_add_f32 v25, v25, v27")
    e("v_add_f32 v40, v20, v24"); e("v_add_f32 v42, v21, v25")
    e(f"v_mov_b32 v41, s{sTAG}"); e(f"v_mov_b32 v43, s{sTAG}")
    e(f"buffer_store_dwordx4 v[40:43], v6, {srd(sWS)}, s{sT0} offen {SCS}")
    e("s_branch L_qwait")
    a.label("L_nowq")
    e(f"s_cmp_eq_u32 s{sWAVE}, 0"); e("s_cbranch_scc1 L_qwait")
    for d in range(EARLY): kv_loads(d, sTILE + d)
    a.label("L_kvrest")
    for d in range(EARLY, NS):
        if STG: e(f"s_waitcnt vmcnt({6*(STG-1)})")
        kv_loads(d, sTILE + d)
    a.label("L_qwait")
    stamp(2)
    e("s_waitcnt lgkmcnt(0)")
    mktag()
    e(f"s_cmp_lg_u32 s{sWAVE}, 0"); e("s_cbranch_scc1 L_qbar")
    e("s_setprio 2")
    e(f"s_lshl_b32 s{sT0}, s{sH}, 13"); e(f"s_add_u32 s{sT0}, s{sT0}, {QBOX}")
    e(f"s_add_u32 s{sT1}, s{sT0}, 3072")
    e(f"v_lshlrev_b32 v6, 5, v{vLANE}")
    e(f"v_and_b32 v7, 31, v{vLANE}"); e("v_lshlrev_b32 v7, 5, v7"); e("v_add_u32 v7, 2048, v7")
    loads = []
    for b, so in ((0, sT0), (1, sT1)):
        base = 60 + 16 * b
        loads.append(f"buffer_load_dwordx4 v[{base}:{base+3}], v6, {srd(sWS)}, s{so} offen {SCL}")
        loads.append(f"buffer_load_dwordx4 v[{base+4}:{base+7}], v6, {srd(sWS)}, s{so} offen offset:16 {SCL}")
        loads.append(f"buffer_load_dwordx4 v[{base+8}:{base+11}], v7, {srd(sWS)}, s{so} offen {SCL}")
        loads.append(f"buffer_load_dwordx4 v[{base+12}:{base+15}], v7, {srd(sWS)}, s{so} offen offset:16 {SCL}")
    lane_poll("L_pq", loads, [61 + 2*i for i in range(16)], 52)
    e(f"v_lshlrev_b32 v6, 2, v{vLANE}")
    e(f"v_and_b32 v7, 31, v{vLANE}"); e("v_lshlrev_b32 v7, 2, v7")
    for b in range(2):
        base = 60 + 16 * b
        e(f"v_add_f32 v{base}, v{base}, v{base+4}"); e(f"v_add_f32 v{base+2}, v{base+2}, v{base+6}")
        e(f"v_add_f32 v{base+8}, v{base+8}, v{base+12}"); e(f"v_add_f32 v{base+10}, v{base+10}, v{base+14}")
        e(f"v_cvt_pk_bf16_f32 v{base}, v{base}, v{base+2}"); e(f"v_cvt_pk_bf16_f32 v{base+8}, v{base+8}, v{base+10}")
        e(f"ds_write_b32 v6, v{base} offset:{Q + 384*b}")
        e(f"ds_write_b32 v7, v{base+8} offset:{Q + 384*b + 256}")
    e("s_waitcnt lgkmcnt(0)")
    e("s_setprio 0")
    e(f"s_mov_b32 s{sK+2}, {KVREC}"); e(f"s_mov_b32 s{sV+2}, {KVREC}")
    a.label("L_qbar")
    e("s_barrier")
    stamp()
    e(f"s_mov_b32 s{sN}, {1 if CH1 else DL}")
    e(f"v_and_b32 v7, 7, v{vLANE}"); e("v_lshlrev_b32 v6, 4, v7")
    for s in range(3): e(f"ds_read_b128 v[{vQ0+4*s}:{vQ0+4*s+3}], v6 offset:{Q + 128*s}")
    for s in range(3): e(f"ds_read_b128 v[{vQ1+4*s}:{vQ1+4*s+3}], v6 offset:{Q + 384 + 128*s}")
    e(f"s_cmp_lg_u32 s{sWAVE}, 0"); e("s_cbranch_scc1 L_w0kv")
    for d in range(NS): kv_loads(d, sTILE + d)
    a.label("L_w0kv")
    e(f"s_cmp_lt_u32 s{sR}, 3"); e("s_cbranch_scc1 L_nowo")
    e(f"s_mul_i32 s{sT0}, s{sH}, {192*1280}"); e(f"s_sub_u32 s{sT1}, s{sR}, 3"); e(f"s_lshl_b32 s{sT1}, s{sT1}, 8")
    e(f"s_add_u32 s{sT0}, s{sT0}, s{sT1}")
    e(f"s_add_u32 s{sAUX2}, s12, s{sT0}"); e(f"s_addc_u32 s{sAUX2+1}, s13, 0")
    e(f"s_mov_b32 s{sAUX2+2}, {191*1280+256}"); e(f"s_mov_b32 s{sAUX2+3}, 0x20000")
    e(f"v_lshrrev_b32 v6, 4, v{vLANE}"); e("v_mul_u32_u24 v6, 12, v6")
    e(f"s_mul_i32 s{sT0}, s{sWAVE}, 48"); e(f"v_add_u32 v6, s{sT0}, v6")
    e("v_mul_u32_u24 v6, 1280, v6")
    e(f"v_and_b32 v7, 15, v{vLANE}"); e("v_lshl_add_u32 v6, v7, 4, v6")
    if not WOLATE_DEFAULT:
        pass
    e(f"s_mov_b32 s{sT1}, 0")
    e(f"s_mul_i32 s{sT0}, s{sWAVE}, 12288"); e(f"s_add_u32 s{sT0}, s{sT0}, {WOL}")
    for i in range(12):
        e(f"s_mov_b32 m0, s{sT0}"); e("s_nop 0")
        e(f"buffer_load_dwordx4 v6, {srd(sAUX2)}, s{sT1} offen{nt} lds")
        if i < 11: e(f"s_add_u32 s{sT1}, s{sT1}, 1280"); e(f"s_add_u32 s{sT0}, s{sT0}, 1024")
    a.label("L_nowo")
    for i in range(24): e(f"v_mov_b32 v{vACC0+i}, 0"); e(f"v_mov_b32 v{vACC1+i}, 0")
    e(f"v_mov_b32 v{vM0}, 0xff000000"); e(f"v_mov_b32 v{vL0}, 0"); e(f"v_mov_b32 v{vM1}, 0xff000000"); e(f"v_mov_b32 v{vL1}, 0")
    e("s_mov_b32 s14, 0x3d93cd3a"); e("s_mov_b32 s15, 0x3fb8aa3b")
    e("s_waitcnt lgkmcnt(0)")
    e(f"s_atomic_add s{sN}, s[{sCTR}:{sCTR+1}], 0 glc")

    def tile_compute(slot, q, acc, m, l, waitV):
        b = RING + 24 * slot
        e(f"v_mov_b32 v46, 0"); e("v_mov_b32 v47, 0")
        for i in range(12): e(f"v_dot2c_f32_bf16 v{46+(i&1)}, v{b+i}, v{q+i}")
        e("v_add_f32 v46, v46, v47")
        allreduce([46], "v_add_f32", None, [0, 1, 2])
        e("v_cvt_pk_bf16_f32 v46, v46, v46"); e("v_and_b32 v46, 0xffff0000, v46")
        e("v_mul_f32 v46, s14, v46")
        e("v_cvt_pk_bf16_f32 v46, v46, v46"); e("v_and_b32 v46, 0xffff0000, v46")
        e("v_mul_f32 v46, s15, v46")
        e(f"v_max_f32 v47, v{m}, v46")
        e(f"v_sub_f32 v48, v{m}, v47"); e("v_sub_f32 v49, v46, v47")
        e("v_exp_f32 v48, v48"); e("v_exp_f32 v49, v49")
        e(f"v_mov_b32 v{m}, v47")
        e(f"v_fma_f32 v{l}, v{l}, v48, v49")
        e("v_cvt_pk_bf16_f32 v50, v49, 0"); e("v_lshlrev_b32 v51, 16, v50")
        for i in range(12):
            e(f"v_pk_mul_f32 v[{acc+2*i}:{acc+2*i+1}], v[{acc+2*i}:{acc+2*i+1}], v[48:49] op_sel_hi:[1,0]")
        e(f"s_waitcnt vmcnt({waitV})")
        for i in range(12):
            e(f"v_dot2c_f32_bf16 v{acc+2*i}, v{b+12+i}, v50")
            e(f"v_dot2c_f32_bf16 v{acc+2*i+1}, v{b+12+i}, v51")
    def refill(d):
        if STATIC:
            if first[0]:
                e(f"s_lshl_b32 s{sT0}, s{sR}, 2"); e(f"s_add_u32 s{sT0}, s{sT0}, s{sWAVE}"); e(f"s_mul_i32 s{sT0}, s{sT0}, {DL}")
                e(f"s_add_u32 s{sTILE+d}, s{sT0}, {32*NS + d}")
            else:
                e(f"s_add_u32 s{sTILE+d}, s{sTILE+d}, {32*DL}")
        elif CH1:
            e("s_waitcnt lgkmcnt(0)")
            e(f"s_mov_b32 s{sTILE+d}, s{sN}")
            e(f"s_mov_b32 s{sN}, 1")
            e(f"s_atomic_add s{sN}, s[{sCTR}:{sCTR+1}], 0 glc")
        elif d == 0:
            e("s_waitcnt lgkmcnt(0)")
            e(f"s_mov_b32 s{sTILE}, s{sN}")
            e(f"s_add_u32 s{sNEXT}, s{sN}, 1")
            e(f"s_mov_b32 s{sN}, {DL}")
            e(f"s_atomic_add s{sN}, s[{sCTR}:{sCTR+1}], 0 glc")
        else:
            e(f"s_mov_b32 s{sTILE+d}, s{sNEXT}")
            if d < DL - 1: e(f"s_add_u32 s{sNEXT}, s{sNEXT}, 1")
        kv_loads(d, sTILE + d)
    first = [True]
    order = list(range(NS))
    for d in range(NS):
        younger = len(order) - 1 - order.index(d)
        e(f"s_waitcnt vmcnt({6*younger+3})")
        tile_compute(d, vQ0, vACC0, vM0, vL0, 6*younger)
        order.remove(d)
        if d < DL:
            refill(d); order.append(d)
    first[0] = False
    a.label("L_loop")
    for d in range(DL):
        e(f"s_cmp_ge_u32 s{sTILE+d}, 1024"); e("s_cbranch_scc1 L_loopend")
        e(f"s_waitcnt vmcnt({6*(DL-1)+3})")
        e(f"s_cmp_ge_u32 s{sTILE+d}, 512"); e(f"s_cbranch_scc1 L_b1_{d}")
        tile_compute(d, vQ0, vACC0, vM0, vL0, 6*(DL-1))
        e(f"s_branch L_join_{d}")
        a.label(f"L_b1_{d}")
        tile_compute(d, vQ1, vACC1, vM1, vL1, 6*(DL-1))
        a.label(f"L_join_{d}")
        refill(d)
    e("s_branch L_loop")
    a.label("L_loopend")
    e("s_waitcnt lgkmcnt(0)")
    stamp()
    e(f"v_mov_b32 v46, v{vM0}"); e(f"v_mov_b32 v50, v{vM1}")
    allreduce([46, 50], "v_max_f32", [47, 51], [3, 4, 5])
    e(f"v_sub_f32 v48, v{vM0}, v46"); e(f"v_sub_f32 v52, v{vM1}, v50")
    e("v_exp_f32 v48, v48"); e("v_exp_f32 v52, v52")
    e(f"v_mul_f32 v47, v{vL0}, v48"); e(f"v_mul_f32 v51, v{vL1}, v52")
    for acc, f in ((vACC0, 48), (vACC1, 52)):
        for i in range(12):
            e(f"v_pk_mul_f32 v[{acc+2*i}:{acc+2*i+1}], v[{acc+2*i}:{acc+2*i+1}], v[{f}:{f+1}] op_sel_hi:[1,0]")
    allreduce([47, 51], "v_add_f32", [49, 53], [3, 4, 5])
    swapred([(acc+8*s+i, acc+8*s+4+i) for acc in (vACC0, vACC1) for s in range(3) for i in range(4)], 5)
    swapred([(acc+8*s+i, acc+8*s+2+i) for acc in (vACC0, vACC1) for s in range(3) for i in range(2)], 4)
    allreduce([acc+8*s+i for acc in (vACC0, vACC1) for s in range(3) for i in range(2)], "v_add_f32", None, [3])
    e(f"v_and_b32 v6, 7, v{vLANE}"); e("v_lshlrev_b32 v6, 5, v6")
    e(f"v_lshrrev_b32 v7, 5, v{vLANE}"); e("v_lshl_add_u32 v6, v7, 4, v6")
    e(f"v_bfe_u32 v7, v{vLANE}, 4, 1"); e("v_lshl_add_u32 v6, v7, 3, v6")
    e(f"s_mul_i32 s{sT0}, s{sWAVE}, 768"); e(f"v_add_u32 v6, s{sT0}, v6")
    for c, acc in enumerate((vACC0, vACC1)):
        for s in range(3): e(f"ds_write_b64 v6, v[{acc+8*s}:{acc+8*s+1}] offset:{PART + 3072*c + 256*s}")
    e(f"s_lshl_b32 s{sT0}, s{sWAVE}, 3"); e(f"v_mov_b32 v7, s{sT0}")
    e(f"ds_write_b64 v7, v[46:47] offset:{STAT}")
    e(f"ds_write_b64 v7, v[50:51] offset:{STAT+32}")
    e("s_waitcnt lgkmcnt(0)")
    e("s_barrier")
    e("v_and_b32 v5, 127, v0"); e("v_lshrrev_b32 v4, 7, v0")
    e("v_cmp_gt_u32 vcc, 96, v5"); e("s_and_saveexec_b64 s[16:17], vcc"); e("s_cbranch_execz L_pub_done")
    e("v_mul_u32_u24 v6, 3072, v4"); e("v_lshl_add_u32 v6, v5, 3, v6")
    e("v_lshlrev_b32 v7, 5, v4")
    for w in range(4): e(f"ds_read_b64 v[{20+2*w}:{21+2*w}], v6 offset:{PART + 768*w}")
    e(f"ds_read_b128 v[28:31], v7 offset:{STAT}"); e(f"ds_read_b128 v[32:35], v7 offset:{STAT+16}")
    e("v_lshlrev_b32 v6, 11, v4"); e("v_lshl_add_u32 v6, v5, 4, v6")
    e(f"s_lshl_b32 s{sT0}, s{sH}, 3"); e(f"s_add_u32 s{sT0}, s{sT0}, s{sR}"); e(f"s_lshl_b32 s{sT0}, s{sT0}, 12"); e(f"s_add_u32 s{sT0}, s{sT0}, {OBOX}")
    e("v_and_b32 v5, 1, v5"); e("v_cmp_eq_u32 vcc, 1, v5")
    e(f"v_mov_b32 v43, s{sTAG}")
    e("s_waitcnt lgkmcnt(0)")
    e("v_max_f32 v36, v28, v30"); e("v_max3_f32 v36, v36, v32, v34")
    for w in range(4): e(f"v_sub_f32 v{28+2*w}, v{28+2*w}, v36")
    for w in range(4): e(f"v_exp_f32 v{28+2*w}, v{28+2*w}")
    e("v_mul_f32 v40, v20, v28"); e("v_mul_f32 v41, v21, v28"); e("v_mul_f32 v37, v29, v28")
    for w in range(1, 4):
        e(f"v_fmac_f32 v40, v{20+2*w}, v{28+2*w}"); e(f"v_fmac_f32 v41, v{21+2*w}, v{28+2*w}"); e(f"v_fmac_f32 v37, v{29+2*w}, v{28+2*w}")
    e("v_cndmask_b32 v42, v36, v37, vcc")
    e(f"buffer_store_dwordx4 v[40:43], v6, {srd(sWS)}, s{sT0} offen {SCS}")
    a.label("L_pub_done")
    e("s_mov_b64 exec, s[16:17]")
    stamp()
    e(f"s_cmp_lt_u32 s{sR}, 3"); e("s_cbranch_scc1 L_final")
    e("s_waitcnt vmcnt(0)")
    e(f"v_lshlrev_b32 v6, 4, v{vLANE}"); e(f"s_mul_i32 s{sT0}, s{sWAVE}, 12288"); e(f"v_add_u32 v6, s{sT0}, v6")
    for i in range(12): e(f"ds_read_b128 v[{100+4*i}:{103+4*i}], v6 offset:{WOL + 1024*i}")
    e(f"s_cmp_eq_u32 s{sWAVE}, 3"); e("s_cbranch_scc1 L_wo_bar")
    e("v_cmp_le_u32 vcc, 96, v0")
    e("v_cndmask_b32 v7, 0, 1, vcc")
    e("v_mul_u32_u24 v5, 96, v7"); e("v_sub_u32 v5, v0, v5")
    e("v_lshlrev_b32 v6, 11, v7")
    e("v_lshl_add_u32 v6, v5, 4, v6")
    e(f"s_lshl_b32 s{sT0}, s{sH}, 15"); e(f"s_add_u32 s{sT0}, s{sT0}, {OBOX}")
    for p in range(8): e(f"s_mov_b64 s[{4+2*p}:{5+2*p}], -1")
    e(f"s_mov_b32 s{sCNT}, {SPIN}")
    a.label("L_p1")
    e(f"s_mov_b32 s{sT1}, s{sT0}")
    for p in range(8):
        e(f"s_mov_b64 exec, s[{4+2*p}:{5+2*p}]"); e(f"s_cbranch_execz L_p1_s{p}")
        e(f"buffer_load_dwordx4 v[{60+4*p}:{63+4*p}], v6, {srd(sWS)}, s{sT1} offen {SCL}")
        a.label(f"L_p1_s{p}")
        if p < 7: e(f"s_add_u32 s{sT1}, s{sT1}, 4096")
    e("s_waitcnt vmcnt(0)")
    for p in range(8):
        e(f"s_mov_b64 exec, s[{4+2*p}:{5+2*p}]"); e(f"s_cbranch_execz L_p1_c{p}")
        e(f"v_cmp_ne_u32 s[{4+2*p}:{5+2*p}], s{sTAG}, v{63+4*p}")
        a.label(f"L_p1_c{p}")
    e("s_mov_b64 exec, -1")
    e("s_nop 1")
    e("s_or_b64 s[20:21], s[4:5], s[6:7]")
    for p in range(2, 8): e(f"s_or_b64 s[20:21], s[20:21], s[{4+2*p}:{5+2*p}]")
    e("s_cbranch_scc0 L_p1_done")
    e(f"s_sleep {SLP}")
    e(f"s_sub_u32 s{sCNT}, s{sCNT}, 1"); e(f"s_cmp_lg_u32 s{sCNT}, 0"); e("s_cbranch_scc1 L_p1")
    a.label("L_p1_done")
    e("v_and_b32 v8, 1, v5"); e("v_cmp_eq_u32 vcc, 1, v8")
    for p in range(8): e(f"v_mov_b32_dpp v{63+4*p}, v{62+4*p} quad_perm:[1,0,3,2] row_mask:0xf bank_mask:0xf")
    for p in range(8):
        e(f"v_cndmask_b32 v{8+p}, v{62+4*p}, v{63+4*p}, vcc")
        e(f"v_cndmask_b32 v{62+4*p}, v{63+4*p}, v{62+4*p}, vcc")
    e("v_max3_f32 v36, v8, v9, v10"); e("v_max3_f32 v36, v36, v11, v12"); e("v_max3_f32 v36, v36, v13, v14"); e("v_max_f32 v36, v36, v15")
    for p in range(8): e(f"v_sub_f32 v{8+p}, v{8+p}, v36")
    for p in range(8): e(f"v_exp_f32 v{8+p}, v{8+p}")
    e("v_mul_f32 v40, v60, v8"); e("v_mul_f32 v41, v61, v8"); e("v_mul_f32 v37, v62, v8")
    for p in range(1, 8):
        e(f"v_fmac_f32 v40, v{60+4*p}, v{8+p}"); e(f"v_fmac_f32 v41, v{61+4*p}, v{8+p}"); e(f"v_fmac_f32 v37, v{62+4*p}, v{8+p}")
    e("v_rcp_f32 v37, v37")
    e("v_mul_f32 v40, v40, v37"); e("v_mul_f32 v41, v41, v37")
    e("v_cvt_pk_bf16_f32 v40, v40, v41")
    e("v_mul_u32_u24 v6, 384, v7"); e("v_lshl_add_u32 v6, v5, 2, v6")
    e(f"ds_write_b32 v6, v40 offset:{SEL}")
    a.label("L_wo_bar")
    e("s_waitcnt lgkmcnt(0)")
    e("s_barrier")
    stamp()
    e(f"v_lshrrev_b32 v6, 4, v{vLANE}"); e("v_mul_u32_u24 v6, 24, v6")
    e(f"s_mul_i32 s{sT0}, s{sWAVE}, 96"); e(f"v_add_u32 v6, s{sT0}, v6")
    for b in range(2):
        for p in range(3): e(f"ds_read_b64 v[{60+6*b+2*p}:{61+6*b+2*p}], v6 offset:{SEL + 384*b + 8*p}")
    for i in range(16): e(f"v_mov_b32 v{20+i}, 0")
    e(f"v_lshrrev_b32 v6, 5, v{vLANE}"); e("v_lshlrev_b32 v6, 9, v6")
    e(f"v_and_b32 v7, 15, v{vLANE}"); e("v_lshl_add_u32 v6, v7, 5, v6")
    e(f"v_bfe_u32 v7, v{vLANE}, 4, 1"); e("v_lshl_add_u32 v6, v7, 4, v6")
    e(f"s_lshl_b32 s{sT0}, s{sWAVE}, 10"); e(f"v_add_u32 v6, s{sT0}, v6")
    e("s_waitcnt lgkmcnt(0)")
    for i in range(12):
        sel_ops([60 + (i >> 1), 66 + (i >> 1)], i & 1, 52)
        mac16(100 + 4*i, 20, 52)
    swapred([(20+i, 28+i) for i in range(8)], 5)
    swapred([(20+i, 24+i) for i in range(4)], 4)
    e(f"ds_write_b128 v6, v[20:23] offset:{YP}")
    e("v_lshlrev_b32 v6, 3, v0")
    e(f"s_mul_i32 s{sT0}, s{sH}, 5"); e(f"s_add_u32 s{sT0}, s{sT0}, s{sR}"); e(f"s_sub_u32 s{sT0}, s{sT0}, 3")
    e(f"s_lshl_b32 s{sT0}, s{sT0}, 11"); e(f"s_add_u32 s{sT0}, s{sT0}, {YBOX}")
    e(f"v_mov_b32 v41, s{sTAG}"); e(f"v_mov_b32 v43, s{sTAG}")
    e("s_waitcnt lgkmcnt(0)")
    e("s_barrier")
    e(f"s_cmp_ge_u32 s{sWAVE}, 2"); e("s_cbranch_scc1 L_fin")
    for w in range(4): e(f"ds_read_b64 v[{20+2*w}:{21+2*w}], v6 offset:{YP + 1024*w}")
    e("v_lshlrev_b32 v6, 4, v0")
    e("s_waitcnt lgkmcnt(0)")
    e("v_add_f32 v20, v20, v22"); e("v_add_f32 v21, v21, v23"); e("v_add_f32 v24, v24, v26"); e("v_add_f32 v25, v25, v27")
    e("v_add_f32 v40, v20, v24"); e("v_add_f32 v42, v21, v25")
    e(f"buffer_store_dwordx4 v[40:43], v6, {srd(sWS)}, s{sT0} offen {SCS}")
    e("s_branch L_fin")
    a.label("L_final")
    e(f"s_mul_i32 s14, s{sH}, 3"); e(f"s_add_u32 s14, s14, s{sR}")
    e("s_cmp_ge_u32 s14, 40"); e("s_cbranch_scc1 L_fin")
    e("s_cmp_ge_u32 s14, 20"); e("s_cselect_b32 s15, 1, 0")
    e("s_mul_i32 s16, s15, 20"); e("s_sub_u32 s16, s14, s16")
    e("s_lshr_b32 s17, s16, 2"); e("s_and_b32 s18, s16, 3")
    e("s_mul_i32 s19, s15, 640"); e("s_lshl_b32 s20, s16, 5"); e("s_add_u32 s19, s19, s20")
    e("v_add_u32 v4, s19, v0"); e("v_lshlrev_b32 v4, 1, v4")
    e(f"buffer_load_ushort v58, v4, {srd(sX)}, 0 offen")
    e("v_lshrrev_b32 v5, 3, v0")
    e("v_and_b32 v7, 7, v0")
    e("v_mul_u32_u24 v6, 10240, v5"); e("v_lshl_add_u32 v6, v7, 5, v6")
    e("s_lshl_b32 s20, s17, 11"); e("s_lshl_b32 s21, s15, 10"); e("s_add_u32 s20, s20, s21"); e("s_lshl_b32 s21, s18, 8"); e("s_add_u32 s20, s20, s21")
    e(f"s_add_u32 s20, s20, {YBOX}")
    e("s_lshl_b32 s21, s19, 3"); e(f"s_add_u32 s21, s21, {FBOX}")
    for r in (68, 70, 72, 74): e(f"v_mov_b32 v{r}, 0")
    e(f"s_cmp_eq_u32 s{sWAVE}, 3"); e("s_cbranch_scc1 L_pf_skip")
    lane_poll("L_pf", [f"buffer_load_dwordx4 v[68:71], v6, {srd(sWS)}, s21 offen {SCL}",
                       f"buffer_load_dwordx4 v[72:75], v6, {srd(sWS)}, s21 offen offset:16 {SCL}"], [69, 71, 73, 75], 52)
    a.label("L_pf_skip")
    lane_poll("L_p2", [f"buffer_load_dwordx4 v[60:63], v6, {srd(sWS)}, s20 offen {SCL}",
                       f"buffer_load_dwordx4 v[64:67], v6, {srd(sWS)}, s20 offen offset:16 {SCL}"], [61, 63, 65, 67], 52)
    swapred([(60, 68), (62, 70), (64, 72), (66, 74)], 5)
    swapred([(60, 64), (62, 66)], 4)
    allreduce([60, 62], "v_add_f32", None, [3])
    e("v_mov_b32 v61, v62")
    e(f"v_lshrrev_b32 v6, 5, v{vLANE}"); e("v_lshlrev_b32 v6, 7, v6")
    e(f"v_and_b32 v7, 7, v{vLANE}"); e("v_lshl_add_u32 v6, v7, 4, v6")
    e(f"v_bfe_u32 v7, v{vLANE}, 4, 1"); e("v_lshl_add_u32 v6, v7, 3, v6")
    e(f"s_lshl_b32 s22, s{sWAVE}, 8"); e("v_add_u32 v6, s22, v6")
    e(f"ds_write_b64 v6, v[60:61] offset:{RED}")
    e("s_waitcnt lgkmcnt(0)")
    e("s_barrier")
    e(f"s_cmp_lg_u32 s{sWAVE}, 0"); e("s_cbranch_scc1 L_fin")
    e("s_mov_b32 exec_hi, 0")
    e("v_lshlrev_b32 v6, 2, v0")
    for w in range(4):
        e(f"ds_read_b32 v{20+w}, v6 offset:{RED + 256*w}"); e(f"ds_read_b32 v{24+w}, v6 offset:{RED + 256*w + 128}")
    e("s_mov_b32 s22, 0xbfb8aa3b")
    e("v_lshlrev_b32 v58, 16, v58")
    e("s_waitcnt lgkmcnt(0)")
    e("v_add_f32 v20, v20, v21"); e("v_add_f32 v22, v22, v23"); e("v_add_f32 v24, v24, v25"); e("v_add_f32 v26, v26, v27")
    e("v_add_f32 v20, v20, v22"); e("v_add_f32 v24, v24, v26")
    e("v_cvt_pk_bf16_f32 v28, v20, v24")
    e("v_lshlrev_b32 v20, 16, v28"); e("v_and_b32 v24, 0xffff0000, v28")
    e("v_mul_f32 v25, s22, v24"); e("v_exp_f32 v25, v25"); e("v_add_f32 v25, 1.0, v25"); e("v_rcp_f32 v25, v25")
    e("v_mul_f32 v24, v24, v25")
    e("v_cvt_pk_bf16_f32 v24, v24, v24"); e("v_and_b32 v24, 0xffff0000, v24")
    e("v_mul_f32 v20, v20, v24")
    e("v_cvt_pk_bf16_f32 v20, v20, v20"); e("v_and_b32 v20, 0xffff0000, v20")
    e("v_add_f32 v20, v58, v20")
    e("v_cvt_pk_bf16_f32 v20, v20, v20")
    e(f"buffer_store_short v20, v4, {srd(sOUT)}, 0 offen")
    e("s_cmp_lg_u32 s14, 0"); e("s_cbranch_scc1 L_fin")
    e("s_mov_b64 exec, 1")
    e(f"v_mov_b32 v21, s{sTAG}"); e("v_mov_b32 v22, 0")
    e(f"buffer_store_dword v21, v22, {srd(sWS)}, 0 offen")
    e("s_branch L_fin")

    a.label("L_ffn")
    e("s_setprio 3")
    e("s_sub_u32 s57, s2, 256")
    e(f"s_lshl_b32 s{sT0}, s57, 7")
    e(f"s_add_u32 s{sAUX}, s16, s{sT0}"); e(f"s_addc_u32 s{sAUX+1}, s17, 0"); e(f"s_mov_b32 s{sAUX+2}, {639*3072+128}"); e(f"s_mov_b32 s{sAUX+3}, 0x20000")
    e(f"s_add_u32 s{sAUX2}, s18, s{sT0}"); e(f"s_addc_u32 s{sAUX2+1}, s19, 0"); e(f"s_mov_b32 s{sAUX2+2}, {639*3072+128}"); e(f"s_mov_b32 s{sAUX2+3}, 0x20000")
    e(f"s_mul_i32 s{sT0}, s57, {64*1280}")
    e(f"s_add_u32 s{sK}, s20, s{sT0}"); e(f"s_addc_u32 s{sK+1}, s21, 0"); e(f"s_mov_b32 s{sK+2}, {64*1280}"); e(f"s_mov_b32 s{sK+3}, 0x20000")
    xloads()
    unit_addr(3072, 20, 2)
    e(f"v_lshrrev_b32 v3, 4, v{vLANE}"); e("v_lshlrev_b32 v3, 2, v3")
    e(f"s_lshl_b32 s{sT0}, s{sWAVE}, 4"); e(f"v_add_u32 v3, s{sT0}, v3")
    e("v_mul_u32_u24 v3, 1280, v3")
    e(f"v_and_b32 v7, 15, v{vLANE}"); e("v_lshl_add_u32 v3, v7, 4, v3")
    def fload(n):
        if n < 20:
            e(f"s_mov_b32 s{sT1}, {3072*n}")
            e(f"buffer_load_dwordx4 v[{60+4*n}:{63+4*n}], v2, {srd(sAUX)}, s{sT1} offen{nt}")
        elif n < 40:
            i = n - 20
            e(f"s_mov_b32 s{sT1}, {3072*i}")
            e(f"buffer_load_dwordx4 v[{140+4*i}:{143+4*i}], v2, {srd(sAUX2)}, s{sT1} offen{nt}")
        elif n < 60:
            k = n - 40; i, sg = k // 5, k % 5
            e(f"s_mov_b32 s{sT1}, {1280*i}")
            e(f"buffer_load_dwordx4 v[{60+4*k}:{63+4*k}], v3, {srd(sK)}, s{sT1} offen offset:{256*sg}{nt}")
    for n in range(FLA): fload(n)
    e(f"s_waitcnt vmcnt({FLA})")
    layernorm()
    xp_read(20)
    for i in range(32): e(f"v_mov_b32 v{20+i}, 0")
    e("s_waitcnt lgkmcnt(0)")
    for n in range(40):
        issued = min(60, n + FLA)
        e(f"s_waitcnt vmcnt({issued - n - 1})")
        i = n % 20
        sel_ops([XP + (i >> 1), XP + 10 + (i >> 1)], i & 1, 52)
        mac16((60 if n < 20 else 140) + 4*i, 20 if n < 20 else 36, 52)
        if n + FLA < 60: fload(n + FLA)
    unit_reduce(20, QP)
    unit_reduce(36, UP)
    for n in range(40 + FLA, 60): fload(n)
    e("s_waitcnt lgkmcnt(0)")
    e("s_barrier")
    e(f"s_cmp_ge_u32 s{sWAVE}, 2"); e("s_cbranch_scc1 L_ffn_h")
    e("v_lshlrev_b32 v6, 2, v0")
    for w in range(4):
        e(f"ds_read_b32 v{20+w}, v6 offset:{QP + 512*w}"); e(f"ds_read_b32 v{24+w}, v6 offset:{UP + 512*w}")
    e("s_waitcnt lgkmcnt(0)")
    e("v_add_f32 v20, v20, v21"); e("v_add_f32 v22, v22, v23"); e("v_add_f32 v24, v24, v25"); e("v_add_f32 v26, v26, v27")
    e("v_add_f32 v20, v20, v22"); e("v_add_f32 v24, v24, v26")
    e("v_cvt_pk_bf16_f32 v28, v20, v24")
    e("v_lshlrev_b32 v20, 16, v28"); e("v_and_b32 v24, 0xffff0000, v28")
    e("v_mul_f32 v25, v20, v20"); e("v_mul_f32 v25, v25, v20")
    e("s_mov_b32 s22, 0x3d372713"); e("v_fma_f32 v25, v25, s22, v20")
    e("s_mov_b32 s22, 0xc0135761"); e("v_mul_f32 v25, s22, v25")
    e("v_exp_f32 v25, v25"); e("v_add_f32 v25, 1.0, v25"); e("v_rcp_f32 v25, v25")
    e("v_mul_f32 v20, v20, v25")
    e("v_cvt_pk_bf16_f32 v20, v20, v20"); e("v_and_b32 v20, 0xffff0000, v20")
    e("v_mul_f32 v20, v20, v24")
    e("v_cvt_pk_bf16_f32 v20, v20, v20")
    e("v_lshlrev_b32 v6, 1, v0")
    e(f"ds_write_b16 v6, v20 offset:{H}")
    e("s_waitcnt lgkmcnt(0)")
    a.label("L_ffn_h")
    e("s_barrier")
    e(f"v_lshrrev_b32 v6, 4, v{vLANE}"); e("v_lshlrev_b32 v6, 3, v6")
    e(f"s_lshl_b32 s{sT0}, s{sWAVE}, 5"); e(f"v_add_u32 v6, s{sT0}, v6")
    e(f"ds_read_b64 v[56:57], v6 offset:{H}"); e(f"ds_read_b64 v[58:59], v6 offset:{H+128}")
    for i in range(80): e(f"v_mov_b32 v{140+i}, 0")
    e("s_waitcnt vmcnt(0) lgkmcnt(0)")
    for i in range(4):
        sel_ops([56 + (i >> 1), 58 + (i >> 1)], i & 1, 52)
        for sg in range(5):
            mac16(60 + 20*i + 4*sg, 140 + 16*sg, 52)
    for sg in range(5):
        A = 140 + 16*sg
        swapred([(A+i, A+8+i) for i in range(8)], 5)
        swapred([(A+i, A+4+i) for i in range(4)], 4)
    e(f"v_lshrrev_b32 v6, 5, v{vLANE}"); e("v_mul_u32_u24 v6, 2560, v6")
    e(f"v_and_b32 v7, 15, v{vLANE}"); e("v_lshl_add_u32 v6, v7, 5, v6")
    e(f"v_bfe_u32 v7, v{vLANE}, 4, 1"); e("v_lshl_add_u32 v6, v7, 4, v6")
    e(f"s_mul_i32 s{sT0}, s{sWAVE}, 5120"); e(f"v_add_u32 v6, s{sT0}, v6")
    for sg in range(5): e(f"ds_write_b128 v6, v[{140+16*sg}:{143+16*sg}] offset:{DP + 512*sg}")
    e("s_waitcnt lgkmcnt(0)")
    e("s_barrier")
    mktag()
    e(f"s_mul_i32 s{sT0}, s57, 10240"); e(f"s_add_u32 s{sT0}, s{sT0}, {FBOX}")
    e(f"v_mov_b32 v41, s{sTAG}"); e(f"v_mov_b32 v43, s{sTAG}")
    for q in range(3):
        if q == 2:
            e(f"s_cmp_ge_u32 s{sWAVE}, 2"); e("s_cbranch_scc1 L_fin")
        e(f"v_add_u32 v5, {256*q}, v0"); e("v_lshlrev_b32 v6, 3, v5")
        for w in range(4): e(f"ds_read_b64 v[{20+2*w}:{21+2*w}], v6 offset:{DP + 5120*w}")
        e("s_waitcnt lgkmcnt(0)")
        e("v_add_f32 v20, v20, v22"); e("v_add_f32 v21, v21, v23"); e("v_add_f32 v24, v24, v26"); e("v_add_f32 v25, v25, v27")
        e("v_add_f32 v40, v20, v24"); e("v_add_f32 v42, v21, v25")
        e("v_lshlrev_b32 v6, 4, v5")
        e(f"buffer_store_dwordx4 v[40:43], v6, {srd(sWS)}, s{sT0} offen {SCS}")
        e("s_nop 1")

    a.label("L_fin")
    if PROF:
        stamp()
        n = prof_n[0]
        e("s_mov_b64 exec, -1")
        e(f"s_cmp_lg_u32 s{sWAVE}, 0"); e("s_cbranch_scc1 L_end")
        e("s_waitcnt lgkmcnt(0)")
        e("s_getreg_b32 s14, hwreg(HW_REG_XCC_ID)")
        e(f"s_lshl_b32 s{sT0}, s2, 7"); e(f"s_add_u32 s{sT0}, s{sT0}, {PROFO}")
        e("v_mov_b32 v6, 0")
        e("s_mov_b64 exec, 1")
        for i in range(n):
            e(f"v_mov_b32 v20, s{SP[i]}"); e(f"v_mov_b32 v21, s{SP[i]+1}")
            e(f"buffer_store_dwordx2 v[20:21], v6, {srd(sWS)}, s{sT0} offen offset:{8*i}")
            e("s_nop 1")
        e("v_mov_b32 v20, s14")
        e(f"buffer_store_dword v20, v6, {srd(sWS)}, s{sT0} offen offset:120")
    a.label("L_end")
    e("s_endpgm")
    body = fix_hazards([l for l in a.L if l is not None])
    out += body
    out += ['.section .rodata,"a"', ".p2align 6", f".amdhsa_kernel {KNAME}", "  .amdhsa_next_free_vgpr 256", "  .amdhsa_next_free_sgpr 102",
            "  .amdhsa_accum_offset 256", "  .amdhsa_group_segment_fixed_size 0", "  .amdhsa_kernarg_size 96", "  .amdhsa_user_sgpr_count 2",
            "  .amdhsa_user_sgpr_kernarg_segment_ptr 1", "  .amdhsa_system_sgpr_workgroup_id_x 1", ".end_amdhsa_kernel"]
    return "\n".join(out) + "\n"

WOLATE_DEFAULT = 1
if __name__ == "__main__":
    import json
    kw = json.loads(sys.argv[2]) if len(sys.argv) > 2 else {}
    open(sys.argv[1], "w").write(gen(**kw))

LAST = 5
```

```python
import sys
sys.path.insert(0, "gen")
from asmlib import Asm, fix_hazards

KNAME = "recurrent_scan__mha_block_cached__geglu_ffn__decode_kernel"

XN, QP, UP, Q, PART, STAT, SEL, YP, RED, H = 0, 2560, 4608, 6656, 7424, 13568, 13696, 14464, 18560, 19584
WOL = 19968
DP = WOL
LDS_BYTES = WOL + 49152
CNT, QBOX, OBOX, YBOX, FBOX, PROFO = 0x1000, 0x4000, 0x50000, 0x150000, 0x1A0000, 0x200000
WS_REC = 0x400000
NFFN = 24
FFN_LAST = 1
NWG = NFFN + 256
SPIN = 1 << 17

sK, sV, sAUX, sWS, sX, sOUT, sAUX2 = 28, 32, 36, 40, 44, 48, 52
sWAVE, sH, sR, sTAG, sE, sT0, sT1, sCNT = 56, 57, 58, 60, 61, 62, 63, 3
sTILE = 80
sN, sNEXT = 86, 87
sCTR = 88
vLANE, vKV, vOFF = 1, 3, 2
RING = 60
vQ0, vQ1 = 8, 204
vACC0, vM0, vL0 = 20, 44, 45
vACC1, vM1, vL1 = 216, 240, 241
WQ = 156
XP = 236
KVREC = 50331648 + 1572864

def srd(s): return f"s[{s}:{s+3}]"

def gen(PROF=0, NT=1, FLA=8, STG=1, SLP=1, EARLY=2, DL=2, NS=4, STATIC=0, CH1=1, SCS='sc0 sc1', SCL='sc0 sc1', DBGT=0):
    a = Asm(); e = a.e
    nt = " nt" if NT else ""
    prof_n = [0]
    SP = [64, 66, 68, 70, 72, 74, 76, 78, 90, 92, 94, 96, 98, 100]
    def stamp(level=1):
        if PROF >= level:
            i = prof_n[0]; prof_n[0] += 1
            e(f"s_memrealtime s[{SP[i]}:{SP[i]+1}]")
    def allreduce(regs, op, tmps, bits):
        for bit in bits:
            if bit in (0, 1, 2, 3, "m"):
                mod = {0: "quad_perm:[1,0,3,2]", 1: "quad_perm:[2,3,0,1]", 2: "row_half_mirror", 3: "row_ror:8", "m": "row_mirror"}[bit]
                for r in regs:
                    e(f"{op}_dpp v{r}, v{r}, v{r} {mod} row_mask:0xf bank_mask:0xf")
            else:
                sw = "v_permlane16_swap_b32" if bit == 4 else "v_permlane32_swap_b32"
                for r, t in zip(regs, tmps): e(f"v_mov_b32 v{t}, v{r}")
                for r, t in zip(regs, tmps): e(f"{sw} v{r}, v{t}")
                for r, t in zip(regs, tmps): e(f"{op} v{r}, v{r}, v{t}")
    def swapred(pairs, bit):
        sw = "v_permlane16_swap_b32" if bit == 4 else "v_permlane32_swap_b32"
        for x, y in pairs: e(f"{sw} v{x}, v{y}")
        for x, y in pairs: e(f"v_add_f32 v{x}, v{x}, v{y}")
    def mktag():
        e(f"s_mul_i32 s{sTAG}, s{sE}, 0x9E3779B1"); e(f"s_add_u32 s{sTAG}, s{sTAG}, 0x7F4A7C15")
    def lane_poll(name, loads, tagregs, tmp):
        e(f"s_mov_b32 s{sCNT}, {SPIN}")
        a.label(name)
        for l in loads: e(l)
        e("s_waitcnt vmcnt(0)")
        e(f"v_xor_b32 v{tmp}, s{sTAG}, v{tagregs[0]}")
        for t in tagregs[1:]:
            e(f"v_xor_b32 v{tmp+1}, s{sTAG}, v{t}")
            e(f"v_or_b32 v{tmp}, v{tmp}, v{tmp+1}")
        e(f"v_cmp_ne_u32 vcc, 0, v{tmp}")
        e("s_mov_b64 exec, vcc")
        e(f"s_cbranch_execz {name}_done")
        e(f"s_sleep {SLP}")
        e(f"s_sub_u32 s{sCNT}, s{sCNT}, 1")
        e(f"s_cmp_lg_u32 s{sCNT}, 0")
        e(f"s_cbranch_scc1 {name}")
        a.label(name + "_done")
        e("s_mov_b64 exec, -1")

    def layernorm():
        D_ = [[8, 9, 10, 11, 12], [14, 15, 16, 17, 18]]
        X = [[20 + i for i in range(10)], [30 + i for i in range(10)]]
        for b in range(2):
            for i in range(5):
                e(f"v_lshlrev_b32 v{X[b][2*i]}, 16, v{D_[b][i]}")
                e(f"v_and_b32 v{X[b][2*i+1]}, 0xffff0000, v{D_[b][i]}")
        for b in range(2):
            e(f"v_add_f32 v{40+b}, v{X[b][0]}, v{X[b][1]}")
        for i in range(2, 10):
            for b in range(2): e(f"v_add_f32 v{40+b}, v{40+b}, v{X[b][i]}")
        allreduce([40, 41], "v_add_f32", [46, 47], [0, 1, 2, "m", 4, 5])
        e(f"s_mov_b32 s{sT0}, 0x3acccccd")
        for b in range(2): e(f"v_mul_f32 v{40+b}, s{sT0}, v{40+b}")
        for b in range(2):
            e(f"v_sub_f32 v{48+b}, v{X[b][0]}, v{40+b}")
        for b in range(2):
            e(f"v_mul_f32 v{42+b}, v{48+b}, v{48+b}")
        for i in range(1, 10):
            for b in range(2): e(f"v_sub_f32 v{48+2*(i&1)+b}, v{X[b][i]}, v{40+b}")
            for b in range(2): e(f"v_fmac_f32 v{42+b}, v{48+2*(i&1)+b}, v{48+2*(i&1)+b}")
        allreduce([42, 43], "v_add_f32", [46, 47], [0, 1, 2, "m", 4, 5])
        for b in range(2): e(f"v_mul_f32 v{42+b}, s{sT0}, v{42+b}")
        e("v_cvt_pk_bf16_f32 v46, v40, v41")
        e("v_cvt_pk_bf16_f32 v47, v42, v43")
        e("v_lshlrev_b32 v40, 16, v46"); e("v_and_b32 v41, 0xffff0000, v46")
        e("v_lshlrev_b32 v42, 16, v47"); e("v_and_b32 v43, 0xffff0000, v47")
        e("v_add_f32 v42, 0x3727c5ac, v42"); e("v_add_f32 v43, 0x3727c5ac, v43")
        e("v_cvt_pk_bf16_f32 v46, v42, v43")
        e("v_lshlrev_b32 v42, 16, v46"); e("v_and_b32 v43, 0xffff0000, v46")
        e("v_sqrt_f32 v42, v42"); e("v_sqrt_f32 v43, v43")
        e("v_cvt_pk_bf16_f32 v46, v42, v43")
        e("v_lshlrev_b32 v42, 16, v46"); e("v_and_b32 v43, 0xffff0000, v46")
        e("v_rcp_f32 v42, v42"); e("v_rcp_f32 v43, v43")
        e(f"v_mul_u32_u24 v5, 20, v{vLANE}")
        for i in range(5):
            for b in range(2):
                x0, x1 = X[b][2*i], X[b][2*i+1]
                e(f"v_sub_f32 v{x0}, v{x0}, v{40+b}"); e(f"v_sub_f32 v{x1}, v{x1}, v{40+b}")
            for b in range(2):
                x0, x1 = X[b][2*i], X[b][2*i+1]
                e(f"v_cvt_pk_bf16_f32 v{46+b}, v{x0}, v{x1}")
            for b in range(2):
                x0, x1 = X[b][2*i], X[b][2*i+1]
                e(f"v_lshlrev_b32 v{x0}, 16, v{46+b}"); e(f"v_and_b32 v{x1}, 0xffff0000, v{46+b}")
            for b in range(2):
                x0, x1 = X[b][2*i], X[b][2*i+1]
                e(f"v_mul_f32 v{x0}, v{x0}, v{42+b}"); e(f"v_mul_f32 v{x1}, v{x1}, v{42+b}")
            for b in range(2):
                x0, x1 = X[b][2*i], X[b][2*i+1]
                e(f"v_cvt_pk_bf16_f32 v{x0}, v{x0}, v{x1}")
            for b in range(2):
                e(f"ds_write_b32 v5, v{X[b][2*i]} offset:{XN + 1280*b + 4*i}")

    def xp_read(nrows, base_sgpr=None):
        e(f"v_lshrrev_b32 v6, 3, v{vLANE}")
        e(f"v_mul_u32_u24 v6, {nrows*8}, v6")
        e(f"s_mul_i32 s{sT0}, s{sWAVE}, {nrows*2}")
        if base_sgpr is not None: e(f"s_add_u32 s{sT0}, s{sT0}, s{base_sgpr}")
        e(f"v_add_u32 v6, s{sT0}, v6")
        e("s_waitcnt lgkmcnt(0)")
        n = nrows // 2
        for b in range(2):
            for p in range(n):
                e(f"ds_read_b32 v{XP+10*b+p}, v6 offset:{XN + 1280*b + 4*p}")

    def xloads():
        e(f"v_mul_u32_u24 v4, 20, v{vLANE}")
        e(f"buffer_load_dwordx4 v[8:11], v4, {srd(sX)}, 0 offen")
        e(f"buffer_load_dword v12, v4, {srd(sX)}, 0 offen offset:16")
        e(f"buffer_load_dwordx4 v[14:17], v4, {srd(sX)}, 0 offen offset:1280")
        e(f"buffer_load_dword v18, v4, {srd(sX)}, 0 offen offset:1296")

    def unit_addr(RS, nrows, vdst):
        e(f"v_lshrrev_b32 v6, 3, v{vLANE}")
        e(f"v_mul_u32_u24 v6, {nrows*4}, v6")
        e(f"s_mul_i32 s{sT0}, s{sWAVE}, {nrows}")
        e(f"v_add_u32 v6, s{sT0}, v6")
        e(f"s_mov_b32 s{sT0}, {RS}")
        e(f"v_mul_lo_u32 v6, v6, s{sT0}")
        e(f"v_and_b32 v7, 7, v{vLANE}")
        e(f"v_lshl_add_u32 v{vdst}, v7, 4, v6")

    def sel_ops(src, odd, d):
        for b in range(2):
            if not odd:
                e(f"v_and_b32 v{d+2*b}, 0xffff, v{src[b]}")
                e(f"v_lshlrev_b32 v{d+2*b+1}, 16, v{src[b]}")
            else:
                e(f"v_lshrrev_b32 v{d+2*b}, 16, v{src[b]}")
                e(f"v_and_b32 v{d+2*b+1}, 0xffff0000, v{src[b]}")

    def mac16(W, A, sel):
        for dd in range(4):
            for b in range(2):
                e(f"v_dot2c_f32_bf16 v{A+8*b+2*dd}, v{W+dd}, v{sel+2*b}")
                e(f"v_dot2c_f32_bf16 v{A+8*b+2*dd+1}, v{W+dd}, v{sel+2*b+1}")

    def unit_reduce(A, ldsbase):
        swapred([(A+i, A+8+i) for i in range(8)], 5)
        swapred([(A+i, A+4+i) for i in range(4)], 4)
        allreduce([A, A+1, A+2, A+3], "v_add_f32", None, [3])
        e(f"v_lshrrev_b32 v6, 5, v{vLANE}"); e("v_lshlrev_b32 v6, 8, v6")
        e(f"v_and_b32 v7, 7, v{vLANE}"); e("v_lshl_add_u32 v6, v7, 5, v6")
        e(f"v_bfe_u32 v7, v{vLANE}, 4, 1"); e("v_lshl_add_u32 v6, v7, 4, v6")
        e(f"s_lshl_b32 s{sT0}, s{sWAVE}, 9")
        e(f"v_add_u32 v6, s{sT0}, v6")
        e(f"ds_write_b128 v6, v[{A}:{A+3}] offset:{ldsbase}")

    def kv_loads(slot, t):
        e(f"s_lshr_b32 s{sT0}, s{t}, 9"); e(f"s_mul_i32 s{sT0}, s{sT0}, 50331648")
        e(f"s_and_b32 s{sT1}, s{t}, 511"); e(f"s_mul_i32 s{sT1}, s{sT1}, 3072")
        e(f"s_add_u32 s{sT0}, s{sT0}, s{sT1}")
        e(f"s_cmp_ge_u32 s{t}, 1024"); e(f"s_cselect_b32 s{sT0}, 0xf0000000, s{sT0}")
        e(f"v_add_u32 v{vOFF}, s{sT0}, v{vKV}")
        b = RING + 24 * slot
        for s in range(3): e(f"buffer_load_dwordx4 v[{b+4*s}:{b+4*s+3}], v{vOFF}, {srd(sK)}, 0 offen offset:{128*s}{nt}")
        for s in range(3): e(f"buffer_load_dwordx4 v[{b+12+4*s}:{b+12+4*s+3}], v{vOFF}, {srd(sV)}, 0 offen offset:{128*s}{nt}")

    hdr = open("recurrent_scan__mha_block_cached__geglu_ffn__decode.s.ref").read().split("\n")
    out = []
    for l in hdr:
        if not l.startswith(";"): break
        if "@launch" in l or "Override" in l or "grid=ceil" in l: continue
        out.append(l)
    out.append(f"; @launch grid=({NWG},1,1) block=(256,1,1) lds={LDS_BYTES}")
    out += ['.amdgcn_target "amdgcn-amd-amdhsa--gfx950"', ".text", f".globl {KNAME}", ".p2align 8", f".type {KNAME},@function", f"{KNAME}:"]

    e(f"s_cmp_ge_u32 s2, {NWG}"); e("s_cbranch_scc1 L_end")
    stamp()
    if DBGT: e("s_memrealtime s[98:99]")
    e("s_load_dwordx8 s[4:11], s[0:1], 0")
    e("s_load_dwordx2 s[12:13], s[0:1], 32")
    e("s_load_dwordx4 s[24:27], s[0:1], 80")
    e("s_load_dwordx4 s[16:19], s[0:1], 48")
    e("s_load_dwordx4 s[20:23], s[0:1], 64")
    e(f"v_and_b32 v{vLANE}, 63, v0")
    e("v_lshrrev_b32 v2, 6, v0")
    e(f"v_readfirstlane_b32 s{sWAVE}, v2")
    e(f"s_and_b32 s{sR}, s2, 7")
    e(f"s_lshr_b32 s{sH}, s2, 3")
    e(f"s_lshl_b32 s{sT1}, s{sR}, 2"); e(f"s_add_u32 s{sH}, s{sH}, s{sT1}"); e(f"s_and_b32 s{sH}, s{sH}, 31")
    e(f"s_lshr_b32 s{sT1}, s{sH}, 2"); e(f"s_sub_u32 s{sR}, s{sR}, s{sT1}"); e(f"s_add_u32 s{sR}, s{sR}, 7"); e(f"s_and_b32 s{sR}, s{sR}, 7")
    e(f"s_cmp_ge_u32 s{sR}, 3"); e("s_cselect_b32 s15, 1, 0") if False else None
    e(f"s_mov_b32 s{sX+2}, 2560"); e(f"s_mov_b32 s{sX+3}, 0x20000")
    e(f"s_mov_b32 s{sWS+2}, {WS_REC}"); e(f"s_mov_b32 s{sWS+3}, 0x20000")
    e(f"s_mov_b32 s{sOUT+2}, 2560"); e(f"s_mov_b32 s{sOUT+3}, 0x20000")
    e(f"v_mul_u32_u24 v4, 20, v{vLANE}")
    e("s_waitcnt lgkmcnt(0)")
    stamp(2)
    e(f"s_mov_b32 s{sX}, s4"); e(f"s_mov_b32 s{sX+1}, s5")
    e(f"s_load_dword s{sE}, s[26:27], 0")
    e(f"s_mov_b32 s{sWS}, s26"); e(f"s_mov_b32 s{sWS+1}, s27")
    e(f"s_mov_b32 s{sOUT}, s22"); e(f"s_mov_b32 s{sOUT+1}, s23")
    e(f"s_cmp_ge_u32 s2, 256"); e("s_cbranch_scc1 L_ffn")

    e(f"s_cmp_ge_u32 s{sR}, 6"); e("s_cbranch_scc1 L_setup")
    xloads()
    e(f"s_cmp_ge_u32 s{sR}, 3"); e("s_cselect_b32 s15, 1, 0")
    e(f"s_mul_i32 s14, s15, 3"); e(f"s_sub_u32 s14, s{sR}, s14")
    e(f"s_mul_i32 s{sT0}, s{sH}, 384"); e(f"s_lshl_b32 s{sT1}, s14, 7"); e(f"s_add_u32 s{sT0}, s{sT0}, s{sT1}")
    e(f"s_mul_i32 s{sT1}, s15, {320*12288}"); e(f"s_add_u32 s{sT0}, s{sT0}, s{sT1}")
    e(f"s_add_u32 s{sAUX}, s10, s{sT0}"); e(f"s_addc_u32 s{sAUX+1}, s11, 0")
    e(f"s_mov_b32 s{sAUX+2}, {319*12288+128}"); e(f"s_mov_b32 s{sAUX+3}, 0x20000")
    unit_addr(12288, 10, 4)
    e(f"s_mov_b32 s{sT1}, 0")
    for i in range(10):
        e(f"buffer_load_dwordx4 v[{WQ+4*i}:{WQ+4*i+3}], v4, {srd(sAUX)}, s{sT1} offen{nt}")
        if i < 9: e(f"s_add_u32 s{sT1}, s{sT1}, 12288")
    a.label("L_setup")
    e(f"s_mul_i32 s{sT1}, s{sH}, 1572864")
    e(f"s_add_u32 s{sK}, s6, s{sT1}"); e(f"s_addc_u32 s{sK+1}, s7, 0"); e(f"s_mov_b32 s{sK+3}, 0x20000")
    e(f"s_add_u32 s{sV}, s8, s{sT1}"); e(f"s_addc_u32 s{sV+1}, s9, 0"); e(f"s_mov_b32 s{sV+3}, 0x20000")
    e(f"s_cmp_eq_u32 s{sWAVE}, 0")
    e(f"s_cselect_b32 s{sK+2}, 0, {KVREC}"); e(f"s_cselect_b32 s{sV+2}, 0, {KVREC}")
    e(f"s_lshl_b32 s{sT1}, s{sH}, 8"); e(f"s_add_u32 s{sT1}, s{sT1}, {CNT}")
    e(f"s_add_u32 s{sCTR}, s26, s{sT1}"); e(f"s_addc_u32 s{sCTR+1}, s27, 0")
    e(f"v_lshrrev_b32 v6, 3, v{vLANE}"); e(f"v_mul_u32_u24 v{vKV}, 384, v6")
    e(f"v_and_b32 v7, 7, v{vLANE}"); e(f"v_lshl_add_u32 v{vKV}, v7, 4, v{vKV}")
    e(f"s_lshl_b32 s{sT0}, s{sR}, 2"); e(f"s_add_u32 s{sT0}, s{sT0}, s{sWAVE}"); e(f"s_mul_i32 s{sT0}, s{sT0}, {NS}")
    for d in range(NS): e(f"s_add_u32 s{sTILE+d}, s{sT0}, {d}")
    e(f"s_or_b32 s{sT0}, s{sR}, s{sWAVE}"); e(f"s_cmp_lg_u32 s{sT0}, 0"); e("s_cbranch_scc1 L_noinit")
    e(f"s_mov_b32 s{sN}, {32*NS}")
    e(f"s_atomic_swap s{sN}, s[{sCTR}:{sCTR+1}], 0 glc")
    a.label("L_noinit")
    e(f"s_cmp_ge_u32 s{sR}, 6"); e("s_cbranch_scc1 L_nowq")
    stamp(2)
    e("s_waitcnt vmcnt(10)")
    stamp(2)
    layernorm()
    e(f"s_mul_i32 s{sT1}, s15, 640")
    xp_read(10, sT1)
    for d in range(EARLY): kv_loads(d, sTILE + d)
    for i in range(16): e(f"v_mov_b32 v{20+i}, 0")
    e("s_waitcnt lgkmcnt(0)")
    stamp(2)
    for i in range(10):
        e(f"s_waitcnt vmcnt({6*EARLY + 9 - i})")
        sel_ops([XP + (i >> 1), XP + 10 + (i >> 1)], i & 1, 52)
        mac16(WQ + 4*i, 20, 52)
    stamp(2)
    unit_reduce(20, QP)
    e("s_waitcnt lgkmcnt(0)")
    e("s_barrier")
    stamp(2)
    e(f"s_cmp_lg_u32 s{sWAVE}, 0"); e("s_cbranch_scc1 L_kvrest")
    e(f"v_lshlrev_b32 v6, 3, v{vLANE}")
    for w in range(4): e(f"ds_read_b64 v[{20+2*w}:{21+2*w}], v6 offset:{QP + 512*w}")
    mktag()
    e(f"v_lshrrev_b32 v6, 5, v{vLANE}"); e("v_mul_u32_u24 v6, 3072, v6")
    e(f"v_and_b32 v7, 31, v{vLANE}"); e("v_lshl_add_u32 v6, v7, 5, v6")
    e(f"s_lshl_b32 s{sT0}, s{sH}, 13"); e(f"s_lshl_b32 s{sT1}, s14, 10"); e(f"s_add_u32 s{sT0}, s{sT0}, s{sT1}")
    e(f"s_lshl_b32 s{sT1}, s15, 4"); e(f"s_add_u32 s{sT0}, s{sT0}, s{sT1}")
    e(f"s_add_u32 s{sT0}, s{sT0}, {QBOX}")
    e("s_waitcnt vmcnt(0) lgkmcnt(0)")
    e("v_add_f32 v20, v20, v22"); e("v_add_f32 v21, v21, v23"); e("v_add_f32 v24, v24, v26"); e("v_add_f32 v25, v25, v27")
    e("v_add_f32 v40, v20, v24"); e("v_add_f32 v42, v21, v25")
    e(f"v_mov_b32 v41, s{sTAG}"); e(f"v_mov_b32 v43, s{sTAG}")
    e(f"buffer_store_dwordx4 v[40:43], v6, {srd(sWS)}, s{sT0} offen {SCS}")
    e("s_branch L_qwait")
    a.label("L_nowq")
    e(f"s_cmp_eq_u32 s{sWAVE}, 0"); e("s_cbranch_scc1 L_qwait")
    for d in range(EARLY): kv_loads(d, sTILE + d)
    a.label("L_kvrest")
    for d in range(EARLY, NS):
        if STG: e(f"s_waitcnt vmcnt({6*(STG-1)})")
        kv_loads(d, sTILE + d)
    a.label("L_qwait")
    stamp(2)
    e("s_waitcnt lgkmcnt(0)")
    mktag()
    e(f"s_cmp_lg_u32 s{sWAVE}, 0"); e("s_cbranch_scc1 L_qbar")
    e("s_setprio 2")
    e(f"s_lshl_b32 s{sT0}, s{sH}, 13"); e(f"s_add_u32 s{sT0}, s{sT0}, {QBOX}")
    e(f"s_add_u32 s{sT1}, s{sT0}, 3072")
    e(f"v_lshlrev_b32 v6, 5, v{vLANE}")
    e(f"v_and_b32 v7, 31, v{vLANE}"); e("v_lshlrev_b32 v7, 5, v7"); e("v_add_u32 v7, 2048, v7")
    loads = []
    for b, so in ((0, sT0), (1, sT1)):
        base = 60 + 16 * b
        loads.append(f"buffer_load_dwordx4 v[{base}:{base+3}], v6, {srd(sWS)}, s{so} offen {SCL}")
        loads.append(f"buffer_load_dwordx4 v[{base+4}:{base+7}], v6, {srd(sWS)}, s{so} offen offset:16 {SCL}")
        loads.append(f"buffer_load_dwordx4 v[{base+8}:{base+11}], v7, {srd(sWS)}, s{so} offen {SCL}")
        loads.append(f"buffer_load_dwordx4 v[{base+12}:{base+15}], v7, {srd(sWS)}, s{so} offen offset:16 {SCL}")
    lane_poll("L_pq", loads, [61 + 2*i for i in range(16)], 52)
    e(f"v_lshlrev_b32 v6, 2, v{vLANE}")
    e(f"v_and_b32 v7, 31, v{vLANE}"); e("v_lshlrev_b32 v7, 2, v7")
    for b in range(2):
        base = 60 + 16 * b
        e(f"v_add_f32 v{base}, v{base}, v{base+4}"); e(f"v_add_f32 v{base+2}, v{base+2}, v{base+6}")
        e(f"v_add_f32 v{base+8}, v{base+8}, v{base+12}"); e(f"v_add_f32 v{base+10}, v{base+10}, v{base+14}")
        e(f"v_cvt_pk_bf16_f32 v{base}, v{base}, v{base+2}"); e(f"v_cvt_pk_bf16_f32 v{base+8}, v{base+8}, v{base+10}")
        e(f"ds_write_b32 v6, v{base} offset:{Q + 384*b}")
        e(f"ds_write_b32 v7, v{base+8} offset:{Q + 384*b + 256}")
    e("s_waitcnt lgkmcnt(0)")
    e("s_setprio 0")
    e(f"s_mov_b32 s{sK+2}, {KVREC}"); e(f"s_mov_b32 s{sV+2}, {KVREC}")
    a.label("L_qbar")
    e("s_barrier")
    stamp()
    e(f"s_mov_b32 s{sN}, {1 if CH1 else DL}")
    e(f"v_and_b32 v7, 7, v{vLANE}"); e("v_lshlrev_b32 v6, 4, v7")
    for s in range(3): e(f"ds_read_b128 v[{vQ0+4*s}:{vQ0+4*s+3}], v6 offset:{Q + 128*s}")
    for s in range(3): e(f"ds_read_b128 v[{vQ1+4*s}:{vQ1+4*s+3}], v6 offset:{Q + 384 + 128*s}")
    e(f"s_cmp_lg_u32 s{sWAVE}, 0"); e("s_cbranch_scc1 L_w0kv")
    for d in range(NS): kv_loads(d, sTILE + d)
    a.label("L_w0kv")
    e(f"s_cmp_lt_u32 s{sR}, 3"); e("s_cbranch_scc1 L_nowo")
    e(f"s_mul_i32 s{sT0}, s{sH}, {192*1280}"); e(f"s_sub_u32 s{sT1}, s{sR}, 3"); e(f"s_lshl_b32 s{sT1}, s{sT1}, 8")
    e(f"s_add_u32 s{sT0}, s{sT0}, s{sT1}")
    e(f"s_add_u32 s{sAUX2}, s12, s{sT0}"); e(f"s_addc_u32 s{sAUX2+1}, s13, 0")
    e(f"s_mov_b32 s{sAUX2+2}, {191*1280+256}"); e(f"s_mov_b32 s{sAUX2+3}, 0x20000")
    e(f"v_lshrrev_b32 v6, 4, v{vLANE}"); e("v_mul_u32_u24 v6, 12, v6")
    e(f"s_mul_i32 s{sT0}, s{sWAVE}, 48"); e(f"v_add_u32 v6, s{sT0}, v6")
    e("v_mul_u32_u24 v6, 1280, v6")
    e(f"v_and_b32 v7, 15, v{vLANE}"); e("v_lshl_add_u32 v6, v7, 4, v6")
    if not WOLATE_DEFAULT:
        pass
    e(f"s_mov_b32 s{sT1}, 0")
    e(f"s_mul_i32 s{sT0}, s{sWAVE}, 12288"); e(f"s_add_u32 s{sT0}, s{sT0}, {WOL}")
    for i in range(12):
        e(f"s_mov_b32 m0, s{sT0}"); e("s_nop 0")
        e(f"buffer_load_dwordx4 v6, {srd(sAUX2)}, s{sT1} offen{nt} lds")
        if i < 11: e(f"s_add_u32 s{sT1}, s{sT1}, 1280"); e(f"s_add_u32 s{sT0}, s{sT0}, 1024")
    a.label("L_nowo")
    for i in range(24): e(f"v_mov_b32 v{vACC0+i}, 0"); e(f"v_mov_b32 v{vACC1+i}, 0")
    e(f"v_mov_b32 v{vM0}, 0xff000000"); e(f"v_mov_b32 v{vL0}, 0"); e(f"v_mov_b32 v{vM1}, 0xff000000"); e(f"v_mov_b32 v{vL1}, 0")
    e("s_mov_b32 s14, 0x3d93cd3a"); e("s_mov_b32 s15, 0x3fb8aa3b")
    e("s_waitcnt lgkmcnt(0)")
    e(f"s_atomic_add s{sN}, s[{sCTR}:{sCTR+1}], 0 glc")

    def tile_compute(slot, q, acc, m, l, waitV):
        b = RING + 24 * slot
        e(f"v_mov_b32 v46, 0"); e("v_mov_b32 v47, 0")
        for i in range(12): e(f"v_dot2c_f32_bf16 v{46+(i&1)}, v{b+i}, v{q+i}")
        e("v_add_f32 v46, v46, v47")
        allreduce([46], "v_add_f32", None, [0, 1, 2])
        e("v_cvt_pk_bf16_f32 v46, v46, v46"); e("v_and_b32 v46, 0xffff0000, v46")
        e("v_mul_f32 v46, s14, v46")
        e("v_cvt_pk_bf16_f32 v46, v46, v46"); e("v_and_b32 v46, 0xffff0000, v46")
        e("v_mul_f32 v46, s15, v46")
        e(f"v_max_f32 v47, v{m}, v46")
        e(f"v_sub_f32 v48, v{m}, v47"); e("v_sub_f32 v49, v46, v47")
        e("v_exp_f32 v48, v48"); e("v_exp_f32 v49, v49")
        e(f"v_mov_b32 v{m}, v47")
        e(f"v_fma_f32 v{l}, v{l}, v48, v49")
        e("v_cvt_pk_bf16_f32 v50, v49, 0"); e("v_lshlrev_b32 v51, 16, v50")
        for i in range(12):
            e(f"v_pk_mul_f32 v[{acc+2*i}:{acc+2*i+1}], v[{acc+2*i}:{acc+2*i+1}], v[48:49] op_sel_hi:[1,0]")
        e(f"s_waitcnt vmcnt({waitV})")
        for i in range(12):
            e(f"v_dot2c_f32_bf16 v{acc+2*i}, v{b+12+i}, v50")
            e(f"v_dot2c_f32_bf16 v{acc+2*i+1}, v{b+12+i}, v51")
    def refill(d):
        if STATIC:
            if first[0]:
                e(f"s_lshl_b32 s{sT0}, s{sR}, 2"); e(f"s_add_u32 s{sT0}, s{sT0}, s{sWAVE}"); e(f"s_mul_i32 s{sT0}, s{sT0}, {DL}")
                e(f"s_add_u32 s{sTILE+d}, s{sT0}, {32*NS + d}")
            else:
                e(f"s_add_u32 s{sTILE+d}, s{sTILE+d}, {32*DL}")
        elif CH1:
            e("s_waitcnt lgkmcnt(0)")
            e(f"s_mov_b32 s{sTILE+d}, s{sN}")
            e(f"s_mov_b32 s{sN}, 1")
            e(f"s_atomic_add s{sN}, s[{sCTR}:{sCTR+1}], 0 glc")
        elif d == 0:
            e("s_waitcnt lgkmcnt(0)")
            e(f"s_mov_b32 s{sTILE}, s{sN}")
            e(f"s_add_u32 s{sNEXT}, s{sN}, 1")
            e(f"s_mov_b32 s{sN}, {DL}")
            e(f"s_atomic_add s{sN}, s[{sCTR}:{sCTR+1}], 0 glc")
        else:
            e(f"s_mov_b32 s{sTILE+d}, s{sNEXT}")
            if d < DL - 1: e(f"s_add_u32 s{sNEXT}, s{sNEXT}, 1")
        kv_loads(d, sTILE + d)
    first = [True]
    order = list(range(NS))
    for d in range(NS):
        younger = len(order) - 1 - order.index(d)
        e(f"s_waitcnt vmcnt({6*younger+3})")
        tile_compute(d, vQ0, vACC0, vM0, vL0, 6*younger)
        order.remove(d)
        if d < DL:
            refill(d); order.append(d)
    first[0] = False
    a.label("L_loop")
    for d in range(DL):
        e(f"s_cmp_ge_u32 s{sTILE+d}, 1024"); e("s_cbranch_scc1 L_loopend")
        e(f"s_waitcnt vmcnt({6*(DL-1)+3})")
        e(f"s_cmp_ge_u32 s{sTILE+d}, 512"); e(f"s_cbranch_scc1 L_b1_{d}")
        tile_compute(d, vQ0, vACC0, vM0, vL0, 6*(DL-1))
        e(f"s_branch L_join_{d}")
        a.label(f"L_b1_{d}")
        tile_compute(d, vQ1, vACC1, vM1, vL1, 6*(DL-1))
        a.label(f"L_join_{d}")
        refill(d)
    e("s_branch L_loop")
    a.label("L_loopend")
    e("s_waitcnt lgkmcnt(0)")
    stamp()
    e(f"v_mov_b32 v46, v{vM0}"); e(f"v_mov_b32 v50, v{vM1}")
    allreduce([46, 50], "v_max_f32", [47, 51], [3, 4, 5])
    e(f"v_sub_f32 v48, v{vM0}, v46"); e(f"v_sub_f32 v52, v{vM1}, v50")
    e("v_exp_f32 v48, v48"); e("v_exp_f32 v52, v52")
    e(f"v_mul_f32 v47, v{vL0}, v48"); e(f"v_mul_f32 v51, v{vL1}, v52")
    for acc, f in ((vACC0, 48), (vACC1, 52)):
        for i in range(12):
            e(f"v_pk_mul_f32 v[{acc+2*i}:{acc+2*i+1}], v[{acc+2*i}:{acc+2*i+1}], v[{f}:{f+1}] op_sel_hi:[1,0]")
    allreduce([47, 51], "v_add_f32", [49, 53], [3, 4, 5])
    swapred([(acc+8*s+i, acc+8*s+4+i) for acc in (vACC0, vACC1) for s in range(3) for i in range(4)], 5)
    swapred([(acc+8*s+i, acc+8*s+2+i) for acc in (vACC0, vACC1) for s in range(3) for i in range(2)], 4)
    allreduce([acc+8*s+i for acc in (vACC0, vACC1) for s in range(3) for i in range(2)], "v_add_f32", None, [3])
    e(f"v_and_b32 v6, 7, v{vLANE}"); e("v_lshlrev_b32 v6, 5, v6")
    e(f"v_lshrrev_b32 v7, 5, v{vLANE}"); e("v_lshl_add_u32 v6, v7, 4, v6")
    e(f"v_bfe_u32 v7, v{vLANE}, 4, 1"); e("v_lshl_add_u32 v6, v7, 3, v6")
    e(f"s_mul_i32 s{sT0}, s{sWAVE}, 768"); e(f"v_add_u32 v6, s{sT0}, v6")
    for c, acc in enumerate((vACC0, vACC1)):
        for s in range(3): e(f"ds_write_b64 v6, v[{acc+8*s}:{acc+8*s+1}] offset:{PART + 3072*c + 256*s}")
    e(f"s_lshl_b32 s{sT0}, s{sWAVE}, 3"); e(f"v_mov_b32 v7, s{sT0}")
    e(f"ds_write_b64 v7, v[46:47] offset:{STAT}")
    e(f"ds_write_b64 v7, v[50:51] offset:{STAT+32}")
    e("s_waitcnt lgkmcnt(0)")
    e("s_barrier")
    e("v_and_b32 v5, 127, v0"); e("v_lshrrev_b32 v4, 7, v0")
    e("v_cmp_gt_u32 vcc, 96, v5"); e("s_and_saveexec_b64 s[16:17], vcc"); e("s_cbranch_execz L_pub_done")
    e("v_mul_u32_u24 v6, 3072, v4"); e("v_lshl_add_u32 v6, v5, 3, v6")
    e("v_lshlrev_b32 v7, 5, v4")
    for w in range(4): e(f"ds_read_b64 v[{20+2*w}:{21+2*w}], v6 offset:{PART + 768*w}")
    e(f"ds_read_b128 v[28:31], v7 offset:{STAT}"); e(f"ds_read_b128 v[32:35], v7 offset:{STAT+16}")
    e("v_lshlrev_b32 v6, 11, v4"); e("v_lshl_add_u32 v6, v5, 4, v6")
    e(f"s_lshl_b32 s{sT0}, s{sH}, 3"); e(f"s_add_u32 s{sT0}, s{sT0}, s{sR}"); e(f"s_lshl_b32 s{sT0}, s{sT0}, 12"); e(f"s_add_u32 s{sT0}, s{sT0}, {OBOX}")
    e("v_and_b32 v5, 1, v5"); e("v_cmp_eq_u32 vcc, 1, v5")
    e(f"v_mov_b32 v43, s{sTAG}")
    e("s_waitcnt lgkmcnt(0)")
    e("v_max_f32 v36, v28, v30"); e("v_max3_f32 v36, v36, v32, v34")
    for w in range(4): e(f"v_sub_f32 v{28+2*w}, v{28+2*w}, v36")
    for w in range(4): e(f"v_exp_f32 v{28+2*w}, v{28+2*w}")
    e("v_mul_f32 v40, v20, v28"); e("v_mul_f32 v41, v21, v28"); e("v_mul_f32 v37, v29, v28")
    for w in range(1, 4):
        e(f"v_fmac_f32 v40, v{20+2*w}, v{28+2*w}"); e(f"v_fmac_f32 v41, v{21+2*w}, v{28+2*w}"); e(f"v_fmac_f32 v37, v{29+2*w}, v{28+2*w}")
    e("v_cndmask_b32 v42, v36, v37, vcc")
    e(f"buffer_store_dwordx4 v[40:43], v6, {srd(sWS)}, s{sT0} offen {SCS}")
    a.label("L_pub_done")
    e("s_mov_b64 exec, s[16:17]")
    stamp()
    e(f"s_cmp_lt_u32 s{sR}, 3"); e("s_cbranch_scc1 L_final")
    e("s_waitcnt vmcnt(0)")
    e(f"v_lshlrev_b32 v6, 4, v{vLANE}"); e(f"s_mul_i32 s{sT0}, s{sWAVE}, 12288"); e(f"v_add_u32 v6, s{sT0}, v6")
    for i in range(12): e(f"ds_read_b128 v[{100+4*i}:{103+4*i}], v6 offset:{WOL + 1024*i}")
    e(f"s_cmp_eq_u32 s{sWAVE}, 3"); e("s_cbranch_scc1 L_wo_bar")
    e("v_cmp_le_u32 vcc, 96, v0")
    e("v_cndmask_b32 v7, 0, 1, vcc")
    e("v_mul_u32_u24 v5, 96, v7"); e("v_sub_u32 v5, v0, v5")
    e("v_lshlrev_b32 v6, 11, v7")
    e("v_lshl_add_u32 v6, v5, 4, v6")
    e(f"s_lshl_b32 s{sT0}, s{sH}, 15"); e(f"s_add_u32 s{sT0}, s{sT0}, {OBOX}")
    for p in range(8): e(f"s_mov_b64 s[{4+2*p}:{5+2*p}], -1")
    e(f"s_mov_b32 s{sCNT}, {SPIN}")
    a.label("L_p1")
    e(f"s_mov_b32 s{sT1}, s{sT0}")
    for p in range(8):
        e(f"s_mov_b64 exec, s[{4+2*p}:{5+2*p}]"); e(f"s_cbranch_execz L_p1_s{p}")
        e(f"buffer_load_dwordx4 v[{60+4*p}:{63+4*p}], v6, {srd(sWS)}, s{sT1} offen {SCL}")
        a.label(f"L_p1_s{p}")
        if p < 7: e(f"s_add_u32 s{sT1}, s{sT1}, 4096")
    e("s_waitcnt vmcnt(0)")
    for p in range(8):
        e(f"s_mov_b64 exec, s[{4+2*p}:{5+2*p}]"); e(f"s_cbranch_execz L_p1_c{p}")
        e(f"v_cmp_ne_u32 s[{4+2*p}:{5+2*p}], s{sTAG}, v{63+4*p}")
        a.label(f"L_p1_c{p}")
    e("s_mov_b64 exec, -1")
    e("s_nop 1")
    e("s_or_b64 s[20:21], s[4:5], s[6:7]")
    for p in range(2, 8): e(f"s_or_b64 s[20:21], s[20:21], s[{4+2*p}:{5+2*p}]")
    e("s_cbranch_scc0 L_p1_done")
    e(f"s_sleep {SLP}")
    e(f"s_sub_u32 s{sCNT}, s{sCNT}, 1"); e(f"s_cmp_lg_u32 s{sCNT}, 0"); e("s_cbranch_scc1 L_p1")
    a.label("L_p1_done")
    e("v_and_b32 v8, 1, v5"); e("v_cmp_eq_u32 vcc, 1, v8")
    for p in range(8): e(f"v_mov_b32_dpp v{63+4*p}, v{62+4*p} quad_perm:[1,0,3,2] row_mask:0xf bank_mask:0xf")
    for p in range(8):
        e(f"v_cndmask_b32 v{8+p}, v{62+4*p}, v{63+4*p}, vcc")
        e(f"v_cndmask_b32 v{62+4*p}, v{63+4*p}, v{62+4*p}, vcc")
    e("v_max3_f32 v36, v8, v9, v10"); e("v_max3_f32 v36, v36, v11, v12"); e("v_max3_f32 v36, v36, v13, v14"); e("v_max_f32 v36, v36, v15")
    for p in range(8): e(f"v_sub_f32 v{8+p}, v{8+p}, v36")
    for p in range(8): e(f"v_exp_f32 v{8+p}, v{8+p}")
    e("v_mul_f32 v40, v60, v8"); e("v_mul_f32 v41, v61, v8"); e("v_mul_f32 v37, v62, v8")
    for p in range(1, 8):
        e(f"v_fmac_f32 v40, v{60+4*p}, v{8+p}"); e(f"v_fmac_f32 v41, v{61+4*p}, v{8+p}"); e(f"v_fmac_f32 v37, v{62+4*p}, v{8+p}")
    e("v_rcp_f32 v37, v37")
    e("v_mul_f32 v40, v40, v37"); e("v_mul_f32 v41, v41, v37")
    e("v_cvt_pk_bf16_f32 v40, v40, v41")
    e("v_mul_u32_u24 v6, 384, v7"); e("v_lshl_add_u32 v6, v5, 2, v6")
    e(f"ds_write_b32 v6, v40 offset:{SEL}")
    a.label("L_wo_bar")
    e("s_waitcnt lgkmcnt(0)")
    e("s_barrier")
    stamp()
    e(f"v_lshrrev_b32 v6, 4, v{vLANE}"); e("v_mul_u32_u24 v6, 24, v6")
    e(f"s_mul_i32 s{sT0}, s{sWAVE}, 96"); e(f"v_add_u32 v6, s{sT0}, v6")
    for b in range(2):
        for p in range(3): e(f"ds_read_b64 v[{60+6*b+2*p}:{61+6*b+2*p}], v6 offset:{SEL + 384*b + 8*p}")
    for i in range(16): e(f"v_mov_b32 v{20+i}, 0")
    e(f"v_lshrrev_b32 v6, 5, v{vLANE}"); e("v_lshlrev_b32 v6, 9, v6")
    e(f"v_and_b32 v7, 15, v{vLANE}"); e("v_lshl_add_u32 v6, v7, 5, v6")
    e(f"v_bfe_u32 v7, v{vLANE}, 4, 1"); e("v_lshl_add_u32 v6, v7, 4, v6")
    e(f"s_lshl_b32 s{sT0}, s{sWAVE}, 10"); e(f"v_add_u32 v6, s{sT0}, v6")
    e("s_waitcnt lgkmcnt(0)")
    for i in range(12):
        sel_ops([60 + (i >> 1), 66 + (i >> 1)], i & 1, 52)
        mac16(100 + 4*i, 20, 52)
    swapred([(20+i, 28+i) for i in range(8)], 5)
    swapred([(20+i, 24+i) for i in range(4)], 4)
    e(f"ds_write_b128 v6, v[20:23] offset:{YP}")
    e("v_lshlrev_b32 v6, 3, v0")
    e(f"s_mul_i32 s{sT0}, s{sH}, 5"); e(f"s_add_u32 s{sT0}, s{sT0}, s{sR}"); e(f"s_sub_u32 s{sT0}, s{sT0}, 3")
    e(f"s_lshl_b32 s{sT0}, s{sT0}, 11"); e(f"s_add_u32 s{sT0}, s{sT0}, {YBOX}")
    e(f"v_mov_b32 v41, s{sTAG}"); e(f"v_mov_b32 v43, s{sTAG}")
    e("s_waitcnt lgkmcnt(0)")
    e("s_barrier")
    e(f"s_cmp_ge_u32 s{sWAVE}, 2"); e("s_cbranch_scc1 L_fin")
    for w in range(4): e(f"ds_read_b64 v[{20+2*w}:{21+2*w}], v6 offset:{YP + 1024*w}")
    e("v_lshlrev_b32 v6, 4, v0")
    e("s_waitcnt lgkmcnt(0)")
    e("v_add_f32 v20, v20, v22"); e("v_add_f32 v21, v21, v23"); e("v_add_f32 v24, v24, v26"); e("v_add_f32 v25, v25, v27")
    e("v_add_f32 v40, v20, v24"); e("v_add_f32 v42, v21, v25")
    e(f"buffer_store_dwordx4 v[40:43], v6, {srd(sWS)}, s{sT0} offen {SCS}")
    e("s_branch L_fin")
    a.label("L_final")
    e(f"s_mul_i32 s14, s{sH}, 3"); e(f"s_add_u32 s14, s14, s{sR}")
    e("s_cmp_ge_u32 s14, 40"); e("s_cbranch_scc1 L_fin")
    e("s_cmp_ge_u32 s14, 20"); e("s_cselect_b32 s15, 1, 0")
    e("s_mul_i32 s16, s15, 20"); e("s_sub_u32 s16, s14, s16")
    e("s_lshr_b32 s17, s16, 2"); e("s_and_b32 s18, s16, 3")
    e("s_mul_i32 s19, s15, 640"); e("s_lshl_b32 s20, s16, 5"); e("s_add_u32 s19, s19, s20")
    e("v_add_u32 v4, s19, v0"); e("v_lshlrev_b32 v4, 1, v4")
    e(f"buffer_load_ushort v58, v4, {srd(sX)}, 0 offen")
    e("v_lshrrev_b32 v5, 3, v0")
    e("v_and_b32 v7, 7, v0")
    e("v_mul_u32_u24 v6, 10240, v5"); e("v_lshl_add_u32 v6, v7, 5, v6")
    e("s_lshl_b32 s20, s17, 11"); e("s_lshl_b32 s21, s15, 10"); e("s_add_u32 s20, s20, s21"); e("s_lshl_b32 s21, s18, 8"); e("s_add_u32 s20, s20, s21")
    e(f"s_add_u32 s20, s20, {YBOX}")
    e("s_lshl_b32 s21, s19, 3"); e(f"s_add_u32 s21, s21, {FBOX}")
    for r in (68, 70, 72, 74): e(f"v_mov_b32 v{r}, 0")
    e(f"s_cmp_eq_u32 s{sWAVE}, 3"); e("s_cbranch_scc1 L_pf_skip")
    lane_poll("L_pf", [f"buffer_load_dwordx4 v[68:71], v6, {srd(sWS)}, s21 offen {SCL}",
                       f"buffer_load_dwordx4 v[72:75], v6, {srd(sWS)}, s21 offen offset:16 {SCL}"], [69, 71, 73, 75], 52)
    a.label("L_pf_skip")
    lane_poll("L_p2", [f"buffer_load_dwordx4 v[60:63], v6, {srd(sWS)}, s20 offen {SCL}",
                       f"buffer_load_dwordx4 v[64:67], v6, {srd(sWS)}, s20 offen offset:16 {SCL}"], [61, 63, 65, 67], 52)
    swapred([(60, 68), (62, 70), (64, 72), (66, 74)], 5)
    swapred([(60, 64), (62, 66)], 4)
    allreduce([60, 62], "v_add_f32", None, [3])
    e("v_mov_b32 v61, v62")
    e(f"v_lshrrev_b32 v6, 5, v{vLANE}"); e("v_lshlrev_b32 v6, 7, v6")
    e(f"v_and_b32 v7, 7, v{vLANE}"); e("v_lshl_add_u32 v6, v7, 4, v6")
    e(f"v_bfe_u32 v7, v{vLANE}, 4, 1"); e("v_lshl_add_u32 v6, v7, 3, v6")
    e(f"s_lshl_b32 s22, s{sWAVE}, 8"); e("v_add_u32 v6, s22, v6")
    e(f"ds_write_b64 v6, v[60:61] offset:{RED}")
    e("s_waitcnt lgkmcnt(0)")
    e("s_barrier")
    e(f"s_cmp_lg_u32 s{sWAVE}, 0"); e("s_cbranch_scc1 L_fin")
    e("s_mov_b32 exec_hi, 0")
    e("v_lshlrev_b32 v6, 2, v0")
    for w in range(4):
        e(f"ds_read_b32 v{20+w}, v6 offset:{RED + 256*w}"); e(f"ds_read_b32 v{24+w}, v6 offset:{RED + 256*w + 128}")
    e("s_mov_b32 s22, 0xbfb8aa3b")
    e("v_lshlrev_b32 v58, 16, v58")
    e("s_waitcnt lgkmcnt(0)")
    e("v_add_f32 v20, v20, v21"); e("v_add_f32 v22, v22, v23"); e("v_add_f32 v24, v24, v25"); e("v_add_f32 v26, v26, v27")
    e("v_add_f32 v20, v20, v22"); e("v_add_f32 v24, v24, v26")
    e("v_cvt_pk_bf16_f32 v28, v20, v24")
    e("v_lshlrev_b32 v20, 16, v28"); e("v_and_b32 v24, 0xffff0000, v28")
    e("v_mul_f32 v25, s22, v24"); e("v_exp_f32 v25, v25"); e("v_add_f32 v25, 1.0, v25"); e("v_rcp_f32 v25, v25")
    e("v_mul_f32 v24, v24, v25")
    e("v_cvt_pk_bf16_f32 v24, v24, v24"); e("v_and_b32 v24, 0xffff0000, v24")
    e("v_mul_f32 v20, v20, v24")
    e("v_cvt_pk_bf16_f32 v20, v20, v20"); e("v_and_b32 v20, 0xffff0000, v20")
    e("v_add_f32 v20, v58, v20")
    e("v_cvt_pk_bf16_f32 v20, v20, v20")
    e(f"buffer_store_short v20, v4, {srd(sOUT)}, 0 offen")
    e("s_cmp_lg_u32 s14, 0"); e("s_cbranch_scc1 L_fin")
    e("s_mov_b64 exec, 1")
    e(f"v_mov_b32 v21, s{sTAG}"); e("v_mov_b32 v22, 0")
    e(f"buffer_store_dword v21, v22, {srd(sWS)}, 0 offen")
    e("s_branch L_fin")

    a.label("L_ffn")
    e("s_setprio 3")
    e("s_sub_u32 s57, s2, 256")
    e(f"s_lshl_b32 s{sT0}, s57, 7")
    e(f"s_add_u32 s{sAUX}, s16, s{sT0}"); e(f"s_addc_u32 s{sAUX+1}, s17, 0"); e(f"s_mov_b32 s{sAUX+2}, {639*3072+128}"); e(f"s_mov_b32 s{sAUX+3}, 0x20000")
    e(f"s_add_u32 s{sAUX2}, s18, s{sT0}"); e(f"s_addc_u32 s{sAUX2+1}, s19, 0"); e(f"s_mov_b32 s{sAUX2+2}, {639*3072+128}"); e(f"s_mov_b32 s{sAUX2+3}, 0x20000")
    e(f"s_mul_i32 s{sT0}, s57, {64*1280}")
    e(f"s_add_u32 s{sK}, s20, s{sT0}"); e(f"s_addc_u32 s{sK+1}, s21, 0"); e(f"s_mov_b32 s{sK+2}, {64*1280}"); e(f"s_mov_b32 s{sK+3}, 0x20000")
    xloads()
    unit_addr(3072, 20, 2)
    e(f"v_lshrrev_b32 v3, 4, v{vLANE}"); e("v_lshlrev_b32 v3, 2, v3")
    e(f"s_lshl_b32 s{sT0}, s{sWAVE}, 4"); e(f"v_add_u32 v3, s{sT0}, v3")
    e("v_mul_u32_u24 v3, 1280, v3")
    e(f"v_and_b32 v7, 15, v{vLANE}"); e("v_lshl_add_u32 v3, v7, 4, v3")
    def fload(n):
        if n < 20:
            e(f"s_mov_b32 s{sT1}, {3072*n}")
            e(f"buffer_load_dwordx4 v[{60+4*n}:{63+4*n}], v2, {srd(sAUX)}, s{sT1} offen{nt}")
        elif n < 40:
            i = n - 20
            e(f"s_mov_b32 s{sT1}, {3072*i}")
            e(f"buffer_load_dwordx4 v[{140+4*i}:{143+4*i}], v2, {srd(sAUX2)}, s{sT1} offen{nt}")
        elif n < 60:
            k = n - 40; i, sg = k // 5, k % 5
            e(f"s_mov_b32 s{sT1}, {1280*i}")
            e(f"buffer_load_dwordx4 v[{60+4*k}:{63+4*k}], v3, {srd(sK)}, s{sT1} offen offset:{256*sg}{nt}")
    for n in range(FLA): fload(n)
    e(f"s_waitcnt vmcnt({FLA})")
    layernorm()
    xp_read(20)
    for i in range(32): e(f"v_mov_b32 v{20+i}, 0")
    e("s_waitcnt lgkmcnt(0)")
    for n in range(40):
        issued = min(60, n + FLA)
        e(f"s_waitcnt vmcnt({issued - n - 1})")
        i = n % 20
        sel_ops([XP + (i >> 1), XP + 10 + (i >> 1)], i & 1, 52)
        mac16((60 if n < 20 else 140) + 4*i, 20 if n < 20 else 36, 52)
        if n + FLA < 60: fload(n + FLA)
    unit_reduce(20, QP)
    unit_reduce(36, UP)
    for n in range(40 + FLA, 60): fload(n)
    e("s_waitcnt lgkmcnt(0)")
    e("s_barrier")
    e(f"s_cmp_ge_u32 s{sWAVE}, 2"); e("s_cbranch_scc1 L_ffn_h")
    e("v_lshlrev_b32 v6, 2, v0")
    for w in range(4):
        e(f"ds_read_b32 v{20+w}, v6 offset:{QP + 512*w}"); e(f"ds_read_b32 v{24+w}, v6 offset:{UP + 512*w}")
    e("s_waitcnt lgkmcnt(0)")
    e("v_add_f32 v20, v20, v21"); e("v_add_f32 v22, v22, v23"); e("v_add_f32 v24, v24, v25"); e("v_add_f32 v26, v26, v27")
    e("v_add_f32 v20, v20, v22"); e("v_add_f32 v24, v24, v26")
    e("v_cvt_pk_bf16_f32 v28, v20, v24")
    e("v_lshlrev_b32 v20, 16, v28"); e("v_and_b32 v24, 0xffff0000, v28")
    e("v_mul_f32 v25, v20, v20"); e("v_mul_f32 v25, v25, v20")
    e("s_mov_b32 s22, 0x3d372713"); e("v_fma_f32 v25, v25, s22, v20")
    e("s_mov_b32 s22, 0xc0135761"); e("v_mul_f32 v25, s22, v25")
    e("v_exp_f32 v25, v25"); e("v_add_f32 v25, 1.0, v25"); e("v_rcp_f32 v25, v25")
    e("v_mul_f32 v20, v20, v25")
    e("v_cvt_pk_bf16_f32 v20, v20, v20"); e("v_and_b32 v20, 0xffff0000, v20")
    e("v_mul_f32 v20, v20, v24")
    e("v_cvt_pk_bf16_f32 v20, v20, v20")
    e("v_lshlrev_b32 v6, 1, v0")
    e(f"ds_write_b16 v6, v20 offset:{H}")
    e("s_waitcnt lgkmcnt(0)")
    a.label("L_ffn_h")
    e("s_barrier")
    e(f"v_lshrrev_b32 v6, 4, v{vLANE}"); e("v_lshlrev_b32 v6, 3, v6")
    e(f"s_lshl_b32 s{sT0}, s{sWAVE}, 5"); e(f"v_add_u32 v6, s{sT0}, v6")
    e(f"ds_read_b64 v[56:57], v6 offset:{H}"); e(f"ds_read_b64 v[58:59], v6 offset:{H+128}")
    for i in range(80): e(f"v_mov_b32 v{140+i}, 0")
    e("s_waitcnt vmcnt(0) lgkmcnt(0)")
    for i in range(4):
        sel_ops([56 + (i >> 1), 58 + (i >> 1)], i & 1, 52)
        for sg in range(5):
            mac16(60 + 20*i + 4*sg, 140 + 16*sg, 52)
    for sg in range(5):
        A = 140 + 16*sg
        swapred([(A+i, A+8+i) for i in range(8)], 5)
        swapred([(A+i, A+4+i) for i in range(4)], 4)
    e(f"v_lshrrev_b32 v6, 5, v{vLANE}"); e("v_mul_u32_u24 v6, 2560, v6")
    e(f"v_and_b32 v7, 15, v{vLANE}"); e("v_lshl_add_u32 v6, v7, 5, v6")
    e(f"v_bfe_u32 v7, v{vLANE}, 4, 1"); e("v_lshl_add_u32 v6, v7, 4, v6")
    e(f"s_mul_i32 s{sT0}, s{sWAVE}, 5120"); e(f"v_add_u32 v6, s{sT0}, v6")
    for sg in range(5): e(f"ds_write_b128 v6, v[{140+16*sg}:{143+16*sg}] offset:{DP + 512*sg}")
    e("s_waitcnt lgkmcnt(0)")
    e("s_barrier")
    mktag()
    e(f"s_mul_i32 s{sT0}, s57, 10240"); e(f"s_add_u32 s{sT0}, s{sT0}, {FBOX}")
    e(f"v_mov_b32 v41, s{sTAG}"); e(f"v_mov_b32 v43, s{sTAG}")
    for q in range(3):
        if q == 2:
            e(f"s_cmp_ge_u32 s{sWAVE}, 2"); e("s_cbranch_scc1 L_fin")
        e(f"v_add_u32 v5, {256*q}, v0"); e("v_lshlrev_b32 v6, 3, v5")
        for w in range(4): e(f"ds_read_b64 v[{20+2*w}:{21+2*w}], v6 offset:{DP + 5120*w}")
        e("s_waitcnt lgkmcnt(0)")
        e("v_add_f32 v20, v20, v22"); e("v_add_f32 v21, v21, v23"); e("v_add_f32 v24, v24, v26"); e("v_add_f32 v25, v25, v27")
        e("v_add_f32 v40, v20, v24"); e("v_add_f32 v42, v21, v25")
        e("v_lshlrev_b32 v6, 4, v5")
        e(f"buffer_store_dwordx4 v[40:43], v6, {srd(sWS)}, s{sT0} offen {SCS}")
        e("s_nop 1")

    a.label("L_fin")
    if DBGT:
        e("s_mov_b64 exec, -1")
        e(f"s_cmp_lg_u32 s{sWAVE}, 0"); e("s_cbranch_scc1 L_end")
        e("s_memrealtime s[100:101]")
        e("s_load_dwordx2 s[4:5], s[0:1], 80")
        e("s_waitcnt lgkmcnt(0)")
        e("s_mov_b32 s6, 256"); e("s_mov_b32 s7, 0x20000")
        e("s_not_b32 s98, s98")
        e("v_mov_b32 v20, s98"); e("v_mov_b32 v21, s100"); e("v_mov_b32 v6, 0")
        e("s_mov_b64 exec, 1")
        e("buffer_atomic_umax v20, v6, s[4:7], 0 offen")
        e("buffer_atomic_umax v21, v6, s[4:7], 0 offen offset:4")
    if PROF:
        stamp()
        n = prof_n[0]
        e("s_mov_b64 exec, -1")
        e(f"s_cmp_lg_u32 s{sWAVE}, 0"); e("s_cbranch_scc1 L_end")
        e("s_waitcnt lgkmcnt(0)")
        e("s_getreg_b32 s14, hwreg(HW_REG_XCC_ID)")
        e(f"s_lshl_b32 s{sT0}, s2, 7"); e(f"s_add_u32 s{sT0}, s{sT0}, {PROFO}")
        e("v_mov_b32 v6, 0")
        e("s_mov_b64 exec, 1")
        for i in range(n):
            e(f"v_mov_b32 v20, s{SP[i]}"); e(f"v_mov_b32 v21, s{SP[i]+1}")
            e(f"buffer_store_dwordx2 v[20:21], v6, {srd(sWS)}, s{sT0} offen offset:{8*i}")
            e("s_nop 1")
        e("v_mov_b32 v20, s14")
        e(f"buffer_store_dword v20, v6, {srd(sWS)}, s{sT0} offen offset:120")
    a.label("L_end")
    e("s_endpgm")
    body = fix_hazards([l for l in a.L if l is not None])
    out += body
    out += ['.section .rodata,"a"', ".p2align 6", f".amdhsa_kernel {KNAME}", "  .amdhsa_next_free_vgpr 256", "  .amdhsa_next_free_sgpr 102",
            "  .amdhsa_accum_offset 256", "  .amdhsa_group_segment_fixed_size 0", "  .amdhsa_kernarg_size 96", "  .amdhsa_user_sgpr_count 2",
            "  .amdhsa_user_sgpr_kernarg_segment_ptr 1", "  .amdhsa_system_sgpr_workgroup_id_x 1", ".end_amdhsa_kernel"]
    return "\n".join(out) + "\n"

WOLATE_DEFAULT = 1
if __name__ == "__main__":
    import json
    kw = json.loads(sys.argv[2]) if len(sys.argv) > 2 else {}
    open(sys.argv[1], "w").write(gen(**kw))

LAST = 5
```

```python
import sys
sys.path.insert(0, "gen")
from asmlib import Asm, fix_hazards

KNAME = "recurrent_scan__mha_block_cached__geglu_ffn__decode_kernel"

XN, QP, UP, Q, PART, STAT, SEL, YP, RED, H = 0, 2560, 4608, 6656, 7424, 13568, 13696, 14464, 18560, 19584
WOL = 19968
DP = WOL
LDS_BYTES = WOL + 49152
CNT, QBOX, OBOX, YBOX, FBOX, PROFO = 0x1000, 0x4000, 0x50000, 0x150000, 0x1A0000, 0x200000
WS_REC = 0x400000
NFFN = 24
FFN_LAST = 1
NWG = NFFN + 256
SPIN = 1 << 17

sK, sV, sAUX, sWS, sX, sOUT, sAUX2 = 28, 32, 36, 40, 44, 48, 52
sWAVE, sH, sR, sTAG, sE, sT0, sT1, sCNT = 56, 57, 58, 60, 61, 62, 63, 3
sTILE = 80
sN, sNEXT = 86, 87
sRET1, sRET2, sLIM, sPOFF, sPH, sPROD = 84, 22, 59, 21, 20, 19
sCTR = 88
vLANE, vKV, vOFF = 1, 3, 2
RING = 60
vQ0, vQ1 = 8, 204
vACC0, vM0, vL0 = 20, 44, 45
vACC1, vM1, vL1 = 216, 240, 241
WQ = 156
XP = 236
KVREC = 50331648 + 1572864

def srd(s): return f"s[{s}:{s+3}]"

def gen(PROF=0, NT=1, FLA=8, STG=2, SLP=1, EARLY=0, DL=2, NS=4, STATIC=0, CH1=1, SCS='sc0 sc1', SCL='sc0 sc1', DBGT=0, MF=1, PUB1=1, PRE=4):
    a = Asm(); e = a.e
    nt = " nt" if NT else ""
    prof_n = [0]
    SP = [64, 66, 68, 70, 72, 74, 76, 78, 90, 92, 98, 100, 4, 6]
    def stamp(level=1):
        if (PROF and level == 1) or PROF == level:
            i = prof_n[0]; prof_n[0] += 1
            e(f"s_memrealtime s[{SP[i]}:{SP[i]+1}]")
    def allreduce(regs, op, tmps, bits):
        for bit in bits:
            if bit in (0, 1, 2, 3, "m"):
                mod = {0: "quad_perm:[1,0,3,2]", 1: "quad_perm:[2,3,0,1]", 2: "row_half_mirror", 3: "row_ror:8", "m": "row_mirror"}[bit]
                for r in regs:
                    e(f"{op}_dpp v{r}, v{r}, v{r} {mod} row_mask:0xf bank_mask:0xf")
            else:
                sw = "v_permlane16_swap_b32" if bit == 4 else "v_permlane32_swap_b32"
                for r, t in zip(regs, tmps): e(f"v_mov_b32 v{t}, v{r}")
                for r, t in zip(regs, tmps): e(f"{sw} v{r}, v{t}")
                for r, t in zip(regs, tmps): e(f"{op} v{r}, v{r}, v{t}")
    def swapred(pairs, bit):
        sw = "v_permlane16_swap_b32" if bit == 4 else "v_permlane32_swap_b32"
        for x, y in pairs: e(f"{sw} v{x}, v{y}")
        for x, y in pairs: e(f"v_add_f32 v{x}, v{x}, v{y}")
    def mktag():
        e(f"s_mul_i32 s{sTAG}, s{sE}, 0x9E3779B1"); e(f"s_add_u32 s{sTAG}, s{sTAG}, 0x7F4A7C15")
    def lane_poll(name, loads, tagregs, tmp):
        e(f"s_mov_b32 s{sCNT}, {SPIN}")
        a.label(name)
        for l in loads: e(l)
        e("s_waitcnt vmcnt(0)")
        e(f"v_xor_b32 v{tmp}, s{sTAG}, v{tagregs[0]}")
        for t in tagregs[1:]:
            e(f"v_xor_b32 v{tmp+1}, s{sTAG}, v{t}")
            e(f"v_or_b32 v{tmp}, v{tmp}, v{tmp+1}")
        e(f"v_cmp_ne_u32 vcc, 0, v{tmp}")
        e("s_mov_b64 exec, vcc")
        e(f"s_cbranch_execz {name}_done")
        e(f"s_sleep {SLP}")
        e(f"s_sub_u32 s{sCNT}, s{sCNT}, 1")
        e(f"s_cmp_lg_u32 s{sCNT}, 0")
        e(f"s_cbranch_scc1 {name}")
        a.label(name + "_done")
        e("s_mov_b64 exec, -1")

    def layernorm():
        D_ = [[8, 9, 10, 11, 12], [14, 15, 16, 17, 18]]
        X = [[20 + i for i in range(10)], [30 + i for i in range(10)]]
        for b in range(2):
            for i in range(5):
                e(f"v_lshlrev_b32 v{X[b][2*i]}, 16, v{D_[b][i]}")
                e(f"v_and_b32 v{X[b][2*i+1]}, 0xffff0000, v{D_[b][i]}")
        for b in range(2):
            e(f"v_add_f32 v{40+b}, v{X[b][0]}, v{X[b][1]}")
        for i in range(2, 10):
            for b in range(2): e(f"v_add_f32 v{40+b}, v{40+b}, v{X[b][i]}")
        allreduce([40, 41], "v_add_f32", [46, 47], [0, 1, 2, "m", 4, 5])
        e(f"s_mov_b32 s{sT0}, 0x3acccccd")
        for b in range(2): e(f"v_mul_f32 v{40+b}, s{sT0}, v{40+b}")
        for b in range(2):
            e(f"v_sub_f32 v{48+b}, v{X[b][0]}, v{40+b}")
        for b in range(2):
            e(f"v_mul_f32 v{42+b}, v{48+b}, v{48+b}")
        for i in range(1, 10):
            for b in range(2): e(f"v_sub_f32 v{48+2*(i&1)+b}, v{X[b][i]}, v{40+b}")
            for b in range(2): e(f"v_fmac_f32 v{42+b}, v{48+2*(i&1)+b}, v{48+2*(i&1)+b}")
        allreduce([42, 43], "v_add_f32", [46, 47], [0, 1, 2, "m", 4, 5])
        for b in range(2): e(f"v_mul_f32 v{42+b}, s{sT0}, v{42+b}")
        e("v_cvt_pk_bf16_f32 v46, v40, v41")
        e("v_cvt_pk_bf16_f32 v47, v42, v43")
        e("v_lshlrev_b32 v40, 16, v46"); e("v_and_b32 v41, 0xffff0000, v46")
        e("v_lshlrev_b32 v42, 16, v47"); e("v_and_b32 v43, 0xffff0000, v47")
        e("v_add_f32 v42, 0x3727c5ac, v42"); e("v_add_f32 v43, 0x3727c5ac, v43")
        e("v_cvt_pk_bf16_f32 v46, v42, v43")
        e("v_lshlrev_b32 v42, 16, v46"); e("v_and_b32 v43, 0xffff0000, v46")
        e("v_sqrt_f32 v42, v42"); e("v_sqrt_f32 v43, v43")
        e("v_cvt_pk_bf16_f32 v46, v42, v43")
        e("v_lshlrev_b32 v42, 16, v46"); e("v_and_b32 v43, 0xffff0000, v46")
        e("v_rcp_f32 v42, v42"); e("v_rcp_f32 v43, v43")
        e(f"v_mul_u32_u24 v5, 20, v{vLANE}")
        for i in range(5):
            for b in range(2):
                x0, x1 = X[b][2*i], X[b][2*i+1]
                e(f"v_sub_f32 v{x0}, v{x0}, v{40+b}"); e(f"v_sub_f32 v{x1}, v{x1}, v{40+b}")
            for b in range(2):
                x0, x1 = X[b][2*i], X[b][2*i+1]
                e(f"v_cvt_pk_bf16_f32 v{46+b}, v{x0}, v{x1}")
            for b in range(2):
                x0, x1 = X[b][2*i], X[b][2*i+1]
                e(f"v_lshlrev_b32 v{x0}, 16, v{46+b}"); e(f"v_and_b32 v{x1}, 0xffff0000, v{46+b}")
            for b in range(2):
                x0, x1 = X[b][2*i], X[b][2*i+1]
                e(f"v_mul_f32 v{x0}, v{x0}, v{42+b}"); e(f"v_mul_f32 v{x1}, v{x1}, v{42+b}")
            for b in range(2):
                x0, x1 = X[b][2*i], X[b][2*i+1]
                e(f"v_cvt_pk_bf16_f32 v{x0}, v{x0}, v{x1}")
            for b in range(2):
                e(f"ds_write_b32 v5, v{X[b][2*i]} offset:{XN + 1280*b + 4*i}")

    def xp_read(nrows, base_sgpr=None):
        e(f"v_lshrrev_b32 v6, 3, v{vLANE}")
        e(f"v_mul_u32_u24 v6, {nrows*8}, v6")
        e(f"s_mul_i32 s{sT0}, s{sWAVE}, {nrows*2}")
        if base_sgpr is not None: e(f"s_add_u32 s{sT0}, s{sT0}, s{base_sgpr}")
        e(f"v_add_u32 v6, s{sT0}, v6")
        e("s_waitcnt lgkmcnt(0)")
        n = nrows // 2
        for b in range(2):
            for p in range(n):
                e(f"ds_read_b32 v{XP+10*b+p}, v6 offset:{XN + 1280*b + 4*p}")

    def xloads():
        e(f"v_mul_u32_u24 v4, 20, v{vLANE}")
        e(f"buffer_load_dwordx4 v[8:11], v4, {srd(sX)}, 0 offen")
        e(f"buffer_load_dword v12, v4, {srd(sX)}, 0 offen offset:16")
        e(f"buffer_load_dwordx4 v[14:17], v4, {srd(sX)}, 0 offen offset:1280")
        e(f"buffer_load_dword v18, v4, {srd(sX)}, 0 offen offset:1296")

    def unit_addr(RS, nrows, vdst):
        e(f"v_lshrrev_b32 v6, 3, v{vLANE}")
        e(f"v_mul_u32_u24 v6, {nrows*4}, v6")
        e(f"s_mul_i32 s{sT0}, s{sWAVE}, {nrows}")
        e(f"v_add_u32 v6, s{sT0}, v6")
        e(f"s_mov_b32 s{sT0}, {RS}")
        e(f"v_mul_lo_u32 v6, v6, s{sT0}")
        e(f"v_and_b32 v7, 7, v{vLANE}")
        e(f"v_lshl_add_u32 v{vdst}, v7, 4, v6")

    def sel_ops(src, odd, d):
        for b in range(2):
            if not odd:
                e(f"v_and_b32 v{d+2*b}, 0xffff, v{src[b]}")
                e(f"v_lshlrev_b32 v{d+2*b+1}, 16, v{src[b]}")
            else:
                e(f"v_lshrrev_b32 v{d+2*b}, 16, v{src[b]}")
                e(f"v_and_b32 v{d+2*b+1}, 0xffff0000, v{src[b]}")

    def mac16(W, A, sel):
        for dd in range(4):
            for b in range(2):
                e(f"v_dot2c_f32_bf16 v{A+8*b+2*dd}, v{W+dd}, v{sel+2*b}")
                e(f"v_dot2c_f32_bf16 v{A+8*b+2*dd+1}, v{W+dd}, v{sel+2*b+1}")

    def unit_reduce(A, ldsbase):
        swapred([(A+i, A+8+i) for i in range(8)], 5)
        swapred([(A+i, A+4+i) for i in range(4)], 4)
        allreduce([A, A+1, A+2, A+3], "v_add_f32", None, [3])
        e(f"v_lshrrev_b32 v6, 5, v{vLANE}"); e("v_lshlrev_b32 v6, 8, v6")
        e(f"v_and_b32 v7, 7, v{vLANE}"); e("v_lshl_add_u32 v6, v7, 5, v6")
        e(f"v_bfe_u32 v7, v{vLANE}, 4, 1"); e("v_lshl_add_u32 v6, v7, 4, v6")
        e(f"s_lshl_b32 s{sT0}, s{sWAVE}, 9")
        e(f"v_add_u32 v6, s{sT0}, v6")
        e(f"ds_write_b128 v6, v[{A}:{A+3}] offset:{ldsbase}")

    def kv_loads(slot, t):
        e(f"s_lshr_b32 s{sT0}, s{t}, 9"); e(f"s_mul_i32 s{sT0}, s{sT0}, 50331648")
        e(f"s_and_b32 s{sT1}, s{t}, 511"); e(f"s_mul_i32 s{sT1}, s{sT1}, 3072")
        e(f"s_add_u32 s{sT0}, s{sT0}, s{sT1}")
        e(f"s_cmp_ge_u32 s{t}, 1024"); e(f"s_cselect_b32 s{sT0}, 0xf0000000, s{sT0}")
        e(f"v_add_u32 v{vOFF}, s{sT0}, v{vKV}")
        b = RING + 24 * slot
        for s in range(3): e(f"buffer_load_dwordx4 v[{b+4*s}:{b+4*s+3}], v{vOFF}, {srd(sK)}, 0 offen offset:{128*s}{nt}")
        for s in range(3): e(f"buffer_load_dwordx4 v[{b+12+4*s}:{b+12+4*s+3}], v{vOFF}, {srd(sV)}, 0 offen offset:{128*s}{nt}")

    hdr = open("recurrent_scan__mha_block_cached__geglu_ffn__decode.s.ref").read().split("\n")
    out = []
    for l in hdr:
        if not l.startswith(";"): break
        if "@launch" in l or "Override" in l or "grid=ceil" in l: continue
        out.append(l)
    out.append(f"; @launch grid=({NWG},1,1) block=(256,1,1) lds={LDS_BYTES}")
    out += ['.amdgcn_target "amdgcn-amd-amdhsa--gfx950"', ".text", f".globl {KNAME}", ".p2align 8", f".type {KNAME},@function", f"{KNAME}:"]

    e(f"s_cmp_ge_u32 s2, {NWG}"); e("s_cbranch_scc1 L_end")
    stamp()
    if DBGT: e("s_memrealtime s[98:99]")
    e("s_load_dwordx8 s[4:11], s[0:1], 0")
    e("s_load_dwordx2 s[12:13], s[0:1], 32")
    e("s_load_dwordx4 s[24:27], s[0:1], 80")
    e("s_load_dwordx4 s[16:19], s[0:1], 48")
    e("s_load_dwordx4 s[20:23], s[0:1], 64")
    e(f"v_and_b32 v{vLANE}, 63, v0")
    e("v_lshrrev_b32 v2, 6, v0")
    e(f"v_readfirstlane_b32 s{sWAVE}, v2")
    e(f"s_and_b32 s{sR}, s2, 7")
    e(f"s_lshr_b32 s{sH}, s2, 3")
    e(f"s_lshl_b32 s{sT1}, s{sR}, 2"); e(f"s_add_u32 s{sH}, s{sH}, s{sT1}"); e(f"s_and_b32 s{sH}, s{sH}, 31")
    e(f"s_lshr_b32 s{sT1}, s{sH}, 2"); e(f"s_sub_u32 s{sR}, s{sR}, s{sT1}"); e(f"s_add_u32 s{sR}, s{sR}, 7"); e(f"s_and_b32 s{sR}, s{sR}, 7")
    e("s_lshr_b32 s94, s2, 3"); e("s_sub_u32 s94, s94, 3")
    e("s_mul_i32 s95, s94, 43"); e("s_lshr_b32 s95, s95, 8")
    e("s_and_b32 s96, s2, 7"); e("s_lshl_b32 s96, s96, 2"); e("s_add_u32 s96, s96, s95")
    e("s_mul_i32 s95, s95, 6"); e("s_sub_u32 s95, s94, s95")
    e("s_cmp_ge_u32 s95, 3"); e("s_cselect_b32 s15, 1, 0")
    e("s_mul_i32 s14, s15, 3"); e("s_sub_u32 s14, s95, s14")
    e(f"s_mov_b32 s{sX+2}, 2560"); e(f"s_mov_b32 s{sX+3}, 0x20000")
    e(f"s_mov_b32 s{sWS+2}, {WS_REC}"); e(f"s_mov_b32 s{sWS+3}, 0x20000")
    e(f"s_mov_b32 s{sOUT+2}, 2560"); e(f"s_mov_b32 s{sOUT+3}, 0x20000")
    e(f"v_mul_u32_u24 v4, 20, v{vLANE}")
    e("s_waitcnt lgkmcnt(0)")
    stamp(2)
    e(f"s_mov_b32 s{sX}, s4"); e(f"s_mov_b32 s{sX+1}, s5")
    e(f"s_load_dword s{sE}, s[26:27], 0")
    e(f"s_mov_b32 s{sWS}, s26"); e(f"s_mov_b32 s{sWS+1}, s27")
    e(f"s_mov_b32 s{sOUT}, s22"); e(f"s_mov_b32 s{sOUT+1}, s23")
    e(f"s_cmp_ge_u32 s2, 256"); e("s_cbranch_scc1 L_ffn")

    e("s_cmp_ge_u32 s94, 24"); e("s_cbranch_scc1 L_setup")
    xloads()
    e(f"s_mul_i32 s{sT0}, s96, 384"); e(f"s_lshl_b32 s{sT1}, s14, 7"); e(f"s_add_u32 s{sT0}, s{sT0}, s{sT1}")
    e(f"s_mul_i32 s{sT1}, s15, {320*12288}"); e(f"s_add_u32 s{sT0}, s{sT0}, s{sT1}")
    e(f"s_add_u32 s{sAUX}, s10, s{sT0}"); e(f"s_addc_u32 s{sAUX+1}, s11, 0")
    e(f"s_mov_b32 s{sAUX+2}, {319*12288+128}"); e(f"s_mov_b32 s{sAUX+3}, 0x20000")
    unit_addr(12288, 10, 4)
    e(f"s_mov_b32 s{sT1}, 0")
    for i in range(10):
        e(f"buffer_load_dwordx4 v[{WQ+4*i}:{WQ+4*i+3}], v4, {srd(sAUX)}, s{sT1} offen{nt}")
        if i < 9: e(f"s_add_u32 s{sT1}, s{sT1}, 12288")
    a.label("L_setup")
    e(f"s_mul_i32 s{sT1}, s{sH}, 1572864")
    e(f"s_add_u32 s{sK}, s6, s{sT1}"); e(f"s_addc_u32 s{sK+1}, s7, 0"); e(f"s_mov_b32 s{sK+3}, 0x20000")
    e(f"s_add_u32 s{sV}, s8, s{sT1}"); e(f"s_addc_u32 s{sV+1}, s9, 0"); e(f"s_mov_b32 s{sV+3}, 0x20000")
    e(f"s_cmp_eq_u32 s{sWAVE}, 0")
    e(f"s_cselect_b32 s{sK+2}, 0, {KVREC}"); e(f"s_cselect_b32 s{sV+2}, 0, {KVREC}")
    e(f"s_lshl_b32 s{sT1}, s{sH}, 8"); e(f"s_add_u32 s{sT1}, s{sT1}, {CNT}")
    e(f"s_add_u32 s{sCTR}, s26, s{sT1}"); e(f"s_addc_u32 s{sCTR+1}, s27, 0")
    e(f"v_lshrrev_b32 v6, 3, v{vLANE}"); e(f"v_mul_u32_u24 v{vKV}, 384, v6")
    e(f"v_and_b32 v7, 7, v{vLANE}"); e(f"v_lshl_add_u32 v{vKV}, v7, 4, v{vKV}")
    e(f"s_lshl_b32 s{sT0}, s{sR}, 2"); e(f"s_add_u32 s{sT0}, s{sT0}, s{sWAVE}"); e(f"s_mul_i32 s{sT0}, s{sT0}, {NS}")
    for d in range(NS): e(f"s_add_u32 s{sTILE+d}, s{sT0}, {d}")
    e(f"s_or_b32 s{sT0}, s95, s{sWAVE}"); e(f"s_cmp_lg_u32 s{sT0}, 0"); e("s_cbranch_scc1 L_noinit")
    e("s_cmp_ge_u32 s94, 24"); e("s_cbranch_scc1 L_noinit")
    e(f"s_lshl_b32 s{sT1}, s96, 8"); e(f"s_add_u32 s{sT1}, s{sT1}, {CNT}")
    e(f"s_add_u32 s16, s26, s{sT1}"); e(f"s_addc_u32 s17, s27, 0")
    e(f"s_mov_b32 s{sN}, {32*NS}")
    e(f"s_atomic_swap s{sN}, s[16:17], 0 glc")
    a.label("L_noinit")
    e("s_cmp_ge_u32 s94, 24"); e("s_cbranch_scc1 L_nowq")
    stamp(2)
    e("s_waitcnt vmcnt(10)")
    stamp(2)
    layernorm()
    e(f"s_mul_i32 s{sT1}, s15, 640")
    xp_read(10, sT1)
    for d in range(EARLY): kv_loads(d, sTILE + d)
    for i in range(16): e(f"v_mov_b32 v{20+i}, 0")
    e("s_waitcnt lgkmcnt(0)")
    stamp(2)
    for i in range(10):
        e(f"s_waitcnt vmcnt({6*EARLY + 9 - i})")
        sel_ops([XP + (i >> 1), XP + 10 + (i >> 1)], i & 1, 52)
        mac16(WQ + 4*i, 20, 52)
    stamp(2)
    unit_reduce(20, QP)
    e("s_waitcnt lgkmcnt(0)")
    e("s_barrier")
    stamp(2)
    e(f"s_cmp_lg_u32 s{sWAVE}, 0"); e("s_cbranch_scc1 L_kvrest0")
    e(f"v_lshlrev_b32 v6, 3, v{vLANE}")
    for w in range(4): e(f"ds_read_b64 v[{20+2*w}:{21+2*w}], v6 offset:{QP + 512*w}")
    mktag()
    e(f"v_lshrrev_b32 v6, 5, v{vLANE}"); e("v_mul_u32_u24 v6, 3072, v6")
    e(f"v_and_b32 v7, 31, v{vLANE}"); e("v_lshl_add_u32 v6, v7, 5, v6")
    e(f"s_lshl_b32 s{sT0}, s96, 13"); e(f"s_lshl_b32 s{sT1}, s14, 10"); e(f"s_add_u32 s{sT0}, s{sT0}, s{sT1}")
    e(f"s_lshl_b32 s{sT1}, s15, 4"); e(f"s_add_u32 s{sT0}, s{sT0}, s{sT1}")
    e(f"s_add_u32 s{sT0}, s{sT0}, {QBOX}")
    e("s_waitcnt vmcnt(0) lgkmcnt(0)")
    e("v_add_f32 v20, v20, v22"); e("v_add_f32 v21, v21, v23"); e("v_add_f32 v24, v24, v26"); e("v_add_f32 v25, v25, v27")
    e("v_add_f32 v40, v20, v24"); e("v_add_f32 v42, v21, v25")
    e(f"v_mov_b32 v41, s{sTAG}"); e(f"v_mov_b32 v43, s{sTAG}")
    e(f"buffer_store_dwordx4 v[40:43], v6, {srd(sWS)}, s{sT0} offen {SCS}")
    if PUB1: e("s_barrier")
    e("s_branch L_qwait")
    a.label("L_kvrest0")
    if PUB1: e("s_barrier")
    e("s_branch L_kvrest")
    a.label("L_nowq")
    e(f"s_cmp_eq_u32 s{sWAVE}, 0"); e("s_cbranch_scc1 L_qwait")
    for d in range(EARLY): kv_loads(d, sTILE + d)
    a.label("L_kvrest")
    for d in range(EARLY, PRE):
        if STG: e(f"s_waitcnt vmcnt({6*(STG-1)})")
        kv_loads(d, sTILE + d)
    a.label("L_qwait")
    stamp(2)
    e("s_waitcnt lgkmcnt(0)")
    mktag()
    e(f"s_cmp_lg_u32 s{sWAVE}, 0"); e("s_cbranch_scc1 L_qbar")
    e("s_setprio 2")
    e(f"s_lshl_b32 s{sT0}, s{sH}, 13"); e(f"s_add_u32 s{sT0}, s{sT0}, {QBOX}")
    e(f"s_add_u32 s{sT1}, s{sT0}, 3072")
    e(f"v_lshlrev_b32 v6, 5, v{vLANE}")
    e(f"v_and_b32 v7, 31, v{vLANE}"); e("v_lshlrev_b32 v7, 5, v7"); e("v_add_u32 v7, 2048, v7")
    loads = []
    for b, so in ((0, sT0), (1, sT1)):
        base = 60 + 16 * b
        loads.append(f"buffer_load_dwordx4 v[{base}:{base+3}], v6, {srd(sWS)}, s{so} offen {SCL}")
        loads.append(f"buffer_load_dwordx4 v[{base+4}:{base+7}], v6, {srd(sWS)}, s{so} offen offset:16 {SCL}")
        loads.append(f"buffer_load_dwordx4 v[{base+8}:{base+11}], v7, {srd(sWS)}, s{so} offen {SCL}")
        loads.append(f"buffer_load_dwordx4 v[{base+12}:{base+15}], v7, {srd(sWS)}, s{so} offen offset:16 {SCL}")
    lane_poll("L_pq", loads, [61 + 2*i for i in range(16)], 52)
    e(f"v_lshlrev_b32 v6, 2, v{vLANE}")
    e(f"v_and_b32 v7, 31, v{vLANE}"); e("v_lshlrev_b32 v7, 2, v7")
    for b in range(2):
        base = 60 + 16 * b
        e(f"v_add_f32 v{base}, v{base}, v{base+4}"); e(f"v_add_f32 v{base+2}, v{base+2}, v{base+6}")
        e(f"v_add_f32 v{base+8}, v{base+8}, v{base+12}"); e(f"v_add_f32 v{base+10}, v{base+10}, v{base+14}")
        e(f"v_cvt_pk_bf16_f32 v{base}, v{base}, v{base+2}"); e(f"v_cvt_pk_bf16_f32 v{base+8}, v{base+8}, v{base+10}")
        e(f"ds_write_b32 v6, v{base} offset:{Q + 384*b}")
        e(f"ds_write_b32 v7, v{base+8} offset:{Q + 384*b + 256}")
    e("s_waitcnt lgkmcnt(0)")
    e("s_setprio 0")
    stamp(2)
    e(f"s_mov_b32 s{sK+2}, {KVREC}"); e(f"s_mov_b32 s{sV+2}, {KVREC}")
    a.label("L_qbar")
    e("s_barrier")
    stamp()
    e(f"s_mov_b32 s{sN}, {1 if CH1 else DL}")
    e(f"v_and_b32 v7, 7, v{vLANE}"); e("v_lshlrev_b32 v6, 4, v7")
    for s in range(3): e(f"ds_read_b128 v[{vQ0+4*s}:{vQ0+4*s+3}], v6 offset:{Q + 128*s}")
    e(f"s_cmp_lg_u32 s{sWAVE}, 0"); e("s_cbranch_scc1 L_w0kv")
    for d in range(min(PRE, NS)): kv_loads(d, sTILE + d)
    a.label("L_w0kv")
    for d in range(min(PRE, NS), NS): kv_loads(d, sTILE + d)
    e(f"s_cmp_lt_u32 s{sR}, 3"); e("s_cbranch_scc1 L_nowo")
    e(f"s_mul_i32 s{sT0}, s{sH}, {192*1280}"); e(f"s_sub_u32 s{sT1}, s{sR}, 3"); e(f"s_lshl_b32 s{sT1}, s{sT1}, 8")
    e(f"s_add_u32 s{sT0}, s{sT0}, s{sT1}")
    e(f"s_add_u32 s{sAUX2}, s12, s{sT0}"); e(f"s_addc_u32 s{sAUX2+1}, s13, 0")
    e(f"s_mov_b32 s{sAUX2+2}, {191*1280+256}"); e(f"s_mov_b32 s{sAUX2+3}, 0x20000")
    e(f"v_lshrrev_b32 v6, 4, v{vLANE}"); e("v_mul_u32_u24 v6, 12, v6")
    e(f"s_mul_i32 s{sT0}, s{sWAVE}, 48"); e(f"v_add_u32 v6, s{sT0}, v6")
    e("v_mul_u32_u24 v6, 1280, v6")
    e(f"v_and_b32 v7, 15, v{vLANE}"); e("v_lshl_add_u32 v6, v7, 4, v6")
    if not WOLATE_DEFAULT:
        pass
    e(f"s_mov_b32 s{sT1}, 0")
    e(f"s_mul_i32 s{sT0}, s{sWAVE}, 12288"); e(f"s_add_u32 s{sT0}, s{sT0}, {WOL}")
    for i in range(12):
        e(f"s_mov_b32 m0, s{sT0}"); e("s_nop 0")
        e(f"buffer_load_dwordx4 v6, {srd(sAUX2)}, s{sT1} offen{nt} lds")
        if i < 11: e(f"s_add_u32 s{sT1}, s{sT1}, 1280"); e(f"s_add_u32 s{sT0}, s{sT0}, 1024")
    a.label("L_nowo")
    for i in range(24): e(f"v_mov_b32 v{vACC0+i}, 0")
    e(f"v_mov_b32 v{vM0}, 0xff000000"); e(f"v_mov_b32 v{vL0}, 0")
    e(f"v_lshlrev_b32 v6, 2, v{vLANE}"); e(f"s_mul_i32 s{sT0}, s{sWAVE}, 768"); e(f"v_add_u32 v6, s{sT0}, v6")
    for c in range(2):
        for k in range(3): e(f"ds_write_b32 v6, v{vL0} offset:{PART + 3072*c + 256*k}")
    e(f"s_lshl_b32 s{sT0}, s{sWAVE}, 3"); e(f"v_mov_b32 v7, s{sT0}")
    e(f"ds_write_b64 v7, v[{vM0}:{vL0}] offset:{STAT}"); e(f"ds_write_b64 v7, v[{vM0}:{vL0}] offset:{STAT+32}")
    e(f"s_mov_b32 s{sLIM}, 512"); e(f"s_mov_b32 s{sPOFF}, 0")
    e("s_mov_b32 s14, 0x3d93cd3a"); e("s_mov_b32 s15, 0x3fb8aa3b")
    e("s_waitcnt lgkmcnt(0)")
    e(f"s_atomic_add s{sN}, s[{sCTR}:{sCTR+1}], 0 glc")

    def tile_compute(slot, q, acc, m, l, waitV):
        b = RING + 24 * slot
        e(f"v_mov_b32 v46, 0"); e("v_mov_b32 v47, 0")
        for i in range(12): e(f"v_dot2c_f32_bf16 v{46+(i&1)}, v{b+i}, v{q+i}")
        e("v_add_f32 v46, v46, v47")
        allreduce([46], "v_add_f32", None, [0, 1, 2])
        e("v_cvt_pk_bf16_f32 v46, v46, v46"); e("v_and_b32 v46, 0xffff0000, v46")
        e("v_mul_f32 v46, s14, v46")
        e("v_cvt_pk_bf16_f32 v46, v46, v46"); e("v_and_b32 v46, 0xffff0000, v46")
        e("v_mul_f32 v46, s15, v46")
        e(f"v_max_f32 v47, v{m}, v46")
        e(f"v_sub_f32 v48, v{m}, v47"); e("v_sub_f32 v49, v46, v47")
        e("v_exp_f32 v48, v48"); e("v_exp_f32 v49, v49")
        e(f"v_mov_b32 v{m}, v47")
        e(f"v_fma_f32 v{l}, v{l}, v48, v49")
        e("v_cvt_pk_bf16_f32 v50, v49, 0"); e("v_lshlrev_b32 v51, 16, v50")
        for i in range(12):
            e(f"v_pk_mul_f32 v[{acc+2*i}:{acc+2*i+1}], v[{acc+2*i}:{acc+2*i+1}], v[48:49] op_sel_hi:[1,0]")
        e(f"s_waitcnt vmcnt({waitV})")
        for i in range(12):
            e(f"v_dot2c_f32_bf16 v{acc+2*i}, v{b+12+i}, v50")
            e(f"v_dot2c_f32_bf16 v{acc+2*i+1}, v{b+12+i}, v51")
    def refill(d):
        if STATIC:
            if first[0]:
                e(f"s_lshl_b32 s{sT0}, s{sR}, 2"); e(f"s_add_u32 s{sT0}, s{sT0}, s{sWAVE}"); e(f"s_mul_i32 s{sT0}, s{sT0}, {DL}")
                e(f"s_add_u32 s{sTILE+d}, s{sT0}, {32*NS + d}")
            else:
                e(f"s_add_u32 s{sTILE+d}, s{sTILE+d}, {32*DL}")
        elif CH1:
            e("s_waitcnt lgkmcnt(0)")
            e(f"s_mov_b32 s{sTILE+d}, s{sN}")
            e(f"s_mov_b32 s{sN}, 1")
            e(f"s_atomic_add s{sN}, s[{sCTR}:{sCTR+1}], 0 glc")
        elif d == 0:
            e("s_waitcnt lgkmcnt(0)")
            e(f"s_mov_b32 s{sTILE}, s{sN}")
            e(f"s_add_u32 s{sNEXT}, s{sN}, 1")
            e(f"s_mov_b32 s{sN}, {DL}")
            e(f"s_atomic_add s{sN}, s[{sCTR}:{sCTR+1}], 0 glc")
        else:
            e(f"s_mov_b32 s{sTILE+d}, s{sNEXT}")
            if d < DL - 1: e(f"s_add_u32 s{sNEXT}, s{sNEXT}, 1")
        kv_loads(d, sTILE + d)
    first = [True]
    order = list(range(NS))
    for d in range(NS):
        younger = len(order) - 1 - order.index(d)
        e(f"s_waitcnt vmcnt({6*younger+3})")
        tile_compute(d, vQ0, vACC0, vM0, vL0, 6*younger)
        order.remove(d)
        if d < DL:
            refill(d); order.append(d)
    first[0] = False
    a.label("L_loop")
    for d in range(DL):
        e(f"s_cmp_ge_u32 s{sTILE+d}, s{sLIM}"); e(f"s_cbranch_scc1 L_sw_{d}")
        a.label(f"L_cont_{d}")
        e(f"s_waitcnt vmcnt({6*(DL-1)+3})")
        tile_compute(d, vQ0, vACC0, vM0, vL0, 6*(DL-1))
        refill(d)
    e("s_branch L_loop")
    for d in range(DL):
        a.label(f"L_sw_{d}")
        e(f"s_cmp_ge_u32 s{sTILE+d}, 1024"); e("s_cbranch_scc1 L_loopend")
        e(f"s_call_b64 s[{sRET1}:{sRET1+1}], L_switch")
        e(f"s_branch L_cont_{d}")
    a.label("L_switch")
    e(f"s_call_b64 s[{sRET2}:{sRET2+1}], L_flush")
    for i in range(24): e(f"v_mov_b32 v{vACC0+i}, 0")
    e(f"v_mov_b32 v{vM0}, 0xff000000"); e(f"v_mov_b32 v{vL0}, 0")
    e(f"v_and_b32 v7, 7, v{vLANE}"); e("v_lshlrev_b32 v6, 4, v7")
    for s_ in range(3): e(f"ds_read_b128 v[{vQ0+4*s_}:{vQ0+4*s_+3}], v6 offset:{Q + 384 + 128*s_}")
    e(f"s_mov_b32 s{sLIM}, 1024"); e(f"s_mov_b32 s{sPOFF}, 3072")
    e("s_waitcnt lgkmcnt(0)")
    e(f"s_setpc_b64 s[{sRET1}:{sRET1+1}]")
    a.label("L_flush")
    acc = vACC0
    e(f"v_mov_b32 v46, v{vM0}")
    e(f"v_and_b32 v6, 7, v{vLANE}"); e("v_lshlrev_b32 v6, 5, v6")
    allreduce([46], "v_max_f32", [47], [3])
    e(f"v_lshrrev_b32 v7, 5, v{vLANE}"); e("v_lshl_add_u32 v6, v7, 4, v6")
    allreduce([46], "v_max_f32", [47], [4])
    e(f"v_bfe_u32 v7, v{vLANE}, 4, 1"); e("v_lshl_add_u32 v6, v7, 3, v6")
    allreduce([46], "v_max_f32", [47], [5])
    e(f"s_mul_i32 s{sT0}, s{sWAVE}, 768"); e(f"s_add_u32 s{sT0}, s{sT0}, s{sPOFF}")
    e(f"v_sub_f32 v48, v{vM0}, v46")
    e(f"v_add_u32 v6, s{sT0}, v6")
    e("v_exp_f32 v48, v48")
    e(f"s_lshl_b32 s{sT0}, s{sWAVE}, 3"); e(f"s_lshr_b32 s{sT1}, s{sPOFF}, 6"); e(f"s_and_b32 s{sT1}, s{sT1}, 32"); e(f"s_add_u32 s{sT0}, s{sT0}, s{sT1}")
    e(f"v_mul_f32 v47, v{vL0}, v48")
    for i in range(12):
        e(f"v_pk_mul_f32 v[{acc+2*i}:{acc+2*i+1}], v[{acc+2*i}:{acc+2*i+1}], v[48:49] op_sel_hi:[1,0]")
    prs5 = [(acc+8*s_+i, acc+8*s_+4+i) for s_ in range(3) for i in range(4)]
    e("v_add_f32_dpp v47, v47, v47 row_ror:8 row_mask:0xf bank_mask:0xf")
    for x, y in prs5: e(f"v_permlane32_swap_b32 v{x}, v{y}")
    e("v_mov_b32 v49, v47")
    for x, y in prs5: e(f"v_add_f32 v{x}, v{x}, v{y}")
    e("v_permlane16_swap_b32 v47, v49")
    prs4 = [(acc+8*s_+i, acc+8*s_+2+i) for s_ in range(3) for i in range(2)]
    for x, y in prs4: e(f"v_permlane16_swap_b32 v{x}, v{y}")
    e("v_add_f32 v47, v47, v49")
    for x, y in prs4: e(f"v_add_f32 v{x}, v{x}, v{y}")
    e("v_mov_b32 v49, v47")
    e(f"v_mov_b32 v7, s{sT0}")
    allreduce([acc+8*s_+i for s_ in range(3) for i in range(2)], "v_add_f32", None, [3])
    e("v_permlane32_swap_b32 v47, v49")
    for s_ in range(3): e(f"ds_write_b64 v6, v[{acc+8*s_}:{acc+8*s_+1}] offset:{PART + 256*s_}")
    e("v_add_f32 v47, v47, v49")
    e(f"ds_write_b64 v7, v[46:47] offset:{STAT}")
    e(f"s_setpc_b64 s[{sRET2}:{sRET2+1}]")
    a.label("L_loopend")
    stamp()
    e(f"s_call_b64 s[{sRET2}:{sRET2+1}], L_flush")
    e("s_waitcnt lgkmcnt(0)")
    stamp(3)
    e("s_barrier")
    e("v_and_b32 v5, 127, v0"); e("v_lshrrev_b32 v4, 7, v0")
    e("v_cmp_gt_u32 vcc, 96, v5"); e("s_and_saveexec_b64 s[16:17], vcc"); e("s_cbranch_execz L_pub_done")
    e("v_mul_u32_u24 v6, 3072, v4"); e("v_lshl_add_u32 v6, v5, 3, v6")
    e("v_lshlrev_b32 v7, 5, v4")
    for w in range(4): e(f"ds_read_b64 v[{20+2*w}:{21+2*w}], v6 offset:{PART + 768*w}")
    e(f"ds_read_b128 v[28:31], v7 offset:{STAT}"); e(f"ds_read_b128 v[32:35], v7 offset:{STAT+16}")
    e("v_lshlrev_b32 v6, 11, v4"); e("v_lshl_add_u32 v6, v5, 4, v6")
    e(f"s_lshl_b32 s{sT0}, s{sH}, 3"); e(f"s_add_u32 s{sT0}, s{sT0}, s{sR}"); e(f"s_lshl_b32 s{sT0}, s{sT0}, 12"); e(f"s_add_u32 s{sT0}, s{sT0}, {OBOX}")
    e("v_and_b32 v5, 1, v5"); e("v_cmp_eq_u32 vcc, 1, v5")
    e(f"v_mov_b32 v43, s{sTAG}")
    e("s_waitcnt lgkmcnt(0)")
    e("v_max_f32 v36, v28, v30"); e("v_max3_f32 v36, v36, v32, v34")
    for w in range(4): e(f"v_sub_f32 v{28+2*w}, v{28+2*w}, v36")
    for w in range(4): e(f"v_exp_f32 v{28+2*w}, v{28+2*w}")
    e("v_mul_f32 v40, v20, v28"); e("v_mul_f32 v41, v21, v28"); e("v_mul_f32 v37, v29, v28")
    for w in range(1, 4):
        e(f"v_fmac_f32 v40, v{20+2*w}, v{28+2*w}"); e(f"v_fmac_f32 v41, v{21+2*w}, v{28+2*w}"); e(f"v_fmac_f32 v37, v{29+2*w}, v{28+2*w}")
    e("v_cndmask_b32 v42, v36, v37, vcc")
    e(f"buffer_store_dwordx4 v[40:43], v6, {srd(sWS)}, s{sT0} offen {SCS}")
    a.label("L_pub_done")
    e("s_mov_b64 exec, s[16:17]")
    stamp()
    e(f"s_cmp_lt_u32 s{sR}, 3"); e("s_cbranch_scc1 L_final")
    e(f"v_lshlrev_b32 v6, 4, v{vLANE}"); e(f"s_mul_i32 s{sT0}, s{sWAVE}, 12288"); e(f"v_add_u32 v6, s{sT0}, v6")
    for i in range(12): e(f"ds_read_b128 v[{100+4*i}:{103+4*i}], v6 offset:{WOL + 1024*i}")
    e(f"v_and_b32 v24, 7, v{vLANE}")
    e("v_and_b32 v25, 1, v24")
    e("v_lshrrev_b32 v24, 1, v24")
    e("v_cmp_eq_u32 vcc, 1, v25")
    e("v_mov_b32 v26, 0x0c0c0100"); e("v_mov_b32 v27, 0x01000c0c"); e("v_mov_b32 v28, 0x0c0c0302"); e("v_mov_b32 v29, 0x03020c0c")
    e("v_cndmask_b32 v26, v26, v27, vcc"); e("v_cndmask_b32 v28, v28, v29, vcc")
    e("v_mov_b32 v27, 0x0c0c0c0c")
    for r in range(4):
        e(f"v_cmp_eq_u32 vcc, {r}, v24")
        e(f"v_cndmask_b32 v{148+r}, v27, v26, vcc"); e(f"v_cndmask_b32 v{152+r}, v27, v28, vcc")
    e(f"v_lshrrev_b32 v6, 4, v{vLANE}"); e("v_mul_u32_u24 v6, 24, v6")
    e(f"v_bfe_u32 v7, v{vLANE}, 3, 1"); e("v_mul_u32_u24 v7, 384, v7"); e("v_add_u32 v6, v6, v7")
    e(f"s_mul_i32 s{sT0}, s{sWAVE}, 96"); e(f"v_add_u32 v156, s{sT0}, v6")
    e(f"v_lshrrev_b32 v6, 5, v{vLANE}"); e("v_lshlrev_b32 v6, 9, v6")
    e(f"v_and_b32 v7, 15, v{vLANE}"); e("v_lshl_add_u32 v6, v7, 5, v6")
    e(f"v_bfe_u32 v7, v{vLANE}, 4, 1"); e("v_lshl_add_u32 v6, v7, 4, v6")
    e(f"s_lshl_b32 s{sT0}, s{sWAVE}, 10"); e(f"v_add_u32 v157, s{sT0}, v6")
    e(f"s_cmp_eq_u32 s{sWAVE}, 3"); e("s_cbranch_scc1 L_wo_bar")
    e("v_cmp_le_u32 vcc, 96, v0")
    e("v_cndmask_b32 v7, 0, 1, vcc")
    e("v_mul_u32_u24 v5, 96, v7"); e("v_sub_u32 v5, v0, v5")
    e("v_lshlrev_b32 v6, 11, v7")
    e("v_lshl_add_u32 v6, v5, 4, v6")
    e(f"s_lshl_b32 s{sT0}, s{sH}, 15"); e(f"s_add_u32 s{sT0}, s{sT0}, {OBOX}")
    for p in range(8): e(f"s_mov_b64 s[{4+2*p}:{5+2*p}], -1")
    e(f"s_mov_b32 s{sCNT}, {SPIN}")
    a.label("L_p1")
    e(f"s_mov_b32 s{sT1}, s{sT0}")
    for p in range(8):
        e(f"s_mov_b64 exec, s[{4+2*p}:{5+2*p}]"); e(f"s_cbranch_execz L_p1_s{p}")
        e(f"buffer_load_dwordx4 v[{60+4*p}:{63+4*p}], v6, {srd(sWS)}, s{sT1} offen {SCL}")
        a.label(f"L_p1_s{p}")
        if p < 7: e(f"s_add_u32 s{sT1}, s{sT1}, 4096")
    e("s_waitcnt vmcnt(0)")
    for p in range(8):
        e(f"s_mov_b64 exec, s[{4+2*p}:{5+2*p}]"); e(f"s_cbranch_execz L_p1_c{p}")
        e(f"v_cmp_ne_u32 s[{4+2*p}:{5+2*p}], s{sTAG}, v{63+4*p}")
        a.label(f"L_p1_c{p}")
    e("s_mov_b64 exec, -1")
    e("s_nop 1")
    e("s_or_b64 s[20:21], s[4:5], s[6:7]")
    for p in range(2, 8): e(f"s_or_b64 s[20:21], s[20:21], s[{4+2*p}:{5+2*p}]")
    e("s_cbranch_scc0 L_p1_done")
    e(f"s_sleep {SLP}")
    e(f"s_sub_u32 s{sCNT}, s{sCNT}, 1"); e(f"s_cmp_lg_u32 s{sCNT}, 0"); e("s_cbranch_scc1 L_p1")
    a.label("L_p1_done")
    stamp(3)
    if PROF == 3: e(f"s_sub_u32 s97, {SPIN}, s{sCNT}")
    e("v_and_b32 v8, 1, v5"); e("v_cmp_eq_u32 vcc, 1, v8")
    for p in range(8): e(f"v_mov_b32_dpp v{63+4*p}, v{62+4*p} quad_perm:[1,0,3,2] row_mask:0xf bank_mask:0xf")
    for p in range(8):
        e(f"v_cndmask_b32 v{8+p}, v{62+4*p}, v{63+4*p}, vcc")
        e(f"v_cndmask_b32 v{62+4*p}, v{63+4*p}, v{62+4*p}, vcc")
    e("v_max3_f32 v36, v8, v9, v10"); e("v_max3_f32 v36, v36, v11, v12"); e("v_max3_f32 v36, v36, v13, v14"); e("v_max_f32 v36, v36, v15")
    for p in range(8): e(f"v_sub_f32 v{8+p}, v{8+p}, v36")
    for p in range(8): e(f"v_exp_f32 v{8+p}, v{8+p}")
    e("v_mul_f32 v40, v60, v8"); e("v_mul_f32 v41, v61, v8"); e("v_mul_f32 v37, v62, v8")
    for p in range(1, 8):
        e(f"v_fmac_f32 v40, v{60+4*p}, v{8+p}"); e(f"v_fmac_f32 v41, v{61+4*p}, v{8+p}"); e(f"v_fmac_f32 v37, v{62+4*p}, v{8+p}")
    e("v_rcp_f32 v37, v37")
    e("v_mul_f32 v40, v40, v37"); e("v_mul_f32 v41, v41, v37")
    e("v_cvt_pk_bf16_f32 v40, v40, v41")
    e("v_mul_u32_u24 v6, 384, v7"); e("v_lshl_add_u32 v6, v5, 2, v6")
    e(f"ds_write_b32 v6, v40 offset:{SEL}")
    a.label("L_wo_bar")
    for i in range(4): e(f"v_mov_b32 v{20+i}, 0")
    e("s_waitcnt lgkmcnt(0)")
    e("s_barrier")
    stamp()
    for p in range(3): e(f"ds_read_b64 v[{60+2*p}:{61+2*p}], v156 offset:{SEL + 8*p}")
    e("s_waitcnt lgkmcnt(0)")
    def aperm(i):
        A = 44 + 4 * (i & 1)
        for r in range(4):
            e(f"v_perm_b32 v{A+r}, v{60 + (i >> 1)}, v{60 + (i >> 1)}, v{(152 if i & 1 else 148) + r}")
    aperm(0)
    for i in range(12):
        if i < 11: aperm(i + 1)
        else: e("s_nop 1")
        A = 44 + 4 * (i & 1)
        e(f"v_mfma_f32_16x16x32_bf16 v[20:23], v[{A}:{A+3}], v[{100+4*i}:{103+4*i}], v[20:23]")
    e("s_nop 7")
    e(f"ds_write_b128 v157, v[20:23] offset:{YP}")
    e("v_lshlrev_b32 v6, 3, v0")
    e(f"s_mul_i32 s{sT0}, s{sH}, 5"); e(f"s_add_u32 s{sT0}, s{sT0}, s{sR}"); e(f"s_sub_u32 s{sT0}, s{sT0}, 3")
    e(f"s_lshl_b32 s{sT0}, s{sT0}, 11"); e(f"s_add_u32 s{sT0}, s{sT0}, {YBOX}")
    e(f"v_mov_b32 v41, s{sTAG}"); e(f"v_mov_b32 v43, s{sTAG}")
    e("s_waitcnt lgkmcnt(0)")
    e("s_barrier")
    e(f"s_cmp_ge_u32 s{sWAVE}, 2"); e("s_cbranch_scc1 L_fin")
    for w in range(4): e(f"ds_read_b64 v[{20+2*w}:{21+2*w}], v6 offset:{YP + 1024*w}")
    e("v_lshlrev_b32 v6, 4, v0")
    e("s_waitcnt lgkmcnt(0)")
    e("v_add_f32 v20, v20, v22"); e("v_add_f32 v21, v21, v23"); e("v_add_f32 v24, v24, v26"); e("v_add_f32 v25, v25, v27")
    e("v_add_f32 v40, v20, v24"); e("v_add_f32 v42, v21, v25")
    e(f"buffer_store_dwordx4 v[40:43], v6, {srd(sWS)}, s{sT0} offen {SCS}")
    stamp(3)
    e("s_branch L_fin")
    a.label("L_final")
    e(f"s_cmp_lg_u32 s{sWAVE}, 0"); e("s_cbranch_scc1 L_fin")
    e(f"s_mul_i32 s14, s{sH}, 3"); e(f"s_add_u32 s14, s14, s{sR}")
    e("s_cmp_ge_u32 s14, 40"); e("s_cbranch_scc1 L_fin")
    e("s_cmp_ge_u32 s14, 20"); e("s_cselect_b32 s15, 1, 0")
    e("s_mul_i32 s16, s15, 20"); e("s_sub_u32 s16, s14, s16")
    e("s_lshr_b32 s17, s16, 2"); e("s_and_b32 s18, s16, 3")
    e("s_mul_i32 s19, s15, 640"); e("s_lshl_b32 s20, s16, 5"); e("s_add_u32 s19, s19, s20")
    e(f"v_and_b32 v7, 7, v{vLANE}"); e("v_lshlrev_b32 v4, 2, v7")
    e(f"v_lshrrev_b32 v5, 5, v{vLANE}"); e("v_lshl_add_u32 v4, v5, 1, v4")
    e(f"v_bfe_u32 v5, v{vLANE}, 4, 1"); e("v_add_u32 v4, v4, v5")
    e("v_add_u32 v4, s19, v4"); e("v_lshlrev_b32 v4, 1, v4")
    e(f"buffer_load_ushort v58, v4, {srd(sX)}, 0 offen")
    e(f"v_lshrrev_b32 v5, 3, v{vLANE}")
    e("v_mul_u32_u24 v6, 10240, v5"); e("v_lshl_add_u32 v6, v7, 5, v6")
    e("s_lshl_b32 s20, s17, 11"); e("s_lshl_b32 s21, s15, 10"); e("s_add_u32 s20, s20, s21"); e("s_lshl_b32 s21, s18, 8"); e("s_add_u32 s20, s20, s21")
    e(f"s_add_u32 s20, s20, {YBOX}")
    e("s_lshl_b32 s21, s19, 3"); e(f"s_add_u32 s21, s21, {FBOX}")
    for i in range(1, 4):
        e(f"s_add_u32 s{4+i}, s20, {81920*i}"); e(f"s_add_u32 s{8+i}, s21, {81920*i}")
    e("s_mov_b32 s4, s20"); e("s_mov_b32 s8, s21")
    def red4(base, n):
        for i in range(1, n):
            for c in range(4): e(f"v_add_f32 v{base+2*c}, v{base+2*c}, v{base+8*i+2*c}")
        swapred([(base, base+4), (base+2, base+6)], 5)
        swapred([(base, base+2)], 4)
        allreduce([base], "v_add_f32", None, [3])
    lds_ = []
    for i in range(3):
        lds_.append(f"buffer_load_dwordx4 v[{100+8*i}:{103+8*i}], v6, {srd(sWS)}, s{8+i} offen {SCL}")
        lds_.append(f"buffer_load_dwordx4 v[{104+8*i}:{107+8*i}], v6, {srd(sWS)}, s{8+i} offen offset:16 {SCL}")
    lane_poll("L_pf", lds_, [101 + 2*k for k in range(12)], 52)
    red4(100, 3)
    e("s_mov_b32 s22, 0xbfb8aa3b")
    e("v_cvt_pk_bf16_f32 v24, v100, v100"); e("v_and_b32 v24, 0xffff0000, v24")
    e("v_mul_f32 v25, s22, v24"); e("v_exp_f32 v25, v25"); e("v_add_f32 v25, 1.0, v25"); e("v_rcp_f32 v25, v25")
    e("v_mul_f32 v24, v24, v25")
    e("v_cvt_pk_bf16_f32 v24, v24, v24"); e("v_and_b32 v24, 0xffff0000, v24")
    e("v_lshlrev_b32 v58, 16, v58")
    stamp(3)
    lds_ = []
    for i in range(4):
        lds_.append(f"buffer_load_dwordx4 v[{60+8*i}:{63+8*i}], v6, {srd(sWS)}, s{4+i} offen {SCL}")
        lds_.append(f"buffer_load_dwordx4 v[{64+8*i}:{67+8*i}], v6, {srd(sWS)}, s{4+i} offen offset:16 {SCL}")
    lane_poll("L_p2", lds_, [61 + 2*k for k in range(16)], 52)
    stamp(3)
    if PROF == 3: e(f"s_sub_u32 s97, {SPIN}, s{sCNT}")
    red4(60, 4)
    e("v_cvt_pk_bf16_f32 v20, v60, v60"); e("v_and_b32 v20, 0xffff0000, v20")
    e("v_mul_f32 v20, v20, v24")
    e("v_cvt_pk_bf16_f32 v20, v20, v20"); e("v_and_b32 v20, 0xffff0000, v20")
    e("v_add_f32 v20, v58, v20")
    e("v_cvt_pk_bf16_f32 v20, v20, v20")
    e(f"buffer_store_short v20, v4, {srd(sOUT)}, 0 offen")
    e("s_cmp_lg_u32 s14, 0"); e("s_cbranch_scc1 L_fin")
    e("s_mov_b64 exec, 1")
    e(f"v_mov_b32 v21, s{sTAG}"); e("v_mov_b32 v22, 0")
    e(f"buffer_store_dword v21, v22, {srd(sWS)}, 0 offen")
    e("s_branch L_fin")

    a.label("L_ffn")
    e("s_setprio 3")
    e("s_sub_u32 s57, s2, 256")
    e(f"s_lshl_b32 s{sT0}, s57, 7")
    e(f"s_add_u32 s{sAUX}, s16, s{sT0}"); e(f"s_addc_u32 s{sAUX+1}, s17, 0"); e(f"s_mov_b32 s{sAUX+2}, {639*3072+128}"); e(f"s_mov_b32 s{sAUX+3}, 0x20000")
    e(f"s_add_u32 s{sAUX2}, s18, s{sT0}"); e(f"s_addc_u32 s{sAUX2+1}, s19, 0"); e(f"s_mov_b32 s{sAUX2+2}, {639*3072+128}"); e(f"s_mov_b32 s{sAUX2+3}, 0x20000")
    e(f"s_mul_i32 s{sT0}, s57, {64*1280}")
    e(f"s_add_u32 s{sK}, s20, s{sT0}"); e(f"s_addc_u32 s{sK+1}, s21, 0"); e(f"s_mov_b32 s{sK+2}, {64*1280}"); e(f"s_mov_b32 s{sK+3}, 0x20000")
    xloads()
    unit_addr(3072, 20, 2)
    e(f"v_lshrrev_b32 v3, 4, v{vLANE}"); e("v_lshlrev_b32 v3, 2, v3")
    e(f"s_lshl_b32 s{sT0}, s{sWAVE}, 4"); e(f"v_add_u32 v3, s{sT0}, v3")
    e("v_mul_u32_u24 v3, 1280, v3")
    e(f"v_and_b32 v7, 15, v{vLANE}"); e("v_lshl_add_u32 v3, v7, 4, v3")
    def fload(n):
        if n < 20:
            e(f"s_mov_b32 s{sT1}, {3072*n}")
            e(f"buffer_load_dwordx4 v[{60+4*n}:{63+4*n}], v2, {srd(sAUX)}, s{sT1} offen{nt}")
        elif n < 40:
            i = n - 20
            e(f"s_mov_b32 s{sT1}, {3072*i}")
            e(f"buffer_load_dwordx4 v[{140+4*i}:{143+4*i}], v2, {srd(sAUX2)}, s{sT1} offen{nt}")
        elif n < 60:
            k = n - 40; i, sg = k // 5, k % 5
            e(f"s_mov_b32 s{sT1}, {1280*i}")
            e(f"buffer_load_dwordx4 v[{60+4*k}:{63+4*k}], v3, {srd(sK)}, s{sT1} offen offset:{256*sg}{nt}")
    for n in range(FLA): fload(n)
    e(f"s_waitcnt vmcnt({FLA})")
    layernorm()
    xp_read(20)
    for i in range(32): e(f"v_mov_b32 v{20+i}, 0")
    e("s_waitcnt lgkmcnt(0)")
    for n in range(40):
        issued = min(60, n + FLA)
        e(f"s_waitcnt vmcnt({issued - n - 1})")
        i = n % 20
        sel_ops([XP + (i >> 1), XP + 10 + (i >> 1)], i & 1, 52)
        mac16((60 if n < 20 else 140) + 4*i, 20 if n < 20 else 36, 52)
        if n + FLA < 60: fload(n + FLA)
    unit_reduce(20, QP)
    unit_reduce(36, UP)
    for n in range(40 + FLA, 60): fload(n)
    e("s_waitcnt lgkmcnt(0)")
    e("s_barrier")
    e(f"s_cmp_ge_u32 s{sWAVE}, 2"); e("s_cbranch_scc1 L_ffn_h")
    e("v_lshlrev_b32 v6, 2, v0")
    for w in range(4):
        e(f"ds_read_b32 v{20+w}, v6 offset:{QP + 512*w}"); e(f"ds_read_b32 v{24+w}, v6 offset:{UP + 512*w}")
    e("s_waitcnt lgkmcnt(0)")
    e("v_add_f32 v20, v20, v21"); e("v_add_f32 v22, v22, v23"); e("v_add_f32 v24, v24, v25"); e("v_add_f32 v26, v26, v27")
    e("v_add_f32 v20, v20, v22"); e("v_add_f32 v24, v24, v26")
    e("v_cvt_pk_bf16_f32 v28, v20, v24")
    e("v_lshlrev_b32 v20, 16, v28"); e("v_and_b32 v24, 0xffff0000, v28")
    e("v_mul_f32 v25, v20, v20"); e("v_mul_f32 v25, v25, v20")
    e("s_mov_b32 s22, 0x3d372713"); e("v_fma_f32 v25, v25, s22, v20")
    e("s_mov_b32 s22, 0xc0135761"); e("v_mul_f32 v25, s22, v25")
    e("v_exp_f32 v25, v25"); e("v_add_f32 v25, 1.0, v25"); e("v_rcp_f32 v25, v25")
    e("v_mul_f32 v20, v20, v25")
    e("v_cvt_pk_bf16_f32 v20, v20, v20"); e("v_and_b32 v20, 0xffff0000, v20")
    e("v_mul_f32 v20, v20, v24")
    e("v_cvt_pk_bf16_f32 v20, v20, v20")
    e("v_lshlrev_b32 v6, 1, v0")
    e(f"ds_write_b16 v6, v20 offset:{H}")
    e("s_waitcnt lgkmcnt(0)")
    a.label("L_ffn_h")
    e("s_barrier")
    e(f"v_lshrrev_b32 v6, 4, v{vLANE}"); e("v_lshlrev_b32 v6, 3, v6")
    e(f"s_lshl_b32 s{sT0}, s{sWAVE}, 5"); e(f"v_add_u32 v6, s{sT0}, v6")
    e(f"ds_read_b64 v[56:57], v6 offset:{H}"); e(f"ds_read_b64 v[58:59], v6 offset:{H+128}")
    for i in range(80): e(f"v_mov_b32 v{140+i}, 0")
    e("s_waitcnt vmcnt(0) lgkmcnt(0)")
    for i in range(4):
        sel_ops([56 + (i >> 1), 58 + (i >> 1)], i & 1, 52)
        for sg in range(5):
            mac16(60 + 20*i + 4*sg, 140 + 16*sg, 52)
    for sg in range(5):
        A = 140 + 16*sg
        swapred([(A+i, A+8+i) for i in range(8)], 5)
        swapred([(A+i, A+4+i) for i in range(4)], 4)
    e(f"v_lshrrev_b32 v6, 5, v{vLANE}"); e("v_mul_u32_u24 v6, 2560, v6")
    e(f"v_and_b32 v7, 15, v{vLANE}"); e("v_lshl_add_u32 v6, v7, 5, v6")
    e(f"v_bfe_u32 v7, v{vLANE}, 4, 1"); e("v_lshl_add_u32 v6, v7, 4, v6")
    e(f"s_mul_i32 s{sT0}, s{sWAVE}, 5120"); e(f"v_add_u32 v6, s{sT0}, v6")
    for sg in range(5): e(f"ds_write_b128 v6, v[{140+16*sg}:{143+16*sg}] offset:{DP + 512*sg}")
    e("s_waitcnt lgkmcnt(0)")
    e("s_barrier")
    mktag()
    e(f"s_mul_i32 s{sT0}, s57, 10240"); e(f"s_add_u32 s{sT0}, s{sT0}, {FBOX}")
    e(f"v_mov_b32 v41, s{sTAG}"); e(f"v_mov_b32 v43, s{sTAG}")
    for q in range(3):
        if q == 2:
            e(f"s_cmp_ge_u32 s{sWAVE}, 2"); e("s_cbranch_scc1 L_fin")
        e(f"v_add_u32 v5, {256*q}, v0"); e("v_lshlrev_b32 v6, 3, v5")
        for w in range(4): e(f"ds_read_b64 v[{20+2*w}:{21+2*w}], v6 offset:{DP + 5120*w}")
        e("s_waitcnt lgkmcnt(0)")
        e("v_add_f32 v20, v20, v22"); e("v_add_f32 v21, v21, v23"); e("v_add_f32 v24, v24, v26"); e("v_add_f32 v25, v25, v27")
        e("v_add_f32 v40, v20, v24"); e("v_add_f32 v42, v21, v25")
        e("v_lshlrev_b32 v6, 4, v5")
        e(f"buffer_store_dwordx4 v[40:43], v6, {srd(sWS)}, s{sT0} offen {SCS}")
        e("s_nop 1")

    a.label("L_fin")
    if DBGT:
        e("s_mov_b64 exec, -1")
        e(f"s_cmp_lg_u32 s{sWAVE}, 0"); e("s_cbranch_scc1 L_end")
        e("s_memrealtime s[100:101]")
        e("s_load_dwordx2 s[4:5], s[0:1], 80")
        e("s_waitcnt lgkmcnt(0)")
        e("s_mov_b32 s6, 256"); e("s_mov_b32 s7, 0x20000")
        e("s_not_b32 s98, s98")
        e("v_mov_b32 v20, s98"); e("v_mov_b32 v21, s100"); e("v_mov_b32 v6, 0")
        e("s_mov_b64 exec, 1")
        e("buffer_atomic_umax v20, v6, s[4:7], 0 offen")
        e("buffer_atomic_umax v21, v6, s[4:7], 0 offen offset:4")
    if PROF:
        stamp()
        n = prof_n[0]
        e("s_mov_b64 exec, -1")
        e(f"s_cmp_lg_u32 s{sWAVE}, 0"); e("s_cbranch_scc1 L_end")
        e("s_waitcnt lgkmcnt(0)")
        e("s_getreg_b32 s14, hwreg(HW_REG_XCC_ID)")
        e(f"s_lshl_b32 s{sT0}, s2, 7"); e(f"s_add_u32 s{sT0}, s{sT0}, {PROFO}")
        e("v_mov_b32 v6, 0")
        e("s_mov_b64 exec, 1")
        for i in range(n):
            e(f"v_mov_b32 v20, s{SP[i]}"); e(f"v_mov_b32 v21, s{SP[i]+1}")
            e(f"buffer_store_dwordx2 v[20:21], v6, {srd(sWS)}, s{sT0} offen offset:{8*i}")
            e("s_nop 1")
        e("v_mov_b32 v20, s14"); e("v_mov_b32 v21, s97")
        e(f"buffer_store_dwordx2 v[20:21], v6, {srd(sWS)}, s{sT0} offen offset:120")
    a.label("L_end")
    e("s_endpgm")
    body = fix_hazards([l for l in a.L if l is not None])
    out += body
    out += ['.section .rodata,"a"', ".p2align 6", f".amdhsa_kernel {KNAME}", "  .amdhsa_next_free_vgpr 256", "  .amdhsa_next_free_sgpr 102",
            "  .amdhsa_accum_offset 256", "  .amdhsa_group_segment_fixed_size 0", "  .amdhsa_kernarg_size 96", "  .amdhsa_user_sgpr_count 2",
            "  .amdhsa_user_sgpr_kernarg_segment_ptr 1", "  .amdhsa_system_sgpr_workgroup_id_x 1", ".end_amdhsa_kernel"]
    return "\n".join(out) + "\n"

WOLATE_DEFAULT = 1
if __name__ == "__main__":
    import json
    kw = json.loads(sys.argv[2]) if len(sys.argv) > 2 else {}
    open(sys.argv[1], "w").write(gen(**kw))

LAST = 5
```

```python
import sys
sys.path.insert(0, "gen")
from asmlib import Asm, fix_hazards

KNAME = "recurrent_scan__mha_block_cached__geglu_ffn__decode_kernel"

XN, QP, UP, Q, PART, STAT, SEL, YP, RED, H = 0, 2560, 4608, 6656, 7424, 13568, 13696, 14464, 18560, 19584
WOL = 19968
DP = WOL
LDS_BYTES = WOL + 49152
CNT, QBOX, OBOX, YBOX, FBOX, PROFO = 0x1000, 0x4000, 0x50000, 0x150000, 0x1A0000, 0x200000
WS_REC = 0x400000
NFFN = 24
FFN_LAST = 1
NWG = NFFN + 256
SPIN = 1 << 17

sK, sV, sAUX, sWS, sX, sOUT, sAUX2 = 28, 32, 36, 40, 44, 48, 52
sWAVE, sH, sR, sTAG, sE, sT0, sT1, sCNT = 56, 57, 58, 60, 61, 62, 63, 3
sTILE = 80
sN, sNEXT = 86, 87
sRET1, sRET2, sLIM, sPOFF, sPH, sPROD = 84, 22, 59, 21, 20, 19
sCTR = 88
vLANE, vKV, vOFF = 1, 3, 2
RING = 60
vQ0, vQ1 = 8, 204
vACC0, vM0, vL0 = 20, 44, 45
vACC1, vM1, vL1 = 216, 240, 241
WQ = 156
XP = 236
KVREC = 50331648 + 1572864

def srd(s): return f"s[{s}:{s+3}]"

def gen(PROF=0, NT=1, FLA=8, STG=2, SLP=1, EARLY=0, DL=2, NS=4, STATIC=0, CH1=1, SCS='sc0 sc1', SCL='sc0 sc1', DBGT=0, MF=1, PUB1=1, PRE=4, WOLATE=3):
    a = Asm(); e = a.e
    nt = " nt" if NT else ""
    prof_n = [0]
    SP = [64, 66, 68, 70, 72, 74, 76, 78, 90, 92, 98, 100, 4, 6]
    def stamp(level=1):
        if (PROF and level == 1) or PROF == level:
            i = prof_n[0]; prof_n[0] += 1
            e(f"s_memrealtime s[{SP[i]}:{SP[i]+1}]")
    def allreduce(regs, op, tmps, bits):
        for bit in bits:
            if bit in (0, 1, 2, 3, "m"):
                mod = {0: "quad_perm:[1,0,3,2]", 1: "quad_perm:[2,3,0,1]", 2: "row_half_mirror", 3: "row_ror:8", "m": "row_mirror"}[bit]
                for r in regs:
                    e(f"{op}_dpp v{r}, v{r}, v{r} {mod} row_mask:0xf bank_mask:0xf")
            else:
                sw = "v_permlane16_swap_b32" if bit == 4 else "v_permlane32_swap_b32"
                for r, t in zip(regs, tmps): e(f"v_mov_b32 v{t}, v{r}")
                for r, t in zip(regs, tmps): e(f"{sw} v{r}, v{t}")
                for r, t in zip(regs, tmps): e(f"{op} v{r}, v{r}, v{t}")
    def swapred(pairs, bit):
        sw = "v_permlane16_swap_b32" if bit == 4 else "v_permlane32_swap_b32"
        for x, y in pairs: e(f"{sw} v{x}, v{y}")
        for x, y in pairs: e(f"v_add_f32 v{x}, v{x}, v{y}")
    def mktag():
        e(f"s_mul_i32 s{sTAG}, s{sE}, 0x9E3779B1"); e(f"s_add_u32 s{sTAG}, s{sTAG}, 0x7F4A7C15")
    def lane_poll(name, loads, tagregs, tmp):
        e(f"s_mov_b32 s{sCNT}, {SPIN}")
        a.label(name)
        for l in loads: e(l)
        e("s_waitcnt vmcnt(0)")
        e(f"v_xor_b32 v{tmp}, s{sTAG}, v{tagregs[0]}")
        for t in tagregs[1:]:
            e(f"v_xor_b32 v{tmp+1}, s{sTAG}, v{t}")
            e(f"v_or_b32 v{tmp}, v{tmp}, v{tmp+1}")
        e(f"v_cmp_ne_u32 vcc, 0, v{tmp}")
        e("s_mov_b64 exec, vcc")
        e(f"s_cbranch_execz {name}_done")
        e(f"s_sleep {SLP}")
        e(f"s_sub_u32 s{sCNT}, s{sCNT}, 1")
        e(f"s_cmp_lg_u32 s{sCNT}, 0")
        e(f"s_cbranch_scc1 {name}")
        a.label(name + "_done")
        e("s_mov_b64 exec, -1")

    def layernorm():
        D_ = [[8, 9, 10, 11, 12], [14, 15, 16, 17, 18]]
        X = [[20 + i for i in range(10)], [30 + i for i in range(10)]]
        for b in range(2):
            for i in range(5):
                e(f"v_lshlrev_b32 v{X[b][2*i]}, 16, v{D_[b][i]}")
                e(f"v_and_b32 v{X[b][2*i+1]}, 0xffff0000, v{D_[b][i]}")
        for b in range(2):
            e(f"v_add_f32 v{40+b}, v{X[b][0]}, v{X[b][1]}")
        for i in range(2, 10):
            for b in range(2): e(f"v_add_f32 v{40+b}, v{40+b}, v{X[b][i]}")
        allreduce([40, 41], "v_add_f32", [46, 47], [0, 1, 2, "m", 4, 5])
        e(f"s_mov_b32 s{sT0}, 0x3acccccd")
        for b in range(2): e(f"v_mul_f32 v{40+b}, s{sT0}, v{40+b}")
        for b in range(2):
            e(f"v_sub_f32 v{48+b}, v{X[b][0]}, v{40+b}")
        for b in range(2):
            e(f"v_mul_f32 v{42+b}, v{48+b}, v{48+b}")
        for i in range(1, 10):
            for b in range(2): e(f"v_sub_f32 v{48+2*(i&1)+b}, v{X[b][i]}, v{40+b}")
            for b in range(2): e(f"v_fmac_f32 v{42+b}, v{48+2*(i&1)+b}, v{48+2*(i&1)+b}")
        allreduce([42, 43], "v_add_f32", [46, 47], [0, 1, 2, "m", 4, 5])
        for b in range(2): e(f"v_mul_f32 v{42+b}, s{sT0}, v{42+b}")
        e("v_cvt_pk_bf16_f32 v46, v40, v41")
        e("v_cvt_pk_bf16_f32 v47, v42, v43")
        e("v_lshlrev_b32 v40, 16, v46"); e("v_and_b32 v41, 0xffff0000, v46")
        e("v_lshlrev_b32 v42, 16, v47"); e("v_and_b32 v43, 0xffff0000, v47")
        e("v_add_f32 v42, 0x3727c5ac, v42"); e("v_add_f32 v43, 0x3727c5ac, v43")
        e("v_cvt_pk_bf16_f32 v46, v42, v43")
        e("v_lshlrev_b32 v42, 16, v46"); e("v_and_b32 v43, 0xffff0000, v46")
        e("v_sqrt_f32 v42, v42"); e("v_sqrt_f32 v43, v43")
        e("v_cvt_pk_bf16_f32 v46, v42, v43")
        e("v_lshlrev_b32 v42, 16, v46"); e("v_and_b32 v43, 0xffff0000, v46")
        e("v_rcp_f32 v42, v42"); e("v_rcp_f32 v43, v43")
        e(f"v_mul_u32_u24 v5, 20, v{vLANE}")
        for i in range(5):
            for b in range(2):
                x0, x1 = X[b][2*i], X[b][2*i+1]
                e(f"v_sub_f32 v{x0}, v{x0}, v{40+b}"); e(f"v_sub_f32 v{x1}, v{x1}, v{40+b}")
            for b in range(2):
                x0, x1 = X[b][2*i], X[b][2*i+1]
                e(f"v_cvt_pk_bf16_f32 v{46+b}, v{x0}, v{x1}")
            for b in range(2):
                x0, x1 = X[b][2*i], X[b][2*i+1]
                e(f"v_lshlrev_b32 v{x0}, 16, v{46+b}"); e(f"v_and_b32 v{x1}, 0xffff0000, v{46+b}")
            for b in range(2):
                x0, x1 = X[b][2*i], X[b][2*i+1]
                e(f"v_mul_f32 v{x0}, v{x0}, v{42+b}"); e(f"v_mul_f32 v{x1}, v{x1}, v{42+b}")
            for b in range(2):
                x0, x1 = X[b][2*i], X[b][2*i+1]
                e(f"v_cvt_pk_bf16_f32 v{x0}, v{x0}, v{x1}")
            for b in range(2):
                e(f"ds_write_b32 v5, v{X[b][2*i]} offset:{XN + 1280*b + 4*i}")

    def xp_read(nrows, base_sgpr=None):
        e(f"v_lshrrev_b32 v6, 3, v{vLANE}")
        e(f"v_mul_u32_u24 v6, {nrows*8}, v6")
        e(f"s_mul_i32 s{sT0}, s{sWAVE}, {nrows*2}")
        if base_sgpr is not None: e(f"s_add_u32 s{sT0}, s{sT0}, s{base_sgpr}")
        e(f"v_add_u32 v6, s{sT0}, v6")
        e("s_waitcnt lgkmcnt(0)")
        n = nrows // 2
        for b in range(2):
            for p in range(n):
                e(f"ds_read_b32 v{XP+10*b+p}, v6 offset:{XN + 1280*b + 4*p}")

    def xloads():
        e(f"v_mul_u32_u24 v4, 20, v{vLANE}")
        e(f"buffer_load_dwordx4 v[8:11], v4, {srd(sX)}, 0 offen")
        e(f"buffer_load_dword v12, v4, {srd(sX)}, 0 offen offset:16")
        e(f"buffer_load_dwordx4 v[14:17], v4, {srd(sX)}, 0 offen offset:1280")
        e(f"buffer_load_dword v18, v4, {srd(sX)}, 0 offen offset:1296")

    def unit_addr(RS, nrows, vdst):
        e(f"v_lshrrev_b32 v6, 3, v{vLANE}")
        e(f"v_mul_u32_u24 v6, {nrows*4}, v6")
        e(f"s_mul_i32 s{sT0}, s{sWAVE}, {nrows}")
        e(f"v_add_u32 v6, s{sT0}, v6")
        e(f"s_mov_b32 s{sT0}, {RS}")
        e(f"v_mul_lo_u32 v6, v6, s{sT0}")
        e(f"v_and_b32 v7, 7, v{vLANE}")
        e(f"v_lshl_add_u32 v{vdst}, v7, 4, v6")

    def sel_ops(src, odd, d):
        for b in range(2):
            if not odd:
                e(f"v_and_b32 v{d+2*b}, 0xffff, v{src[b]}")
                e(f"v_lshlrev_b32 v{d+2*b+1}, 16, v{src[b]}")
            else:
                e(f"v_lshrrev_b32 v{d+2*b}, 16, v{src[b]}")
                e(f"v_and_b32 v{d+2*b+1}, 0xffff0000, v{src[b]}")

    def mac16(W, A, sel):
        for dd in range(4):
            for b in range(2):
                e(f"v_dot2c_f32_bf16 v{A+8*b+2*dd}, v{W+dd}, v{sel+2*b}")
                e(f"v_dot2c_f32_bf16 v{A+8*b+2*dd+1}, v{W+dd}, v{sel+2*b+1}")

    def unit_reduce(A, ldsbase):
        swapred([(A+i, A+8+i) for i in range(8)], 5)
        swapred([(A+i, A+4+i) for i in range(4)], 4)
        allreduce([A, A+1, A+2, A+3], "v_add_f32", None, [3])
        e(f"v_lshrrev_b32 v6, 5, v{vLANE}"); e("v_lshlrev_b32 v6, 8, v6")
        e(f"v_and_b32 v7, 7, v{vLANE}"); e("v_lshl_add_u32 v6, v7, 5, v6")
        e(f"v_bfe_u32 v7, v{vLANE}, 4, 1"); e("v_lshl_add_u32 v6, v7, 4, v6")
        e(f"s_lshl_b32 s{sT0}, s{sWAVE}, 9")
        e(f"v_add_u32 v6, s{sT0}, v6")
        e(f"ds_write_b128 v6, v[{A}:{A+3}] offset:{ldsbase}")

    def kv_loads(slot, t):
        e(f"s_lshr_b32 s{sT0}, s{t}, 9"); e(f"s_mul_i32 s{sT0}, s{sT0}, 50331648")
        e(f"s_and_b32 s{sT1}, s{t}, 511"); e(f"s_mul_i32 s{sT1}, s{sT1}, 3072")
        e(f"s_add_u32 s{sT0}, s{sT0}, s{sT1}")
        e(f"s_cmp_ge_u32 s{t}, 1024"); e(f"s_cselect_b32 s{sT0}, 0xf0000000, s{sT0}")
        e(f"v_add_u32 v{vOFF}, s{sT0}, v{vKV}")
        b = RING + 24 * slot
        for s in range(3): e(f"buffer_load_dwordx4 v[{b+4*s}:{b+4*s+3}], v{vOFF}, {srd(sK)}, 0 offen offset:{128*s}{nt}")
        for s in range(3): e(f"buffer_load_dwordx4 v[{b+12+4*s}:{b+12+4*s+3}], v{vOFF}, {srd(sV)}, 0 offen offset:{128*s}{nt}")

    def wo_dma(lab):
        e(f"s_cmp_lt_u32 s{sR}, 3"); e(f"s_cbranch_scc1 {lab}")
        e(f"s_mul_i32 s{sT0}, s{sH}, {192*1280}"); e(f"s_sub_u32 s{sT1}, s{sR}, 3"); e(f"s_lshl_b32 s{sT1}, s{sT1}, 8")
        e(f"s_add_u32 s{sT0}, s{sT0}, s{sT1}")
        e(f"s_add_u32 s{sAUX2}, s12, s{sT0}"); e(f"s_addc_u32 s{sAUX2+1}, s13, 0")
        e(f"s_mov_b32 s{sAUX2+2}, {191*1280+256}"); e(f"s_mov_b32 s{sAUX2+3}, 0x20000")
        e(f"v_lshrrev_b32 v6, 4, v{vLANE}"); e("v_mul_u32_u24 v6, 12, v6")
        e(f"s_mul_i32 s{sT0}, s{sWAVE}, 48"); e(f"v_add_u32 v6, s{sT0}, v6")
        e("v_mul_u32_u24 v6, 1280, v6")
        e(f"v_and_b32 v7, 15, v{vLANE}"); e("v_lshl_add_u32 v6, v7, 4, v6")
        e(f"s_mov_b32 s{sT1}, 0")
        e(f"s_mul_i32 s{sT0}, s{sWAVE}, 12288"); e(f"s_add_u32 s{sT0}, s{sT0}, {WOL}")
        for i in range(12):
            e(f"s_mov_b32 m0, s{sT0}"); e("s_nop 0")
            e(f"buffer_load_dwordx4 v6, {srd(sAUX2)}, s{sT1} offen{nt} lds")
            if i < 11: e(f"s_add_u32 s{sT1}, s{sT1}, 1280"); e(f"s_add_u32 s{sT0}, s{sT0}, 1024")
        a.label(lab)

    hdr = open("recurrent_scan__mha_block_cached__geglu_ffn__decode.s.ref").read().split("\n")
    out = []
    for l in hdr:
        if not l.startswith(";"): break
        if "@launch" in l or "Override" in l or "grid=ceil" in l: continue
        out.append(l)
    out.append(f"; @launch grid=({NWG},1,1) block=(256,1,1) lds={LDS_BYTES}")
    out += ['.amdgcn_target "amdgcn-amd-amdhsa--gfx950"', ".text", f".globl {KNAME}", ".p2align 8", f".type {KNAME},@function", f"{KNAME}:"]

    e(f"s_cmp_ge_u32 s2, {NWG}"); e("s_cbranch_scc1 L_end")
    stamp()
    if DBGT: e("s_memrealtime s[98:99]")
    e("s_load_dwordx8 s[4:11], s[0:1], 0")
    e("s_load_dwordx2 s[12:13], s[0:1], 32")
    e("s_load_dwordx4 s[24:27], s[0:1], 80")
    e("s_load_dwordx4 s[16:19], s[0:1], 48")
    e("s_load_dwordx4 s[20:23], s[0:1], 64")
    e(f"v_and_b32 v{vLANE}, 63, v0")
    e("v_lshrrev_b32 v2, 6, v0")
    e(f"v_readfirstlane_b32 s{sWAVE}, v2")
    e(f"s_and_b32 s{sR}, s2, 7")
    e(f"s_lshr_b32 s{sH}, s2, 3")
    e(f"s_lshl_b32 s{sT1}, s{sR}, 2"); e(f"s_add_u32 s{sH}, s{sH}, s{sT1}"); e(f"s_and_b32 s{sH}, s{sH}, 31")
    e(f"s_lshr_b32 s{sT1}, s{sH}, 2"); e(f"s_sub_u32 s{sR}, s{sR}, s{sT1}"); e(f"s_add_u32 s{sR}, s{sR}, 7"); e(f"s_and_b32 s{sR}, s{sR}, 7")
    e("s_lshr_b32 s94, s2, 3"); e("s_sub_u32 s94, s94, 3")
    e("s_mul_i32 s95, s94, 43"); e("s_lshr_b32 s95, s95, 8")
    e("s_and_b32 s96, s2, 7"); e("s_lshl_b32 s96, s96, 2"); e("s_add_u32 s96, s96, s95")
    e("s_mul_i32 s95, s95, 6"); e("s_sub_u32 s95, s94, s95")
    e("s_cmp_ge_u32 s95, 3"); e("s_cselect_b32 s15, 1, 0")
    e("s_mul_i32 s14, s15, 3"); e("s_sub_u32 s14, s95, s14")
    e(f"s_mov_b32 s{sX+2}, 2560"); e(f"s_mov_b32 s{sX+3}, 0x20000")
    e(f"s_mov_b32 s{sWS+2}, {WS_REC}"); e(f"s_mov_b32 s{sWS+3}, 0x20000")
    e(f"s_mov_b32 s{sOUT+2}, 2560"); e(f"s_mov_b32 s{sOUT+3}, 0x20000")
    e(f"v_mul_u32_u24 v4, 20, v{vLANE}")
    e("s_waitcnt lgkmcnt(0)")
    stamp(2)
    e(f"s_mov_b32 s{sX}, s4"); e(f"s_mov_b32 s{sX+1}, s5")
    e(f"s_load_dword s{sE}, s[26:27], 0")
    e(f"s_mov_b32 s{sWS}, s26"); e(f"s_mov_b32 s{sWS+1}, s27")
    e(f"s_mov_b32 s{sOUT}, s22"); e(f"s_mov_b32 s{sOUT+1}, s23")
    e(f"s_cmp_ge_u32 s2, 256"); e("s_cbranch_scc1 L_ffn")

    e("s_cmp_ge_u32 s94, 24"); e("s_cbranch_scc1 L_setup")
    xloads()
    e(f"s_mul_i32 s{sT0}, s96, 384"); e(f"s_lshl_b32 s{sT1}, s14, 7"); e(f"s_add_u32 s{sT0}, s{sT0}, s{sT1}")
    e(f"s_mul_i32 s{sT1}, s15, {320*12288}"); e(f"s_add_u32 s{sT0}, s{sT0}, s{sT1}")
    e(f"s_add_u32 s{sAUX}, s10, s{sT0}"); e(f"s_addc_u32 s{sAUX+1}, s11, 0")
    e(f"s_mov_b32 s{sAUX+2}, {319*12288+128}"); e(f"s_mov_b32 s{sAUX+3}, 0x20000")
    unit_addr(12288, 10, 4)
    e(f"s_mov_b32 s{sT1}, 0")
    for i in range(10):
        e(f"buffer_load_dwordx4 v[{WQ+4*i}:{WQ+4*i+3}], v4, {srd(sAUX)}, s{sT1} offen{nt}")
        if i < 9: e(f"s_add_u32 s{sT1}, s{sT1}, 12288")
    a.label("L_setup")
    e(f"s_mul_i32 s{sT1}, s{sH}, 1572864")
    e(f"s_add_u32 s{sK}, s6, s{sT1}"); e(f"s_addc_u32 s{sK+1}, s7, 0"); e(f"s_mov_b32 s{sK+3}, 0x20000")
    e(f"s_add_u32 s{sV}, s8, s{sT1}"); e(f"s_addc_u32 s{sV+1}, s9, 0"); e(f"s_mov_b32 s{sV+3}, 0x20000")
    e(f"s_cmp_eq_u32 s{sWAVE}, 0")
    e(f"s_cselect_b32 s{sK+2}, 0, {KVREC}"); e(f"s_cselect_b32 s{sV+2}, 0, {KVREC}")
    e(f"s_lshl_b32 s{sT1}, s{sH}, 8"); e(f"s_add_u32 s{sT1}, s{sT1}, {CNT}")
    e(f"s_add_u32 s{sCTR}, s26, s{sT1}"); e(f"s_addc_u32 s{sCTR+1}, s27, 0")
    e(f"v_lshrrev_b32 v6, 3, v{vLANE}"); e(f"v_mul_u32_u24 v{vKV}, 384, v6")
    e(f"v_and_b32 v7, 7, v{vLANE}"); e(f"v_lshl_add_u32 v{vKV}, v7, 4, v{vKV}")
    e(f"s_lshl_b32 s{sT0}, s{sR}, 2"); e(f"s_add_u32 s{sT0}, s{sT0}, s{sWAVE}"); e(f"s_mul_i32 s{sT0}, s{sT0}, {NS}")
    for d in range(NS): e(f"s_add_u32 s{sTILE+d}, s{sT0}, {d}")
    e(f"s_or_b32 s{sT0}, s95, s{sWAVE}"); e(f"s_cmp_lg_u32 s{sT0}, 0"); e("s_cbranch_scc1 L_noinit")
    e("s_cmp_ge_u32 s94, 24"); e("s_cbranch_scc1 L_noinit")
    e(f"s_lshl_b32 s{sT1}, s96, 8"); e(f"s_add_u32 s{sT1}, s{sT1}, {CNT}")
    e(f"s_add_u32 s16, s26, s{sT1}"); e(f"s_addc_u32 s17, s27, 0")
    e(f"s_mov_b32 s{sN}, {32*NS}")
    e(f"s_atomic_swap s{sN}, s[16:17], 0 glc")
    a.label("L_noinit")
    e("s_cmp_ge_u32 s94, 24"); e("s_cbranch_scc1 L_nowq")
    stamp(2)
    e("s_waitcnt vmcnt(10)")
    stamp(2)
    layernorm()
    e(f"s_mul_i32 s{sT1}, s15, 640")
    xp_read(10, sT1)
    for d in range(EARLY): kv_loads(d, sTILE + d)
    for i in range(16): e(f"v_mov_b32 v{20+i}, 0")
    e("s_waitcnt lgkmcnt(0)")
    stamp(2)
    for i in range(10):
        e(f"s_waitcnt vmcnt({6*EARLY + 9 - i})")
        sel_ops([XP + (i >> 1), XP + 10 + (i >> 1)], i & 1, 52)
        mac16(WQ + 4*i, 20, 52)
    stamp(2)
    unit_reduce(20, QP)
    e("s_waitcnt lgkmcnt(0)")
    e("s_barrier")
    stamp(2)
    e(f"s_cmp_lg_u32 s{sWAVE}, 0"); e("s_cbranch_scc1 L_kvrest0")
    e(f"v_lshlrev_b32 v6, 3, v{vLANE}")
    for w in range(4): e(f"ds_read_b64 v[{20+2*w}:{21+2*w}], v6 offset:{QP + 512*w}")
    mktag()
    e(f"v_lshrrev_b32 v6, 5, v{vLANE}"); e("v_mul_u32_u24 v6, 3072, v6")
    e(f"v_and_b32 v7, 31, v{vLANE}"); e("v_lshl_add_u32 v6, v7, 5, v6")
    e(f"s_lshl_b32 s{sT0}, s96, 13"); e(f"s_lshl_b32 s{sT1}, s14, 10"); e(f"s_add_u32 s{sT0}, s{sT0}, s{sT1}")
    e(f"s_lshl_b32 s{sT1}, s15, 4"); e(f"s_add_u32 s{sT0}, s{sT0}, s{sT1}")
    e(f"s_add_u32 s{sT0}, s{sT0}, {QBOX}")
    e("s_waitcnt vmcnt(0) lgkmcnt(0)")
    e("v_add_f32 v20, v20, v22"); e("v_add_f32 v21, v21, v23"); e("v_add_f32 v24, v24, v26"); e("v_add_f32 v25, v25, v27")
    e("v_add_f32 v40, v20, v24"); e("v_add_f32 v42, v21, v25")
    e(f"v_mov_b32 v41, s{sTAG}"); e(f"v_mov_b32 v43, s{sTAG}")
    e(f"buffer_store_dwordx4 v[40:43], v6, {srd(sWS)}, s{sT0} offen {SCS}")
    if PUB1: e("s_barrier")
    e("s_branch L_qwait")
    a.label("L_kvrest0")
    if PUB1: e("s_barrier")
    e("s_branch L_kvrest")
    a.label("L_nowq")
    e(f"s_cmp_eq_u32 s{sWAVE}, 0"); e("s_cbranch_scc1 L_qwait")
    for d in range(EARLY): kv_loads(d, sTILE + d)
    a.label("L_kvrest")
    for d in range(EARLY, PRE):
        if STG: e(f"s_waitcnt vmcnt({6*(STG-1)})")
        kv_loads(d, sTILE + d)
    a.label("L_qwait")
    stamp(2)
    e("s_waitcnt lgkmcnt(0)")
    mktag()
    e(f"s_cmp_lg_u32 s{sWAVE}, 0"); e("s_cbranch_scc1 L_qbar")
    e("s_setprio 2")
    e(f"s_lshl_b32 s{sT0}, s{sH}, 13"); e(f"s_add_u32 s{sT0}, s{sT0}, {QBOX}")
    e(f"s_add_u32 s{sT1}, s{sT0}, 3072")
    e(f"v_lshlrev_b32 v6, 5, v{vLANE}")
    e(f"v_and_b32 v7, 31, v{vLANE}"); e("v_lshlrev_b32 v7, 5, v7"); e("v_add_u32 v7, 2048, v7")
    loads = []
    for b, so in ((0, sT0), (1, sT1)):
        base = 60 + 16 * b
        loads.append(f"buffer_load_dwordx4 v[{base}:{base+3}], v6, {srd(sWS)}, s{so} offen {SCL}")
        loads.append(f"buffer_load_dwordx4 v[{base+4}:{base+7}], v6, {srd(sWS)}, s{so} offen offset:16 {SCL}")
        loads.append(f"buffer_load_dwordx4 v[{base+8}:{base+11}], v7, {srd(sWS)}, s{so} offen {SCL}")
        loads.append(f"buffer_load_dwordx4 v[{base+12}:{base+15}], v7, {srd(sWS)}, s{so} offen offset:16 {SCL}")
    lane_poll("L_pq", loads, [61 + 2*i for i in range(16)], 52)
    e(f"v_lshlrev_b32 v6, 2, v{vLANE}")
    e(f"v_and_b32 v7, 31, v{vLANE}"); e("v_lshlrev_b32 v7, 2, v7")
    for b in range(2):
        base = 60 + 16 * b
        e(f"v_add_f32 v{base}, v{base}, v{base+4}"); e(f"v_add_f32 v{base+2}, v{base+2}, v{base+6}")
        e(f"v_add_f32 v{base+8}, v{base+8}, v{base+12}"); e(f"v_add_f32 v{base+10}, v{base+10}, v{base+14}")
        e(f"v_cvt_pk_bf16_f32 v{base}, v{base}, v{base+2}"); e(f"v_cvt_pk_bf16_f32 v{base+8}, v{base+8}, v{base+10}")
        e(f"ds_write_b32 v6, v{base} offset:{Q + 384*b}")
        e(f"ds_write_b32 v7, v{base+8} offset:{Q + 384*b + 256}")
    e("s_waitcnt lgkmcnt(0)")
    e("s_setprio 0")
    stamp(2)
    e(f"s_mov_b32 s{sK+2}, {KVREC}"); e(f"s_mov_b32 s{sV+2}, {KVREC}")
    a.label("L_qbar")
    e("s_barrier")
    stamp()
    e(f"s_mov_b32 s{sN}, {1 if CH1 else DL}")
    e(f"v_and_b32 v7, 7, v{vLANE}"); e("v_lshlrev_b32 v6, 4, v7")
    for s in range(3): e(f"ds_read_b128 v[{vQ0+4*s}:{vQ0+4*s+3}], v6 offset:{Q + 128*s}")
    e(f"s_cmp_lg_u32 s{sWAVE}, 0"); e("s_cbranch_scc1 L_w0kv")
    for d in range(min(PRE, NS)): kv_loads(d, sTILE + d)
    a.label("L_w0kv")
    for d in range(min(PRE, NS), NS): kv_loads(d, sTILE + d)
    if not WOLATE: wo_dma('L_nowo')
    if WOLATE >= 2:
        e(f"s_mul_i32 s{sT0}, s{sH}, {192*1280}"); e(f"s_max_u32 s{sT1}, s{sR}, 3"); e(f"s_sub_u32 s{sT1}, s{sT1}, 3"); e(f"s_lshl_b32 s{sT1}, s{sT1}, 8")
        e(f"s_add_u32 s{sT0}, s{sT0}, s{sT1}")
        e(f"s_add_u32 s{sAUX2}, s12, s{sT0}"); e(f"s_addc_u32 s{sAUX2+1}, s13, 0")
        e(f"s_cmp_lt_u32 s{sR}, 3"); e(f"s_cselect_b32 s{sAUX2+2}, 0, {191*1280+256}"); e(f"s_mov_b32 s{sAUX2+3}, 0x20000")
        e(f"v_lshrrev_b32 v6, 4, v{vLANE}"); e("v_mul_u32_u24 v6, 12, v6")
        e(f"s_mul_i32 s{sT0}, s{sWAVE}, 48"); e(f"v_add_u32 v6, s{sT0}, v6")
        e("v_mul_u32_u24 v6, 1280, v6")
        e(f"v_and_b32 v7, 15, v{vLANE}"); e("v_lshl_add_u32 v158, v7, 4, v6")
        e(f"s_mul_i32 s24, s{sWAVE}, 12288"); e(f"s_add_u32 s24, s24, {WOL}")
        if WOLATE == 3: e("s_mov_b32 m0, s24"); e("s_mov_b32 s25, 0")
    for i in range(24): e(f"v_mov_b32 v{vACC0+i}, 0")
    e(f"v_mov_b32 v{vM0}, 0xff000000"); e(f"v_mov_b32 v{vL0}, 0")
    e(f"v_lshlrev_b32 v6, 2, v{vLANE}"); e(f"s_mul_i32 s{sT0}, s{sWAVE}, 768"); e(f"v_add_u32 v6, s{sT0}, v6")
    for c in range(2):
        for k in range(3): e(f"ds_write_b32 v6, v{vL0} offset:{PART + 3072*c + 256*k}")
    e(f"s_lshl_b32 s{sT0}, s{sWAVE}, 3"); e(f"v_mov_b32 v7, s{sT0}")
    e(f"ds_write_b64 v7, v[{vM0}:{vL0}] offset:{STAT}"); e(f"ds_write_b64 v7, v[{vM0}:{vL0}] offset:{STAT+32}")
    e(f"s_mov_b32 s{sLIM}, 512"); e(f"s_mov_b32 s{sPOFF}, 0")
    e("s_mov_b32 s14, 0x3d93cd3a"); e("s_mov_b32 s15, 0x3fb8aa3b")
    e("s_waitcnt lgkmcnt(0)")
    e(f"s_atomic_add s{sN}, s[{sCTR}:{sCTR+1}], 0 glc")

    def tile_compute(slot, q, acc, m, l, waitV):
        b = RING + 24 * slot
        e(f"v_mov_b32 v46, 0"); e("v_mov_b32 v47, 0")
        for i in range(12): e(f"v_dot2c_f32_bf16 v{46+(i&1)}, v{b+i}, v{q+i}")
        e("v_add_f32 v46, v46, v47")
        allreduce([46], "v_add_f32", None, [0, 1, 2])
        e("v_cvt_pk_bf16_f32 v46, v46, v46"); e("v_and_b32 v46, 0xffff0000, v46")
        e("v_mul_f32 v46, s14, v46")
        e("v_cvt_pk_bf16_f32 v46, v46, v46"); e("v_and_b32 v46, 0xffff0000, v46")
        e("v_mul_f32 v46, s15, v46")
        e(f"v_max_f32 v47, v{m}, v46")
        e(f"v_sub_f32 v48, v{m}, v47"); e("v_sub_f32 v49, v46, v47")
        e("v_exp_f32 v48, v48"); e("v_exp_f32 v49, v49")
        e(f"v_mov_b32 v{m}, v47")
        e(f"v_fma_f32 v{l}, v{l}, v48, v49")
        e("v_cvt_pk_bf16_f32 v50, v49, 0"); e("v_lshlrev_b32 v51, 16, v50")
        for i in range(12):
            e(f"v_pk_mul_f32 v[{acc+2*i}:{acc+2*i+1}], v[{acc+2*i}:{acc+2*i+1}], v[48:49] op_sel_hi:[1,0]")
        e(f"s_waitcnt vmcnt({waitV})")
        for i in range(12):
            e(f"v_dot2c_f32_bf16 v{acc+2*i}, v{b+12+i}, v50")
            e(f"v_dot2c_f32_bf16 v{acc+2*i+1}, v{b+12+i}, v51")
    def refill(d):
        if STATIC:
            if first[0]:
                e(f"s_lshl_b32 s{sT0}, s{sR}, 2"); e(f"s_add_u32 s{sT0}, s{sT0}, s{sWAVE}"); e(f"s_mul_i32 s{sT0}, s{sT0}, {DL}")
                e(f"s_add_u32 s{sTILE+d}, s{sT0}, {32*NS + d}")
            else:
                e(f"s_add_u32 s{sTILE+d}, s{sTILE+d}, {32*DL}")
        elif CH1:
            e("s_waitcnt lgkmcnt(0)")
            e(f"s_mov_b32 s{sTILE+d}, s{sN}")
            e(f"s_mov_b32 s{sN}, 1")
            e(f"s_atomic_add s{sN}, s[{sCTR}:{sCTR+1}], 0 glc")
        elif d == 0:
            e("s_waitcnt lgkmcnt(0)")
            e(f"s_mov_b32 s{sTILE}, s{sN}")
            e(f"s_add_u32 s{sNEXT}, s{sN}, 1")
            e(f"s_mov_b32 s{sN}, {DL}")
            e(f"s_atomic_add s{sN}, s[{sCTR}:{sCTR+1}], 0 glc")
        else:
            e(f"s_mov_b32 s{sTILE+d}, s{sNEXT}")
            if d < DL - 1: e(f"s_add_u32 s{sNEXT}, s{sNEXT}, 1")
        if WOLATE == 3 and not first[0]:
            e(f"s_cmp_ge_u32 s{sTILE+d}, 1024"); e(f"s_cbranch_scc1 L_dma_{d}")
            kv_loads(d, sTILE + d)
            a.label(f"L_rj_{d}")
        else:
            kv_loads(d, sTILE + d)
    first = [True]
    order = list(range(NS))
    for d in range(NS):
        younger = len(order) - 1 - order.index(d)
        e(f"s_waitcnt vmcnt({6*younger+3})")
        tile_compute(d, vQ0, vACC0, vM0, vL0, 6*younger)
        order.remove(d)
        if d < DL:
            refill(d); order.append(d)
    first[0] = False
    a.label("L_loop")
    for d in range(DL):
        e(f"s_cmp_ge_u32 s{sTILE+d}, s{sLIM}"); e(f"s_cbranch_scc1 L_sw_{d}")
        a.label(f"L_cont_{d}")
        e(f"s_waitcnt vmcnt({6*(DL-1)+3})")
        tile_compute(d, vQ0, vACC0, vM0, vL0, 6*(DL-1))
        refill(d)
    e("s_branch L_loop")
    if WOLATE == 3:
        assert DL == 2
        for d in range(DL):
            a.label(f"L_dma_{d}")
            for k in range(6):
                e(f"buffer_load_dwordx4 v158, {srd(sAUX2)}, s25 offen{nt} lds")
                e("s_add_u32 m0, m0, 1024"); e("s_add_u32 s25, s25, 1280")
            e(f"s_branch L_rj_{d}")
    for d in range(DL):
        a.label(f"L_sw_{d}")
        e(f"s_cmp_ge_u32 s{sTILE+d}, 1024"); e("s_cbranch_scc1 L_loopend")
        e(f"s_call_b64 s[{sRET1}:{sRET1+1}], L_switch")
        e(f"s_branch L_cont_{d}")
    a.label("L_switch")
    e(f"s_call_b64 s[{sRET2}:{sRET2+1}], L_flush")
    for i in range(24): e(f"v_mov_b32 v{vACC0+i}, 0")
    e(f"v_mov_b32 v{vM0}, 0xff000000"); e(f"v_mov_b32 v{vL0}, 0")
    e(f"v_and_b32 v7, 7, v{vLANE}"); e("v_lshlrev_b32 v6, 4, v7")
    for s_ in range(3): e(f"ds_read_b128 v[{vQ0+4*s_}:{vQ0+4*s_+3}], v6 offset:{Q + 384 + 128*s_}")
    e(f"s_mov_b32 s{sLIM}, 1024"); e(f"s_mov_b32 s{sPOFF}, 3072")
    e("s_waitcnt lgkmcnt(0)")
    e(f"s_setpc_b64 s[{sRET1}:{sRET1+1}]")
    def flush_code():
        acc = vACC0
        e(f"v_mov_b32 v46, v{vM0}")
        e(f"v_and_b32 v6, 7, v{vLANE}"); e("v_lshlrev_b32 v6, 5, v6")
        allreduce([46], "v_max_f32", [47], [3])
        e(f"v_lshrrev_b32 v7, 5, v{vLANE}"); e("v_lshl_add_u32 v6, v7, 4, v6")
        allreduce([46], "v_max_f32", [47], [4])
        e(f"v_bfe_u32 v7, v{vLANE}, 4, 1"); e("v_lshl_add_u32 v6, v7, 3, v6")
        allreduce([46], "v_max_f32", [47], [5])
        e(f"s_mul_i32 s{sT0}, s{sWAVE}, 768"); e(f"s_add_u32 s{sT0}, s{sT0}, s{sPOFF}")
        e(f"v_sub_f32 v48, v{vM0}, v46")
        e(f"v_add_u32 v6, s{sT0}, v6")
        e("v_exp_f32 v48, v48")
        e(f"s_lshl_b32 s{sT0}, s{sWAVE}, 3"); e(f"s_lshr_b32 s{sT1}, s{sPOFF}, 6"); e(f"s_and_b32 s{sT1}, s{sT1}, 32"); e(f"s_add_u32 s{sT0}, s{sT0}, s{sT1}")
        e(f"v_mul_f32 v47, v{vL0}, v48")
        for i in range(12):
            e(f"v_pk_mul_f32 v[{acc+2*i}:{acc+2*i+1}], v[{acc+2*i}:{acc+2*i+1}], v[48:49] op_sel_hi:[1,0]")
        prs5 = [(acc+8*s_+i, acc+8*s_+4+i) for s_ in range(3) for i in range(4)]
        e("v_add_f32_dpp v47, v47, v47 row_ror:8 row_mask:0xf bank_mask:0xf")
        for x, y in prs5: e(f"v_permlane32_swap_b32 v{x}, v{y}")
        e("v_mov_b32 v49, v47")
        for x, y in prs5: e(f"v_add_f32 v{x}, v{x}, v{y}")
        e("v_permlane16_swap_b32 v47, v49")
        prs4 = [(acc+8*s_+i, acc+8*s_+2+i) for s_ in range(3) for i in range(2)]
        for x, y in prs4: e(f"v_permlane16_swap_b32 v{x}, v{y}")
        e("v_add_f32 v47, v47, v49")
        for x, y in prs4: e(f"v_add_f32 v{x}, v{x}, v{y}")
        e("v_mov_b32 v49, v47")
        e(f"v_mov_b32 v7, s{sT0}")
        allreduce([acc+8*s_+i for s_ in range(3) for i in range(2)], "v_add_f32", None, [3])
        e("v_permlane32_swap_b32 v47, v49")
        for s_ in range(3): e(f"ds_write_b64 v6, v[{acc+8*s_}:{acc+8*s_+1}] offset:{PART + 256*s_}")
        e("v_add_f32 v47, v47, v49")
        e(f"ds_write_b64 v7, v[46:47] offset:{STAT}")
    a.label("L_flush")
    flush_code()
    e(f"s_setpc_b64 s[{sRET2}:{sRET2+1}]")
    a.label("L_loopend")
    stamp()
    if WOLATE == 1: wo_dma('L_nowo')
    if WOLATE == 3:
        a.label("L_dmafix")
        e("s_cmp_ge_u32 s25, 15360"); e("s_cbranch_scc1 L_dmafix_done")
        e(f"buffer_load_dwordx4 v158, {srd(sAUX2)}, s25 offen{nt} lds")
        e("s_add_u32 m0, m0, 1024"); e("s_add_u32 s25, s25, 1280")
        e("s_branch L_dmafix")
        a.label("L_dmafix_done")
    if WOLATE == 2:
        n0 = len(a.L)
        flush_code()
        code = a.L[n0:]; del a.L[n0:]
        e("s_mov_b32 m0, s24")
        e("s_mov_b32 s25, 0")
        step = max(1, len(code) // 13)
        k = 0
        for j, l in enumerate(code):
            a.L.append(l)
            if j % step == step - 1 and k < 12:
                a.L.append(f"buffer_load_dwordx4 v158, {srd(sAUX2)}, s25 offen{nt} lds")
                if k < 11:
                    a.L.append("s_add_u32 m0, m0, 1024"); a.L.append("s_add_u32 s25, s25, 1280")
                k += 1
        assert k == 12
    else:
        e(f"s_call_b64 s[{sRET2}:{sRET2+1}], L_flush")
    e("s_waitcnt lgkmcnt(0)")
    stamp(3)
    e("s_barrier")
    e("v_and_b32 v5, 127, v0"); e("v_lshrrev_b32 v4, 7, v0")
    e("v_cmp_gt_u32 vcc, 96, v5"); e("s_and_saveexec_b64 s[16:17], vcc"); e("s_cbranch_execz L_pub_done")
    e("v_mul_u32_u24 v6, 3072, v4"); e("v_lshl_add_u32 v6, v5, 3, v6")
    e("v_lshlrev_b32 v7, 5, v4")
    for w in range(4): e(f"ds_read_b64 v[{20+2*w}:{21+2*w}], v6 offset:{PART + 768*w}")
    e(f"ds_read_b128 v[28:31], v7 offset:{STAT}"); e(f"ds_read_b128 v[32:35], v7 offset:{STAT+16}")
    e("v_lshlrev_b32 v6, 11, v4"); e("v_lshl_add_u32 v6, v5, 4, v6")
    e(f"s_lshl_b32 s{sT0}, s{sH}, 3"); e(f"s_add_u32 s{sT0}, s{sT0}, s{sR}"); e(f"s_lshl_b32 s{sT0}, s{sT0}, 12"); e(f"s_add_u32 s{sT0}, s{sT0}, {OBOX}")
    e("v_and_b32 v5, 1, v5"); e("v_cmp_eq_u32 vcc, 1, v5")
    e(f"v_mov_b32 v43, s{sTAG}")
    e("s_waitcnt lgkmcnt(0)")
    e("v_max_f32 v36, v28, v30"); e("v_max3_f32 v36, v36, v32, v34")
    for w in range(4): e(f"v_sub_f32 v{28+2*w}, v{28+2*w}, v36")
    for w in range(4): e(f"v_exp_f32 v{28+2*w}, v{28+2*w}")
    e("v_mul_f32 v40, v20, v28"); e("v_mul_f32 v41, v21, v28"); e("v_mul_f32 v37, v29, v28")
    for w in range(1, 4):
        e(f"v_fmac_f32 v40, v{20+2*w}, v{28+2*w}"); e(f"v_fmac_f32 v41, v{21+2*w}, v{28+2*w}"); e(f"v_fmac_f32 v37, v{29+2*w}, v{28+2*w}")
    e("v_cndmask_b32 v42, v36, v37, vcc")
    e(f"buffer_store_dwordx4 v[40:43], v6, {srd(sWS)}, s{sT0} offen {SCS}")
    a.label("L_pub_done")
    e("s_mov_b64 exec, s[16:17]")
    stamp()
    e(f"s_cmp_lt_u32 s{sR}, 3"); e("s_cbranch_scc1 L_final")
    def wo_reads():
        e(f"v_lshlrev_b32 v9, 4, v{vLANE}"); e(f"s_mul_i32 s{sT0}, s{sWAVE}, 12288"); e(f"v_add_u32 v9, s{sT0}, v9")
        for i in range(12): e(f"ds_read_b128 v[{100+4*i}:{103+4*i}], v9 offset:{WOL + 1024*i}")
    if not WOLATE: wo_reads()
    e(f"v_and_b32 v24, 7, v{vLANE}")
    e("v_and_b32 v25, 1, v24")
    e("v_lshrrev_b32 v24, 1, v24")
    e("v_cmp_eq_u32 vcc, 1, v25")
    e("v_mov_b32 v26, 0x0c0c0100"); e("v_mov_b32 v27, 0x01000c0c"); e("v_mov_b32 v28, 0x0c0c0302"); e("v_mov_b32 v29, 0x03020c0c")
    e("v_cndmask_b32 v26, v26, v27, vcc"); e("v_cndmask_b32 v28, v28, v29, vcc")
    e("v_mov_b32 v27, 0x0c0c0c0c")
    for r in range(4):
        e(f"v_cmp_eq_u32 vcc, {r}, v24")
        e(f"v_cndmask_b32 v{148+r}, v27, v26, vcc"); e(f"v_cndmask_b32 v{152+r}, v27, v28, vcc")
    e(f"v_lshrrev_b32 v6, 4, v{vLANE}"); e("v_mul_u32_u24 v6, 24, v6")
    e(f"v_bfe_u32 v7, v{vLANE}, 3, 1"); e("v_mul_u32_u24 v7, 384, v7"); e("v_add_u32 v6, v6, v7")
    e(f"s_mul_i32 s{sT0}, s{sWAVE}, 96"); e(f"v_add_u32 v156, s{sT0}, v6")
    e(f"v_lshrrev_b32 v6, 5, v{vLANE}"); e("v_lshlrev_b32 v6, 9, v6")
    e(f"v_and_b32 v7, 15, v{vLANE}"); e("v_lshl_add_u32 v6, v7, 5, v6")
    e(f"v_bfe_u32 v7, v{vLANE}, 4, 1"); e("v_lshl_add_u32 v6, v7, 4, v6")
    e(f"s_lshl_b32 s{sT0}, s{sWAVE}, 10"); e(f"v_add_u32 v157, s{sT0}, v6")
    e(f"s_cmp_eq_u32 s{sWAVE}, 3"); e("s_cbranch_scc1 L_wo_w3")
    e("v_cmp_le_u32 vcc, 96, v0")
    e("v_cndmask_b32 v7, 0, 1, vcc")
    e("v_mul_u32_u24 v5, 96, v7"); e("v_sub_u32 v5, v0, v5")
    e("v_lshlrev_b32 v6, 11, v7")
    e("v_lshl_add_u32 v6, v5, 4, v6")
    e(f"s_lshl_b32 s{sT0}, s{sH}, 15"); e(f"s_add_u32 s{sT0}, s{sT0}, {OBOX}")
    for p in range(8): e(f"s_mov_b64 s[{4+2*p}:{5+2*p}], -1")
    e(f"s_mov_b32 s{sCNT}, {SPIN}")
    a.label("L_p1")
    e(f"s_mov_b32 s{sT1}, s{sT0}")
    for p in range(8):
        e(f"s_mov_b64 exec, s[{4+2*p}:{5+2*p}]"); e(f"s_cbranch_execz L_p1_s{p}")
        e(f"buffer_load_dwordx4 v[{60+4*p}:{63+4*p}], v6, {srd(sWS)}, s{sT1} offen {SCL}")
        a.label(f"L_p1_s{p}")
        if p < 7: e(f"s_add_u32 s{sT1}, s{sT1}, 4096")
    e("s_waitcnt vmcnt(0)")
    for p in range(8):
        e(f"s_mov_b64 exec, s[{4+2*p}:{5+2*p}]"); e(f"s_cbranch_execz L_p1_c{p}")
        e(f"v_cmp_ne_u32 s[{4+2*p}:{5+2*p}], s{sTAG}, v{63+4*p}")
        a.label(f"L_p1_c{p}")
    e("s_mov_b64 exec, -1")
    e("s_nop 1")
    e("s_or_b64 s[20:21], s[4:5], s[6:7]")
    for p in range(2, 8): e(f"s_or_b64 s[20:21], s[20:21], s[{4+2*p}:{5+2*p}]")
    e("s_cbranch_scc0 L_p1_done")
    e(f"s_sleep {SLP}")
    e(f"s_sub_u32 s{sCNT}, s{sCNT}, 1"); e(f"s_cmp_lg_u32 s{sCNT}, 0"); e("s_cbranch_scc1 L_p1")
    a.label("L_p1_done")
    stamp(3)
    if PROF == 3: e(f"s_sub_u32 s97, {SPIN}, s{sCNT}")
    if WOLATE: wo_reads()
    e("v_and_b32 v8, 1, v5"); e("v_cmp_eq_u32 vcc, 1, v8")
    for p in range(8): e(f"v_mov_b32_dpp v{63+4*p}, v{62+4*p} quad_perm:[1,0,3,2] row_mask:0xf bank_mask:0xf")
    for p in range(8):
        e(f"v_cndmask_b32 v{8+p}, v{62+4*p}, v{63+4*p}, vcc")
        e(f"v_cndmask_b32 v{62+4*p}, v{63+4*p}, v{62+4*p}, vcc")
    e("v_max3_f32 v36, v8, v9, v10"); e("v_max3_f32 v36, v36, v11, v12"); e("v_max3_f32 v36, v36, v13, v14"); e("v_max_f32 v36, v36, v15")
    for p in range(8): e(f"v_sub_f32 v{8+p}, v{8+p}, v36")
    for p in range(8): e(f"v_exp_f32 v{8+p}, v{8+p}")
    e("v_mul_f32 v40, v60, v8"); e("v_mul_f32 v41, v61, v8"); e("v_mul_f32 v37, v62, v8")
    for p in range(1, 8):
        e(f"v_fmac_f32 v40, v{60+4*p}, v{8+p}"); e(f"v_fmac_f32 v41, v{61+4*p}, v{8+p}"); e(f"v_fmac_f32 v37, v{62+4*p}, v{8+p}")
    e("v_rcp_f32 v37, v37")
    e("v_mul_f32 v40, v40, v37"); e("v_mul_f32 v41, v41, v37")
    e("v_cvt_pk_bf16_f32 v40, v40, v41")
    e("v_mul_u32_u24 v6, 384, v7"); e("v_lshl_add_u32 v6, v5, 2, v6")
    e(f"ds_write_b32 v6, v40 offset:{SEL}")
    e("s_branch L_wo_bar")
    a.label("L_wo_w3")
    if WOLATE:
        e("s_waitcnt vmcnt(0)")
        wo_reads()
    a.label("L_wo_bar")
    for i in range(4): e(f"v_mov_b32 v{20+i}, 0")
    e("s_waitcnt lgkmcnt(0)")
    e("s_barrier")
    stamp()
    for p in range(3): e(f"ds_read_b64 v[{60+2*p}:{61+2*p}], v156 offset:{SEL + 8*p}")
    e("s_waitcnt lgkmcnt(0)")
    def aperm(i):
        A = 44 + 4 * (i & 1)
        for r in range(4):
            e(f"v_perm_b32 v{A+r}, v{60 + (i >> 1)}, v{60 + (i >> 1)}, v{(152 if i & 1 else 148) + r}")
    aperm(0)
    for i in range(12):
        if i < 11: aperm(i + 1)
        else: e("s_nop 1")
        A = 44 + 4 * (i & 1)
        e(f"v_mfma_f32_16x16x32_bf16 v[20:23], v[{A}:{A+3}], v[{100+4*i}:{103+4*i}], v[20:23]")
    e("s_nop 7")
    e(f"ds_write_b128 v157, v[20:23] offset:{YP}")
    e("v_lshlrev_b32 v6, 3, v0")
    e(f"s_mul_i32 s{sT0}, s{sH}, 5"); e(f"s_add_u32 s{sT0}, s{sT0}, s{sR}"); e(f"s_sub_u32 s{sT0}, s{sT0}, 3")
    e(f"s_lshl_b32 s{sT0}, s{sT0}, 11"); e(f"s_add_u32 s{sT0}, s{sT0}, {YBOX}")
    e(f"v_mov_b32 v41, s{sTAG}"); e(f"v_mov_b32 v43, s{sTAG}")
    e("s_waitcnt lgkmcnt(0)")
    e("s_barrier")
    e(f"s_cmp_ge_u32 s{sWAVE}, 2"); e("s_cbranch_scc1 L_fin")
    for w in range(4): e(f"ds_read_b64 v[{20+2*w}:{21+2*w}], v6 offset:{YP + 1024*w}")
    e("v_lshlrev_b32 v6, 4, v0")
    e("s_waitcnt lgkmcnt(0)")
    e("v_add_f32 v20, v20, v22"); e("v_add_f32 v21, v21, v23"); e("v_add_f32 v24, v24, v26"); e("v_add_f32 v25, v25, v27")
    e("v_add_f32 v40, v20, v24"); e("v_add_f32 v42, v21, v25")
    e(f"buffer_store_dwordx4 v[40:43], v6, {srd(sWS)}, s{sT0} offen {SCS}")
    stamp(3)
    e("s_branch L_fin")
    a.label("L_final")
    e(f"s_cmp_lg_u32 s{sWAVE}, 0"); e("s_cbranch_scc1 L_fin")
    e(f"s_mul_i32 s14, s{sH}, 3"); e(f"s_add_u32 s14, s14, s{sR}")
    e("s_cmp_ge_u32 s14, 40"); e("s_cbranch_scc1 L_fin")
    e("s_cmp_ge_u32 s14, 20"); e("s_cselect_b32 s15, 1, 0")
    e("s_mul_i32 s16, s15, 20"); e("s_sub_u32 s16, s14, s16")
    e("s_lshr_b32 s17, s16, 2"); e("s_and_b32 s18, s16, 3")
    e("s_mul_i32 s19, s15, 640"); e("s_lshl_b32 s20, s16, 5"); e("s_add_u32 s19, s19, s20")
    e(f"v_and_b32 v7, 7, v{vLANE}"); e("v_lshlrev_b32 v4, 2, v7")
    e(f"v_lshrrev_b32 v5, 5, v{vLANE}"); e("v_lshl_add_u32 v4, v5, 1, v4")
    e(f"v_bfe_u32 v5, v{vLANE}, 4, 1"); e("v_add_u32 v4, v4, v5")
    e("v_add_u32 v4, s19, v4"); e("v_lshlrev_b32 v4, 1, v4")
    e(f"buffer_load_ushort v58, v4, {srd(sX)}, 0 offen")
    e(f"v_lshrrev_b32 v5, 3, v{vLANE}")
    e("v_mul_u32_u24 v6, 10240, v5"); e("v_lshl_add_u32 v6, v7, 5, v6")
    e("s_lshl_b32 s20, s17, 11"); e("s_lshl_b32 s21, s15, 10"); e("s_add_u32 s20, s20, s21"); e("s_lshl_b32 s21, s18, 8"); e("s_add_u32 s20, s20, s21")
    e(f"s_add_u32 s20, s20, {YBOX}")
    e("s_lshl_b32 s21, s19, 3"); e(f"s_add_u32 s21, s21, {FBOX}")
    for i in range(1, 4):
        e(f"s_add_u32 s{4+i}, s20, {81920*i}"); e(f"s_add_u32 s{8+i}, s21, {81920*i}")
    e("s_mov_b32 s4, s20"); e("s_mov_b32 s8, s21")
    def red4(base, n):
        for i in range(1, n):
            for c in range(4): e(f"v_add_f32 v{base+2*c}, v{base+2*c}, v{base+8*i+2*c}")
        swapred([(base, base+4), (base+2, base+6)], 5)
        swapred([(base, base+2)], 4)
        allreduce([base], "v_add_f32", None, [3])
    lds_ = []
    for i in range(3):
        lds_.append(f"buffer_load_dwordx4 v[{100+8*i}:{103+8*i}], v6, {srd(sWS)}, s{8+i} offen {SCL}")
        lds_.append(f"buffer_load_dwordx4 v[{104+8*i}:{107+8*i}], v6, {srd(sWS)}, s{8+i} offen offset:16 {SCL}")
    lane_poll("L_pf", lds_, [101 + 2*k for k in range(12)], 52)
    red4(100, 3)
    e("s_mov_b32 s22, 0xbfb8aa3b")
    e("v_cvt_pk_bf16_f32 v24, v100, v100"); e("v_and_b32 v24, 0xffff0000, v24")
    e("v_mul_f32 v25, s22, v24"); e("v_exp_f32 v25, v25"); e("v_add_f32 v25, 1.0, v25"); e("v_rcp_f32 v25, v25")
    e("v_mul_f32 v24, v24, v25")
    e("v_cvt_pk_bf16_f32 v24, v24, v24"); e("v_and_b32 v24, 0xffff0000, v24")
    e("v_lshlrev_b32 v58, 16, v58")
    stamp(3)
    lds_ = []
    for i in range(4):
        lds_.append(f"buffer_load_dwordx4 v[{60+8*i}:{63+8*i}], v6, {srd(sWS)}, s{4+i} offen {SCL}")
        lds_.append(f"buffer_load_dwordx4 v[{64+8*i}:{67+8*i}], v6, {srd(sWS)}, s{4+i} offen offset:16 {SCL}")
    lane_poll("L_p2", lds_, [61 + 2*k for k in range(16)], 52)
    stamp(3)
    if PROF == 3: e(f"s_sub_u32 s97, {SPIN}, s{sCNT}")
    red4(60, 4)
    e("v_cvt_pk_bf16_f32 v20, v60, v60"); e("v_and_b32 v20, 0xffff0000, v20")
    e("v_mul_f32 v20, v20, v24")
    e("v_cvt_pk_bf16_f32 v20, v20, v20"); e("v_and_b32 v20, 0xffff0000, v20")
    e("v_add_f32 v20, v58, v20")
    e("v_cvt_pk_bf16_f32 v20, v20, v20")
    e(f"buffer_store_short v20, v4, {srd(sOUT)}, 0 offen")
    e("s_cmp_lg_u32 s14, 0"); e("s_cbranch_scc1 L_fin")
    e("s_mov_b64 exec, 1")
    e(f"v_mov_b32 v21, s{sTAG}"); e("v_mov_b32 v22, 0")
    e(f"buffer_store_dword v21, v22, {srd(sWS)}, 0 offen")
    e("s_branch L_fin")

    a.label("L_ffn")
    e("s_setprio 3")
    e("s_sub_u32 s57, s2, 256")
    e(f"s_lshl_b32 s{sT0}, s57, 7")
    e(f"s_add_u32 s{sAUX}, s16, s{sT0}"); e(f"s_addc_u32 s{sAUX+1}, s17, 0"); e(f"s_mov_b32 s{sAUX+2}, {639*3072+128}"); e(f"s_mov_b32 s{sAUX+3}, 0x20000")
    e(f"s_add_u32 s{sAUX2}, s18, s{sT0}"); e(f"s_addc_u32 s{sAUX2+1}, s19, 0"); e(f"s_mov_b32 s{sAUX2+2}, {639*3072+128}"); e(f"s_mov_b32 s{sAUX2+3}, 0x20000")
    e(f"s_mul_i32 s{sT0}, s57, {64*1280}")
    e(f"s_add_u32 s{sK}, s20, s{sT0}"); e(f"s_addc_u32 s{sK+1}, s21, 0"); e(f"s_mov_b32 s{sK+2}, {64*1280}"); e(f"s_mov_b32 s{sK+3}, 0x20000")
    xloads()
    unit_addr(3072, 20, 2)
    e(f"v_lshrrev_b32 v3, 4, v{vLANE}"); e("v_lshlrev_b32 v3, 2, v3")
    e(f"s_lshl_b32 s{sT0}, s{sWAVE}, 4"); e(f"v_add_u32 v3, s{sT0}, v3")
    e("v_mul_u32_u24 v3, 1280, v3")
    e(f"v_and_b32 v7, 15, v{vLANE}"); e("v_lshl_add_u32 v3, v7, 4, v3")
    def fload(n):
        if n < 20:
            e(f"s_mov_b32 s{sT1}, {3072*n}")
            e(f"buffer_load_dwordx4 v[{60+4*n}:{63+4*n}], v2, {srd(sAUX)}, s{sT1} offen{nt}")
        elif n < 40:
            i = n - 20
            e(f"s_mov_b32 s{sT1}, {3072*i}")
            e(f"buffer_load_dwordx4 v[{140+4*i}:{143+4*i}], v2, {srd(sAUX2)}, s{sT1} offen{nt}")
        elif n < 60:
            k = n - 40; i, sg = k // 5, k % 5
            e(f"s_mov_b32 s{sT1}, {1280*i}")
            e(f"buffer_load_dwordx4 v[{60+4*k}:{63+4*k}], v3, {srd(sK)}, s{sT1} offen offset:{256*sg}{nt}")
    for n in range(FLA): fload(n)
    e(f"s_waitcnt vmcnt({FLA})")
    layernorm()
    xp_read(20)
    for i in range(32): e(f"v_mov_b32 v{20+i}, 0")
    e("s_waitcnt lgkmcnt(0)")
    for n in range(40):
        issued = min(60, n + FLA)
        e(f"s_waitcnt vmcnt({issued - n - 1})")
        i = n % 20
        sel_ops([XP + (i >> 1), XP + 10 + (i >> 1)], i & 1, 52)
        mac16((60 if n < 20 else 140) + 4*i, 20 if n < 20 else 36, 52)
        if n + FLA < 60: fload(n + FLA)
    unit_reduce(20, QP)
    unit_reduce(36, UP)
    for n in range(40 + FLA, 60): fload(n)
    e("s_waitcnt lgkmcnt(0)")
    e("s_barrier")
    e(f"s_cmp_ge_u32 s{sWAVE}, 2"); e("s_cbranch_scc1 L_ffn_h")
    e("v_lshlrev_b32 v6, 2, v0")
    for w in range(4):
        e(f"ds_read_b32 v{20+w}, v6 offset:{QP + 512*w}"); e(f"ds_read_b32 v{24+w}, v6 offset:{UP + 512*w}")
    e("s_waitcnt lgkmcnt(0)")
    e("v_add_f32 v20, v20, v21"); e("v_add_f32 v22, v22, v23"); e("v_add_f32 v24, v24, v25"); e("v_add_f32 v26, v26, v27")
    e("v_add_f32 v20, v20, v22"); e("v_add_f32 v24, v24, v26")
    e("v_cvt_pk_bf16_f32 v28, v20, v24")
    e("v_lshlrev_b32 v20, 16, v28"); e("v_and_b32 v24, 0xffff0000, v28")
    e("v_mul_f32 v25, v20, v20"); e("v_mul_f32 v25, v25, v20")
    e("s_mov_b32 s22, 0x3d372713"); e("v_fma_f32 v25, v25, s22, v20")
    e("s_mov_b32 s22, 0xc0135761"); e("v_mul_f32 v25, s22, v25")
    e("v_exp_f32 v25, v25"); e("v_add_f32 v25, 1.0, v25"); e("v_rcp_f32 v25, v25")
    e("v_mul_f32 v20, v20, v25")
    e("v_cvt_pk_bf16_f32 v20, v20, v20"); e("v_and_b32 v20, 0xffff0000, v20")
    e("v_mul_f32 v20, v20, v24")
    e("v_cvt_pk_bf16_f32 v20, v20, v20")
    e("v_lshlrev_b32 v6, 1, v0")
    e(f"ds_write_b16 v6, v20 offset:{H}")
    e("s_waitcnt lgkmcnt(0)")
    a.label("L_ffn_h")
    e("s_barrier")
    e(f"v_lshrrev_b32 v6, 4, v{vLANE}"); e("v_lshlrev_b32 v6, 3, v6")
    e(f"s_lshl_b32 s{sT0}, s{sWAVE}, 5"); e(f"v_add_u32 v6, s{sT0}, v6")
    e(f"ds_read_b64 v[56:57], v6 offset:{H}"); e(f"ds_read_b64 v[58:59], v6 offset:{H+128}")
    for i in range(80): e(f"v_mov_b32 v{140+i}, 0")
    e("s_waitcnt vmcnt(0) lgkmcnt(0)")
    for i in range(4):
        sel_ops([56 + (i >> 1), 58 + (i >> 1)], i & 1, 52)
        for sg in range(5):
            mac16(60 + 20*i + 4*sg, 140 + 16*sg, 52)
    for sg in range(5):
        A = 140 + 16*sg
        swapred([(A+i, A+8+i) for i in range(8)], 5)
        swapred([(A+i, A+4+i) for i in range(4)], 4)
    e(f"v_lshrrev_b32 v6, 5, v{vLANE}"); e("v_mul_u32_u24 v6, 2560, v6")
    e(f"v_and_b32 v7, 15, v{vLANE}"); e("v_lshl_add_u32 v6, v7, 5, v6")
    e(f"v_bfe_u32 v7, v{vLANE}, 4, 1"); e("v_lshl_add_u32 v6, v7, 4, v6")
    e(f"s_mul_i32 s{sT0}, s{sWAVE}, 5120"); e(f"v_add_u32 v6, s{sT0}, v6")
    for sg in range(5): e(f"ds_write_b128 v6, v[{140+16*sg}:{143+16*sg}] offset:{DP + 512*sg}")
    e("s_waitcnt lgkmcnt(0)")
    e("s_barrier")
    mktag()
    e(f"s_mul_i32 s{sT0}, s57, 10240"); e(f"s_add_u32 s{sT0}, s{sT0}, {FBOX}")
    e(f"v_mov_b32 v41, s{sTAG}"); e(f"v_mov_b32 v43, s{sTAG}")
    for q in range(3):
        if q == 2:
            e(f"s_cmp_ge_u32 s{sWAVE}, 2"); e("s_cbranch_scc1 L_fin")
        e(f"v_add_u32 v5, {256*q}, v0"); e("v_lshlrev_b32 v6, 3, v5")
        for w in range(4): e(f"ds_read_b64 v[{20+2*w}:{21+2*w}], v6 offset:{DP + 5120*w}")
        e("s_waitcnt lgkmcnt(0)")
        e("v_add_f32 v20, v20, v22"); e("v_add_f32 v21, v21, v23"); e("v_add_f32 v24, v24, v26"); e("v_add_f32 v25, v25, v27")
        e("v_add_f32 v40, v20, v24"); e("v_add_f32 v42, v21, v25")
        e("v_lshlrev_b32 v6, 4, v5")
        e(f"buffer_store_dwordx4 v[40:43], v6, {srd(sWS)}, s{sT0} offen {SCS}")
        e("s_nop 1")

    a.label("L_fin")
    if DBGT:
        e("s_mov_b64 exec, -1")
        e(f"s_cmp_lg_u32 s{sWAVE}, 0"); e("s_cbranch_scc1 L_end")
        e("s_memrealtime s[100:101]")
        e("s_load_dwordx2 s[4:5], s[0:1], 80")
        e("s_waitcnt lgkmcnt(0)")
        e("s_mov_b32 s6, 256"); e("s_mov_b32 s7, 0x20000")
        e("s_not_b32 s98, s98")
        e("v_mov_b32 v20, s98"); e("v_mov_b32 v21, s100"); e("v_mov_b32 v6, 0")
        e("s_mov_b64 exec, 1")
        e("buffer_atomic_umax v20, v6, s[4:7], 0 offen")
        e("buffer_atomic_umax v21, v6, s[4:7], 0 offen offset:4")
    if PROF:
        stamp()
        n = prof_n[0]
        e("s_mov_b64 exec, -1")
        e(f"s_cmp_lg_u32 s{sWAVE}, 0"); e("s_cbranch_scc1 L_end")
        e("s_waitcnt lgkmcnt(0)")
        e("s_getreg_b32 s14, hwreg(HW_REG_XCC_ID)")
        e(f"s_lshl_b32 s{sT0}, s2, 7"); e(f"s_add_u32 s{sT0}, s{sT0}, {PROFO}")
        e("v_mov_b32 v6, 0")
        e("s_mov_b64 exec, 1")
        for i in range(n):
            e(f"v_mov_b32 v20, s{SP[i]}"); e(f"v_mov_b32 v21, s{SP[i]+1}")
            e(f"buffer_store_dwordx2 v[20:21], v6, {srd(sWS)}, s{sT0} offen offset:{8*i}")
            e("s_nop 1")
        e("v_mov_b32 v20, s14"); e("v_mov_b32 v21, s97")
        e(f"buffer_store_dwordx2 v[20:21], v6, {srd(sWS)}, s{sT0} offen offset:120")
    a.label("L_end")
    e("s_endpgm")
    body = fix_hazards([l for l in a.L if l is not None])
    out += body
    out += ['.section .rodata,"a"', ".p2align 6", f".amdhsa_kernel {KNAME}", "  .amdhsa_next_free_vgpr 256", "  .amdhsa_next_free_sgpr 102",
            "  .amdhsa_accum_offset 256", "  .amdhsa_group_segment_fixed_size 0", "  .amdhsa_kernarg_size 96", "  .amdhsa_user_sgpr_count 2",
            "  .amdhsa_user_sgpr_kernarg_segment_ptr 1", "  .amdhsa_system_sgpr_workgroup_id_x 1", ".end_amdhsa_kernel"]
    return "\n".join(out) + "\n"

WOLATE_DEFAULT = 1
if __name__ == "__main__":
    import json
    kw = json.loads(sys.argv[2]) if len(sys.argv) > 2 else {}
    open(sys.argv[1], "w").write(gen(**kw))

LAST = 5
```

```python
import sys
sys.path.insert(0, "gen")
from asmlib import Asm, fix_hazards

KNAME = "recurrent_scan__mha_block_cached__geglu_ffn__decode_kernel"

XN, QP, UP, Q, PART, STAT, SEL, YP, RED, H = 0, 2560, 4608, 6656, 7424, 13568, 13696, 14464, 18560, 19584
WOL = 19968
DP = WOL
LDS_BYTES = WOL + 49152
CNT, QBOX, OBOX, YBOX, FBOX, PROFO = 0x1000, 0x4000, 0x50000, 0x150000, 0x1A0000, 0x200000
WS_REC = 0x400000
NFFN = 24
FFN_LAST = 1
NWG = NFFN + 256
SPIN = 1 << 17

sK, sV, sAUX, sWS, sX, sOUT, sAUX2 = 28, 32, 36, 40, 44, 48, 52
sWAVE, sH, sR, sTAG, sE, sT0, sT1, sCNT = 56, 57, 58, 60, 61, 62, 63, 3
sTILE = 80
sN, sNEXT = 86, 87
sRET1, sRET2, sLIM, sPOFF, sPH, sPROD = 84, 22, 59, 21, 20, 19
sCTR = 88
vLANE, vKV, vOFF = 1, 3, 2
RING = 60
vQ0, vQ1 = 8, 204
vACC0, vM0, vL0 = 20, 44, 45
vACC1, vM1, vL1 = 216, 240, 241
WQ = 156
XP = 236
KVREC = 50331648 + 1572864

def srd(s): return f"s[{s}:{s+3}]"

def gen(PROF=0, NT=1, FLA=8, STG=2, SLP=1, EARLY=0, DL=2, NS=4, STATIC=0, CH1=1, SCS='sc0 sc1', SCL='sc0 sc1', DBGT=0, MF=1, PUB1=1, PRE=4, WOLATE=3, THR=0, JIT=0, FTHR=0, W0PRE=0):
    a = Asm(); e = a.e
    nt = " nt" if NT else ""
    prof_n = [0]
    SP = [64, 66, 68, 70, 72, 74, 76, 78, 90, 92, 98, 100, 4, 6]
    def stamp(level=1):
        if (PROF and level == 1) or PROF == level:
            i = prof_n[0]; prof_n[0] += 1
            e(f"s_memrealtime s[{SP[i]}:{SP[i]+1}]")
    def allreduce(regs, op, tmps, bits):
        for bit in bits:
            if bit in (0, 1, 2, 3, "m"):
                mod = {0: "quad_perm:[1,0,3,2]", 1: "quad_perm:[2,3,0,1]", 2: "row_half_mirror", 3: "row_ror:8", "m": "row_mirror"}[bit]
                for r in regs:
                    e(f"{op}_dpp v{r}, v{r}, v{r} {mod} row_mask:0xf bank_mask:0xf")
            else:
                sw = "v_permlane16_swap_b32" if bit == 4 else "v_permlane32_swap_b32"
                for r, t in zip(regs, tmps): e(f"v_mov_b32 v{t}, v{r}")
                for r, t in zip(regs, tmps): e(f"{sw} v{r}, v{t}")
                for r, t in zip(regs, tmps): e(f"{op} v{r}, v{r}, v{t}")
    def swapred(pairs, bit):
        sw = "v_permlane16_swap_b32" if bit == 4 else "v_permlane32_swap_b32"
        for x, y in pairs: e(f"{sw} v{x}, v{y}")
        for x, y in pairs: e(f"v_add_f32 v{x}, v{x}, v{y}")
    def mktag():
        e(f"s_mul_i32 s{sTAG}, s{sE}, 0x9E3779B1"); e(f"s_add_u32 s{sTAG}, s{sTAG}, 0x7F4A7C15")
    def lane_poll(name, loads, tagregs, tmp):
        e(f"s_mov_b32 s{sCNT}, {SPIN}")
        a.label(name)
        for l in loads: e(l)
        e("s_waitcnt vmcnt(0)")
        e(f"v_xor_b32 v{tmp}, s{sTAG}, v{tagregs[0]}")
        for t in tagregs[1:]:
            e(f"v_xor_b32 v{tmp+1}, s{sTAG}, v{t}")
            e(f"v_or_b32 v{tmp}, v{tmp}, v{tmp+1}")
        e(f"v_cmp_ne_u32 vcc, 0, v{tmp}")
        e("s_mov_b64 exec, vcc")
        e(f"s_cbranch_execz {name}_done")
        e(f"s_sleep {SLP}")
        e(f"s_sub_u32 s{sCNT}, s{sCNT}, 1")
        e(f"s_cmp_lg_u32 s{sCNT}, 0")
        e(f"s_cbranch_scc1 {name}")
        a.label(name + "_done")
        e("s_mov_b64 exec, -1")

    def layernorm():
        D_ = [[8, 9, 10, 11, 12], [14, 15, 16, 17, 18]]
        X = [[20 + i for i in range(10)], [30 + i for i in range(10)]]
        for b in range(2):
            for i in range(5):
                e(f"v_lshlrev_b32 v{X[b][2*i]}, 16, v{D_[b][i]}")
                e(f"v_and_b32 v{X[b][2*i+1]}, 0xffff0000, v{D_[b][i]}")
        for b in range(2):
            e(f"v_add_f32 v{40+b}, v{X[b][0]}, v{X[b][1]}")
        for i in range(2, 10):
            for b in range(2): e(f"v_add_f32 v{40+b}, v{40+b}, v{X[b][i]}")
        allreduce([40, 41], "v_add_f32", [46, 47], [0, 1, 2, "m", 4, 5])
        e(f"s_mov_b32 s{sT0}, 0x3acccccd")
        for b in range(2): e(f"v_mul_f32 v{40+b}, s{sT0}, v{40+b}")
        for b in range(2):
            e(f"v_sub_f32 v{48+b}, v{X[b][0]}, v{40+b}")
        for b in range(2):
            e(f"v_mul_f32 v{42+b}, v{48+b}, v{48+b}")
        for i in range(1, 10):
            for b in range(2): e(f"v_sub_f32 v{48+2*(i&1)+b}, v{X[b][i]}, v{40+b}")
            for b in range(2): e(f"v_fmac_f32 v{42+b}, v{48+2*(i&1)+b}, v{48+2*(i&1)+b}")
        allreduce([42, 43], "v_add_f32", [46, 47], [0, 1, 2, "m", 4, 5])
        for b in range(2): e(f"v_mul_f32 v{42+b}, s{sT0}, v{42+b}")
        e("v_cvt_pk_bf16_f32 v46, v40, v41")
        e("v_cvt_pk_bf16_f32 v47, v42, v43")
        e("v_lshlrev_b32 v40, 16, v46"); e("v_and_b32 v41, 0xffff0000, v46")
        e("v_lshlrev_b32 v42, 16, v47"); e("v_and_b32 v43, 0xffff0000, v47")
        e("v_add_f32 v42, 0x3727c5ac, v42"); e("v_add_f32 v43, 0x3727c5ac, v43")
        e("v_cvt_pk_bf16_f32 v46, v42, v43")
        e("v_lshlrev_b32 v42, 16, v46"); e("v_and_b32 v43, 0xffff0000, v46")
        e("v_sqrt_f32 v42, v42"); e("v_sqrt_f32 v43, v43")
        e("v_cvt_pk_bf16_f32 v46, v42, v43")
        e("v_lshlrev_b32 v42, 16, v46"); e("v_and_b32 v43, 0xffff0000, v46")
        e("v_rcp_f32 v42, v42"); e("v_rcp_f32 v43, v43")
        e(f"v_mul_u32_u24 v5, 20, v{vLANE}")
        for i in range(5):
            for b in range(2):
                x0, x1 = X[b][2*i], X[b][2*i+1]
                e(f"v_sub_f32 v{x0}, v{x0}, v{40+b}"); e(f"v_sub_f32 v{x1}, v{x1}, v{40+b}")
            for b in range(2):
                x0, x1 = X[b][2*i], X[b][2*i+1]
                e(f"v_cvt_pk_bf16_f32 v{46+b}, v{x0}, v{x1}")
            for b in range(2):
                x0, x1 = X[b][2*i], X[b][2*i+1]
                e(f"v_lshlrev_b32 v{x0}, 16, v{46+b}"); e(f"v_and_b32 v{x1}, 0xffff0000, v{46+b}")
            for b in range(2):
                x0, x1 = X[b][2*i], X[b][2*i+1]
                e(f"v_mul_f32 v{x0}, v{x0}, v{42+b}"); e(f"v_mul_f32 v{x1}, v{x1}, v{42+b}")
            for b in range(2):
                x0, x1 = X[b][2*i], X[b][2*i+1]
                e(f"v_cvt_pk_bf16_f32 v{x0}, v{x0}, v{x1}")
            for b in range(2):
                e(f"ds_write_b32 v5, v{X[b][2*i]} offset:{XN + 1280*b + 4*i}")

    def xp_read(nrows, base_sgpr=None):
        e(f"v_lshrrev_b32 v6, 3, v{vLANE}")
        e(f"v_mul_u32_u24 v6, {nrows*8}, v6")
        e(f"s_mul_i32 s{sT0}, s{sWAVE}, {nrows*2}")
        if base_sgpr is not None: e(f"s_add_u32 s{sT0}, s{sT0}, s{base_sgpr}")
        e(f"v_add_u32 v6, s{sT0}, v6")
        e("s_waitcnt lgkmcnt(0)")
        n = nrows // 2
        for b in range(2):
            for p in range(n):
                e(f"ds_read_b32 v{XP+10*b+p}, v6 offset:{XN + 1280*b + 4*p}")

    def xloads():
        e(f"v_mul_u32_u24 v4, 20, v{vLANE}")
        e(f"buffer_load_dwordx4 v[8:11], v4, {srd(sX)}, 0 offen")
        e(f"buffer_load_dword v12, v4, {srd(sX)}, 0 offen offset:16")
        e(f"buffer_load_dwordx4 v[14:17], v4, {srd(sX)}, 0 offen offset:1280")
        e(f"buffer_load_dword v18, v4, {srd(sX)}, 0 offen offset:1296")

    def unit_addr(RS, nrows, vdst):
        e(f"v_lshrrev_b32 v6, 3, v{vLANE}")
        e(f"v_mul_u32_u24 v6, {nrows*4}, v6")
        e(f"s_mul_i32 s{sT0}, s{sWAVE}, {nrows}")
        e(f"v_add_u32 v6, s{sT0}, v6")
        e(f"s_mov_b32 s{sT0}, {RS}")
        e(f"v_mul_lo_u32 v6, v6, s{sT0}")
        e(f"v_and_b32 v7, 7, v{vLANE}")
        e(f"v_lshl_add_u32 v{vdst}, v7, 4, v6")

    def sel_ops(src, odd, d):
        for b in range(2):
            if not odd:
                e(f"v_and_b32 v{d+2*b}, 0xffff, v{src[b]}")
                e(f"v_lshlrev_b32 v{d+2*b+1}, 16, v{src[b]}")
            else:
                e(f"v_lshrrev_b32 v{d+2*b}, 16, v{src[b]}")
                e(f"v_and_b32 v{d+2*b+1}, 0xffff0000, v{src[b]}")

    def mac16(W, A, sel):
        for dd in range(4):
            for b in range(2):
                e(f"v_dot2c_f32_bf16 v{A+8*b+2*dd}, v{W+dd}, v{sel+2*b}")
                e(f"v_dot2c_f32_bf16 v{A+8*b+2*dd+1}, v{W+dd}, v{sel+2*b+1}")

    def unit_reduce(A, ldsbase):
        swapred([(A+i, A+8+i) for i in range(8)], 5)
        swapred([(A+i, A+4+i) for i in range(4)], 4)
        allreduce([A, A+1, A+2, A+3], "v_add_f32", None, [3])
        e(f"v_lshrrev_b32 v6, 5, v{vLANE}"); e("v_lshlrev_b32 v6, 8, v6")
        e(f"v_and_b32 v7, 7, v{vLANE}"); e("v_lshl_add_u32 v6, v7, 5, v6")
        e(f"v_bfe_u32 v7, v{vLANE}, 4, 1"); e("v_lshl_add_u32 v6, v7, 4, v6")
        e(f"s_lshl_b32 s{sT0}, s{sWAVE}, 9")
        e(f"v_add_u32 v6, s{sT0}, v6")
        e(f"ds_write_b128 v6, v[{A}:{A+3}] offset:{ldsbase}")

    def kv_loads(slot, t):
        e(f"s_lshr_b32 s{sT0}, s{t}, 9"); e(f"s_mul_i32 s{sT0}, s{sT0}, 50331648")
        e(f"s_and_b32 s{sT1}, s{t}, 511"); e(f"s_mul_i32 s{sT1}, s{sT1}, 3072")
        e(f"s_add_u32 s{sT0}, s{sT0}, s{sT1}")
        e(f"s_cmp_ge_u32 s{t}, 1024"); e(f"s_cselect_b32 s{sT0}, 0xf0000000, s{sT0}")
        e(f"v_add_u32 v{vOFF}, s{sT0}, v{vKV}")
        b = RING + 24 * slot
        for s in range(3): e(f"buffer_load_dwordx4 v[{b+4*s}:{b+4*s+3}], v{vOFF}, {srd(sK)}, 0 offen offset:{128*s}{nt}")
        for s in range(3): e(f"buffer_load_dwordx4 v[{b+12+4*s}:{b+12+4*s+3}], v{vOFF}, {srd(sV)}, 0 offen offset:{128*s}{nt}")

    def wo_dma(lab):
        e(f"s_cmp_lt_u32 s{sR}, 3"); e(f"s_cbranch_scc1 {lab}")
        e(f"s_mul_i32 s{sT0}, s{sH}, {192*1280}"); e(f"s_sub_u32 s{sT1}, s{sR}, 3"); e(f"s_lshl_b32 s{sT1}, s{sT1}, 8")
        e(f"s_add_u32 s{sT0}, s{sT0}, s{sT1}")
        e(f"s_add_u32 s{sAUX2}, s12, s{sT0}"); e(f"s_addc_u32 s{sAUX2+1}, s13, 0")
        e(f"s_mov_b32 s{sAUX2+2}, {191*1280+256}"); e(f"s_mov_b32 s{sAUX2+3}, 0x20000")
        e(f"v_lshrrev_b32 v6, 4, v{vLANE}"); e("v_mul_u32_u24 v6, 12, v6")
        e(f"s_mul_i32 s{sT0}, s{sWAVE}, 48"); e(f"v_add_u32 v6, s{sT0}, v6")
        e("v_mul_u32_u24 v6, 1280, v6")
        e(f"v_and_b32 v7, 15, v{vLANE}"); e("v_lshl_add_u32 v6, v7, 4, v6")
        e(f"s_mov_b32 s{sT1}, 0")
        e(f"s_mul_i32 s{sT0}, s{sWAVE}, 12288"); e(f"s_add_u32 s{sT0}, s{sT0}, {WOL}")
        for i in range(12):
            e(f"s_mov_b32 m0, s{sT0}"); e("s_nop 0")
            e(f"buffer_load_dwordx4 v6, {srd(sAUX2)}, s{sT1} offen{nt} lds")
            if i < 11: e(f"s_add_u32 s{sT1}, s{sT1}, 1280"); e(f"s_add_u32 s{sT0}, s{sT0}, 1024")
        a.label(lab)

    hdr = open("recurrent_scan__mha_block_cached__geglu_ffn__decode.s.ref").read().split("\n")
    out = []
    for l in hdr:
        if not l.startswith(";"): break
        if "@launch" in l or "Override" in l or "grid=ceil" in l: continue
        out.append(l)
    out.append(f"; @launch grid=({NWG},1,1) block=(256,1,1) lds={LDS_BYTES}")
    out += ['.amdgcn_target "amdgcn-amd-amdhsa--gfx950"', ".text", f".globl {KNAME}", ".p2align 8", f".type {KNAME},@function", f"{KNAME}:"]

    e(f"s_cmp_ge_u32 s2, {NWG}"); e("s_cbranch_scc1 L_end")
    stamp()
    if DBGT: e("s_memrealtime s[98:99]")
    e("s_load_dwordx8 s[4:11], s[0:1], 0")
    e("s_load_dwordx2 s[12:13], s[0:1], 32")
    e("s_load_dwordx4 s[24:27], s[0:1], 80")
    e("s_load_dwordx4 s[16:19], s[0:1], 48")
    e("s_load_dwordx4 s[20:23], s[0:1], 64")
    e(f"v_and_b32 v{vLANE}, 63, v0")
    e("v_lshrrev_b32 v2, 6, v0")
    e(f"v_readfirstlane_b32 s{sWAVE}, v2")
    e(f"s_and_b32 s{sR}, s2, 7")
    e(f"s_lshr_b32 s{sH}, s2, 3")
    e(f"s_lshl_b32 s{sT1}, s{sR}, 2"); e(f"s_add_u32 s{sH}, s{sH}, s{sT1}"); e(f"s_and_b32 s{sH}, s{sH}, 31")
    e(f"s_lshr_b32 s{sT1}, s{sH}, 2"); e(f"s_sub_u32 s{sR}, s{sR}, s{sT1}"); e(f"s_add_u32 s{sR}, s{sR}, 7"); e(f"s_and_b32 s{sR}, s{sR}, 7")
    e("s_lshr_b32 s94, s2, 3"); e("s_sub_u32 s94, s94, 3")
    e("s_mul_i32 s95, s94, 43"); e("s_lshr_b32 s95, s95, 8")
    e("s_and_b32 s96, s2, 7"); e("s_lshl_b32 s96, s96, 2"); e("s_add_u32 s96, s96, s95")
    e("s_mul_i32 s95, s95, 6"); e("s_sub_u32 s95, s94, s95")
    e("s_cmp_ge_u32 s95, 3"); e("s_cselect_b32 s15, 1, 0")
    e("s_mul_i32 s14, s15, 3"); e("s_sub_u32 s14, s95, s14")
    e(f"s_mov_b32 s{sX+2}, 2560"); e(f"s_mov_b32 s{sX+3}, 0x20000")
    e(f"s_mov_b32 s{sWS+2}, {WS_REC}"); e(f"s_mov_b32 s{sWS+3}, 0x20000")
    e(f"s_mov_b32 s{sOUT+2}, 2560"); e(f"s_mov_b32 s{sOUT+3}, 0x20000")
    e(f"v_mul_u32_u24 v4, 20, v{vLANE}")
    e("s_waitcnt lgkmcnt(0)")
    stamp(2)
    e(f"s_mov_b32 s{sX}, s4"); e(f"s_mov_b32 s{sX+1}, s5")
    e(f"s_load_dword s{sE}, s[26:27], 0")
    e(f"s_mov_b32 s{sWS}, s26"); e(f"s_mov_b32 s{sWS+1}, s27")
    e(f"s_mov_b32 s{sOUT}, s22"); e(f"s_mov_b32 s{sOUT+1}, s23")
    e(f"s_cmp_ge_u32 s2, 256"); e("s_cbranch_scc1 L_ffn")

    e("s_cmp_ge_u32 s94, 24"); e("s_cbranch_scc1 L_setup")
    xloads()
    e(f"s_mul_i32 s{sT0}, s96, 384"); e(f"s_lshl_b32 s{sT1}, s14, 7"); e(f"s_add_u32 s{sT0}, s{sT0}, s{sT1}")
    e(f"s_mul_i32 s{sT1}, s15, {320*12288}"); e(f"s_add_u32 s{sT0}, s{sT0}, s{sT1}")
    e(f"s_add_u32 s{sAUX}, s10, s{sT0}"); e(f"s_addc_u32 s{sAUX+1}, s11, 0")
    e(f"s_mov_b32 s{sAUX+2}, {319*12288+128}"); e(f"s_mov_b32 s{sAUX+3}, 0x20000")
    unit_addr(12288, 10, 4)
    e(f"s_mov_b32 s{sT1}, 0")
    for i in range(10):
        e(f"buffer_load_dwordx4 v[{WQ+4*i}:{WQ+4*i+3}], v4, {srd(sAUX)}, s{sT1} offen{nt}")
        if i < 9: e(f"s_add_u32 s{sT1}, s{sT1}, 12288")
    a.label("L_setup")
    e(f"s_mul_i32 s{sT1}, s{sH}, 1572864")
    e(f"s_add_u32 s{sK}, s6, s{sT1}"); e(f"s_addc_u32 s{sK+1}, s7, 0"); e(f"s_mov_b32 s{sK+3}, 0x20000")
    e(f"s_add_u32 s{sV}, s8, s{sT1}"); e(f"s_addc_u32 s{sV+1}, s9, 0"); e(f"s_mov_b32 s{sV+3}, 0x20000")
    if W0PRE:
        e(f"s_mov_b32 s{sK+2}, {KVREC}"); e(f"s_mov_b32 s{sV+2}, {KVREC}")
    else:
        e(f"s_cmp_eq_u32 s{sWAVE}, 0")
        e(f"s_cselect_b32 s{sK+2}, 0, {KVREC}"); e(f"s_cselect_b32 s{sV+2}, 0, {KVREC}")
    e(f"s_lshl_b32 s{sT1}, s{sH}, 8"); e(f"s_add_u32 s{sT1}, s{sT1}, {CNT}")
    e(f"s_add_u32 s{sCTR}, s26, s{sT1}"); e(f"s_addc_u32 s{sCTR+1}, s27, 0")
    e(f"v_lshrrev_b32 v6, 3, v{vLANE}"); e(f"v_mul_u32_u24 v{vKV}, 384, v6")
    e(f"v_and_b32 v7, 7, v{vLANE}"); e(f"v_lshl_add_u32 v{vKV}, v7, 4, v{vKV}")
    e(f"s_lshl_b32 s{sT0}, s{sR}, 2"); e(f"s_add_u32 s{sT0}, s{sT0}, s{sWAVE}"); e(f"s_mul_i32 s{sT0}, s{sT0}, {NS}")
    for d in range(NS): e(f"s_add_u32 s{sTILE+d}, s{sT0}, {d}")
    e(f"s_or_b32 s{sT0}, s95, s{sWAVE}"); e(f"s_cmp_lg_u32 s{sT0}, 0"); e("s_cbranch_scc1 L_noinit")
    e("s_cmp_ge_u32 s94, 24"); e("s_cbranch_scc1 L_noinit")
    e(f"s_lshl_b32 s{sT1}, s96, 8"); e(f"s_add_u32 s{sT1}, s{sT1}, {CNT}")
    e(f"s_add_u32 s16, s26, s{sT1}"); e(f"s_addc_u32 s17, s27, 0")
    e(f"s_mov_b32 s{sN}, {32*NS}")
    e(f"s_atomic_swap s{sN}, s[16:17], 0 glc")
    a.label("L_noinit")
    e("s_cmp_ge_u32 s94, 24"); e("s_cbranch_scc1 L_nowq")
    stamp(2)
    e("s_waitcnt vmcnt(10)")
    stamp(2)
    layernorm()
    e(f"s_mul_i32 s{sT1}, s15, 640")
    xp_read(10, sT1)
    for d in range(EARLY): kv_loads(d, sTILE + d)
    for i in range(16): e(f"v_mov_b32 v{20+i}, 0")
    e("s_waitcnt lgkmcnt(0)")
    stamp(2)
    for i in range(10):
        e(f"s_waitcnt vmcnt({6*EARLY + 9 - i})")
        sel_ops([XP + (i >> 1), XP + 10 + (i >> 1)], i & 1, 52)
        mac16(WQ + 4*i, 20, 52)
    stamp(2)
    unit_reduce(20, QP)
    e("s_waitcnt lgkmcnt(0)")
    e("s_barrier")
    stamp(2)
    e(f"s_cmp_lg_u32 s{sWAVE}, 0"); e("s_cbranch_scc1 L_kvrest0")
    e(f"v_lshlrev_b32 v6, 3, v{vLANE}")
    for w in range(4): e(f"ds_read_b64 v[{20+2*w}:{21+2*w}], v6 offset:{QP + 512*w}")
    mktag()
    e(f"v_lshrrev_b32 v6, 5, v{vLANE}"); e("v_mul_u32_u24 v6, 3072, v6")
    e(f"v_and_b32 v7, 31, v{vLANE}"); e("v_lshl_add_u32 v6, v7, 5, v6")
    e(f"s_lshl_b32 s{sT0}, s96, 13"); e(f"s_lshl_b32 s{sT1}, s14, 10"); e(f"s_add_u32 s{sT0}, s{sT0}, s{sT1}")
    e(f"s_lshl_b32 s{sT1}, s15, 4"); e(f"s_add_u32 s{sT0}, s{sT0}, s{sT1}")
    e(f"s_add_u32 s{sT0}, s{sT0}, {QBOX}")
    e("s_waitcnt lgkmcnt(0)")
    e("v_add_f32 v20, v20, v22"); e("v_add_f32 v21, v21, v23"); e("v_add_f32 v24, v24, v26"); e("v_add_f32 v25, v25, v27")
    e("v_add_f32 v40, v20, v24"); e("v_add_f32 v42, v21, v25")
    e(f"v_mov_b32 v41, s{sTAG}"); e(f"v_mov_b32 v43, s{sTAG}")
    e(f"buffer_store_dwordx4 v[40:43], v6, {srd(sWS)}, s{sT0} offen {SCS}")
    if PUB1: e("s_barrier")
    e("s_branch L_kvrest" if W0PRE else "s_branch L_qwait")
    a.label("L_kvrest0")
    if PUB1: e("s_barrier")
    e("s_branch L_kvrest")
    a.label("L_nowq")
    if not W0PRE:
        e(f"s_cmp_eq_u32 s{sWAVE}, 0"); e("s_cbranch_scc1 L_qwait")
    for d in range(EARLY): kv_loads(d, sTILE + d)
    a.label("L_kvrest")
    for d in range(EARLY, PRE):
        if STG: e(f"s_waitcnt vmcnt({6*(STG-1)})")
        kv_loads(d, sTILE + d)
    a.label("L_qwait")
    stamp(2)
    e("s_waitcnt lgkmcnt(0)")
    mktag()
    e(f"s_cmp_lg_u32 s{sWAVE}, 0"); e("s_cbranch_scc1 L_qbar")
    e("s_setprio 2")
    e(f"s_lshl_b32 s{sT0}, s{sH}, 13"); e(f"s_add_u32 s{sT0}, s{sT0}, {QBOX}")
    e(f"s_add_u32 s{sT1}, s{sT0}, 3072")
    e(f"v_lshlrev_b32 v6, 5, v{vLANE}")
    e(f"v_and_b32 v7, 31, v{vLANE}"); e("v_lshlrev_b32 v7, 5, v7"); e("v_add_u32 v7, 2048, v7")
    loads = []
    for b, so in ((0, sT0), (1, sT1)):
        base = (204 if W0PRE else 60) + 16 * b
        loads.append(f"buffer_load_dwordx4 v[{base}:{base+3}], v6, {srd(sWS)}, s{so} offen {SCL}")
        loads.append(f"buffer_load_dwordx4 v[{base+4}:{base+7}], v6, {srd(sWS)}, s{so} offen offset:16 {SCL}")
        loads.append(f"buffer_load_dwordx4 v[{base+8}:{base+11}], v7, {srd(sWS)}, s{so} offen {SCL}")
        loads.append(f"buffer_load_dwordx4 v[{base+12}:{base+15}], v7, {srd(sWS)}, s{so} offen offset:16 {SCL}")
    lane_poll("L_pq", loads, [(205 if W0PRE else 61) + 2*i for i in range(16)], 52)
    e(f"v_lshlrev_b32 v6, 2, v{vLANE}")
    e(f"v_and_b32 v7, 31, v{vLANE}"); e("v_lshlrev_b32 v7, 2, v7")
    for b in range(2):
        base = (204 if W0PRE else 60) + 16 * b
        e(f"v_add_f32 v{base}, v{base}, v{base+4}"); e(f"v_add_f32 v{base+2}, v{base+2}, v{base+6}")
        e(f"v_add_f32 v{base+8}, v{base+8}, v{base+12}"); e(f"v_add_f32 v{base+10}, v{base+10}, v{base+14}")
        e(f"v_cvt_pk_bf16_f32 v{base}, v{base}, v{base+2}"); e(f"v_cvt_pk_bf16_f32 v{base+8}, v{base+8}, v{base+10}")
        e(f"ds_write_b32 v6, v{base} offset:{Q + 384*b}")
        e(f"ds_write_b32 v7, v{base+8} offset:{Q + 384*b + 256}")
    e("s_waitcnt lgkmcnt(0)")
    e("s_setprio 0")
    stamp(2)
    e(f"s_mov_b32 s{sK+2}, {KVREC}"); e(f"s_mov_b32 s{sV+2}, {KVREC}")
    a.label("L_qbar")
    e("s_barrier")
    stamp()
    e(f"s_mov_b32 s{sN}, {1 if CH1 else DL}")
    e(f"v_and_b32 v7, 7, v{vLANE}"); e("v_lshlrev_b32 v6, 4, v7")
    for s in range(3): e(f"ds_read_b128 v[{vQ0+4*s}:{vQ0+4*s+3}], v6 offset:{Q + 128*s}")
    if not W0PRE:
        e(f"s_cmp_lg_u32 s{sWAVE}, 0"); e("s_cbranch_scc1 L_w0kv")
        for d in range(min(PRE, NS)): kv_loads(d, sTILE + d)
        a.label("L_w0kv")
    for d in range(min(PRE, NS), NS): kv_loads(d, sTILE + d)
    if not WOLATE: wo_dma('L_nowo')
    if WOLATE >= 2:
        e(f"s_mul_i32 s{sT0}, s{sH}, {192*1280}"); e(f"s_max_u32 s{sT1}, s{sR}, 3"); e(f"s_sub_u32 s{sT1}, s{sT1}, 3"); e(f"s_lshl_b32 s{sT1}, s{sT1}, 8")
        e(f"s_add_u32 s{sT0}, s{sT0}, s{sT1}")
        e(f"s_add_u32 s{sAUX2}, s12, s{sT0}"); e(f"s_addc_u32 s{sAUX2+1}, s13, 0")
        e(f"s_cmp_lt_u32 s{sR}, 3"); e(f"s_cselect_b32 s{sAUX2+2}, 0, {191*1280+256}"); e(f"s_mov_b32 s{sAUX2+3}, 0x20000")
        e(f"v_lshrrev_b32 v6, 4, v{vLANE}"); e("v_mul_u32_u24 v6, 12, v6")
        e(f"s_mul_i32 s{sT0}, s{sWAVE}, 48"); e(f"v_add_u32 v6, s{sT0}, v6")
        e("v_mul_u32_u24 v6, 1280, v6")
        e(f"v_and_b32 v7, 15, v{vLANE}"); e("v_lshl_add_u32 v254, v7, 4, v6")
        e(f"s_mul_i32 s24, s{sWAVE}, 12288"); e(f"s_add_u32 s24, s24, {WOL}")
        if WOLATE == 3: e("s_mov_b32 m0, s24"); e("s_mov_b32 s25, 0")
    for i in range(24): e(f"v_mov_b32 v{vACC0+i}, 0")
    e(f"v_mov_b32 v{vM0}, 0xff000000"); e(f"v_mov_b32 v{vL0}, 0")
    e(f"v_lshlrev_b32 v6, 2, v{vLANE}"); e(f"s_mul_i32 s{sT0}, s{sWAVE}, 768"); e(f"v_add_u32 v6, s{sT0}, v6")
    for c in range(2):
        for k in range(3): e(f"ds_write_b32 v6, v{vL0} offset:{PART + 3072*c + 256*k}")
    e(f"s_lshl_b32 s{sT0}, s{sWAVE}, 3"); e(f"v_mov_b32 v7, s{sT0}")
    e(f"ds_write_b64 v7, v[{vM0}:{vL0}] offset:{STAT}"); e(f"ds_write_b64 v7, v[{vM0}:{vL0}] offset:{STAT+32}")
    e(f"s_mov_b32 s{sLIM}, 512"); e(f"s_mov_b32 s{sPOFF}, 0")
    e("s_mov_b32 s14, 0x3d93cd3a"); e("s_mov_b32 s15, 0x3fb8aa3b")
    e("s_waitcnt lgkmcnt(0)")
    e(f"s_atomic_add s{sN}, s[{sCTR}:{sCTR+1}], 0 glc")

    def tile_compute(slot, q, acc, m, l, waitV):
        b = RING + 24 * slot
        e(f"v_mov_b32 v46, 0"); e("v_mov_b32 v47, 0")
        for i in range(12): e(f"v_dot2c_f32_bf16 v{46+(i&1)}, v{b+i}, v{q+i}")
        e("v_add_f32 v46, v46, v47")
        allreduce([46], "v_add_f32", None, [0, 1, 2])
        e("v_cvt_pk_bf16_f32 v46, v46, v46"); e("v_and_b32 v46, 0xffff0000, v46")
        e("v_mul_f32 v46, s14, v46")
        e("v_cvt_pk_bf16_f32 v46, v46, v46"); e("v_and_b32 v46, 0xffff0000, v46")
        e("v_mul_f32 v46, s15, v46")
        e(f"v_max_f32 v47, v{m}, v46")
        e(f"v_sub_f32 v48, v{m}, v47"); e("v_sub_f32 v49, v46, v47")
        e("v_exp_f32 v48, v48"); e("v_exp_f32 v49, v49")
        e(f"v_mov_b32 v{m}, v47")
        e(f"v_fma_f32 v{l}, v{l}, v48, v49")
        e("v_cvt_pk_bf16_f32 v50, v49, 0"); e("v_lshlrev_b32 v51, 16, v50")
        for i in range(12):
            e(f"v_pk_mul_f32 v[{acc+2*i}:{acc+2*i+1}], v[{acc+2*i}:{acc+2*i+1}], v[48:49] op_sel_hi:[1,0]")
        e(f"s_waitcnt vmcnt({waitV})")
        for i in range(12):
            e(f"v_dot2c_f32_bf16 v{acc+2*i}, v{b+12+i}, v50")
            e(f"v_dot2c_f32_bf16 v{acc+2*i+1}, v{b+12+i}, v51")
    def refill(d):
        if STATIC:
            if first[0]:
                e(f"s_lshl_b32 s{sT0}, s{sR}, 2"); e(f"s_add_u32 s{sT0}, s{sT0}, s{sWAVE}"); e(f"s_mul_i32 s{sT0}, s{sT0}, {DL}")
                e(f"s_add_u32 s{sTILE+d}, s{sT0}, {32*NS + d}")
            else:
                e(f"s_add_u32 s{sTILE+d}, s{sTILE+d}, {32*DL}")
        elif CH1 and THR and not first[0]:
            e("s_waitcnt lgkmcnt(0)")
            e(f"s_mov_b32 s{sTILE+d}, s{sN}")
            e(f"s_cmp_ge_u32 s{sN}, {THR}"); e("s_cselect_b32 s95, 1, 0")
            e(f"s_cbranch_scc1 L_nopre_{d}")
            e(f"s_mov_b32 s{sN}, 1")
            e(f"s_atomic_add s{sN}, s[{sCTR}:{sCTR+1}], 0 glc")
            a.label(f"L_nopre_{d}")
        elif CH1:
            e("s_waitcnt lgkmcnt(0)")
            e(f"s_mov_b32 s{sTILE+d}, s{sN}")
            e(f"s_mov_b32 s{sN}, 1")
            e(f"s_atomic_add s{sN}, s[{sCTR}:{sCTR+1}], 0 glc")
        elif d == 0:
            e("s_waitcnt lgkmcnt(0)")
            e(f"s_mov_b32 s{sTILE}, s{sN}")
            e(f"s_add_u32 s{sNEXT}, s{sN}, 1")
            e(f"s_mov_b32 s{sN}, {DL}")
            e(f"s_atomic_add s{sN}, s[{sCTR}:{sCTR+1}], 0 glc")
        else:
            e(f"s_mov_b32 s{sTILE+d}, s{sNEXT}")
            if d < DL - 1: e(f"s_add_u32 s{sNEXT}, s{sNEXT}, 1")
        if WOLATE == 3 and not first[0]:
            e(f"s_cmp_ge_u32 s{sTILE+d}, 1024"); e(f"s_cbranch_scc1 L_dma_{d}")
            kv_loads(d, sTILE + d)
            a.label(f"L_rj_{d}")
        else:
            kv_loads(d, sTILE + d)
    first = [True]
    if THR: e("s_mov_b32 s95, 0")
    order = list(range(NS))
    for d in range(NS):
        younger = len(order) - 1 - order.index(d)
        e(f"s_waitcnt vmcnt({6*younger+3})")
        tile_compute(d, vQ0, vACC0, vM0, vL0, 6*younger)
        order.remove(d)
        if d < DL:
            refill(d); order.append(d)
    first[0] = False
    a.label("L_loop")
    for d in range(DL):
        e(f"s_cmp_ge_u32 s{sTILE+d}, s{sLIM}"); e(f"s_cbranch_scc1 L_sw_{d}")
        a.label(f"L_cont_{d}")
        e(f"s_waitcnt vmcnt({6*(DL-1)+3})")
        if THR:
            e("s_cmp_eq_u32 s95, 0"); e(f"s_cbranch_scc1 L_nojit_{d}")
            e(f"s_mov_b32 s{sN}, 1")
            e(f"s_atomic_add s{sN}, s[{sCTR}:{sCTR+1}], 0 glc")
            a.label(f"L_nojit_{d}")
        tile_compute(d, vQ0, vACC0, vM0, vL0, 6*(DL-1))
        refill(d)
    e("s_branch L_loop")
    if WOLATE == 3:
        assert DL == 2
        for d in range(DL):
            a.label(f"L_dma_{d}")
            stamp(4)
            for k in range(6):
                e(f"buffer_load_dwordx4 v254, {srd(sAUX2)}, s25 offen{nt} lds")
                e("s_add_u32 m0, m0, 1024"); e("s_add_u32 s25, s25, 1280")
            e(f"s_branch L_rj_{d}")
    for d in range(DL):
        a.label(f"L_sw_{d}")
        e(f"s_cmp_ge_u32 s{sTILE+d}, 1024"); e("s_cbranch_scc1 L_loopend")
        e(f"s_call_b64 s[{sRET1}:{sRET1+1}], L_switch")
        e(f"s_branch L_cont_{d}")
    a.label("L_switch")
    e(f"s_call_b64 s[{sRET2}:{sRET2+1}], L_flush")
    for i in range(24): e(f"v_mov_b32 v{vACC0+i}, 0")
    e(f"v_mov_b32 v{vM0}, 0xff000000"); e(f"v_mov_b32 v{vL0}, 0")
    e(f"v_and_b32 v7, 7, v{vLANE}"); e("v_lshlrev_b32 v6, 4, v7")
    for s_ in range(3): e(f"ds_read_b128 v[{vQ0+4*s_}:{vQ0+4*s_+3}], v6 offset:{Q + 384 + 128*s_}")
    e(f"s_mov_b32 s{sLIM}, 1024"); e(f"s_mov_b32 s{sPOFF}, 3072")
    e("s_waitcnt lgkmcnt(0)")
    e(f"s_setpc_b64 s[{sRET1}:{sRET1+1}]")
    def flush_code():
        acc = vACC0
        e(f"v_mov_b32 v46, v{vM0}")
        e(f"v_and_b32 v6, 7, v{vLANE}"); e("v_lshlrev_b32 v6, 5, v6")
        allreduce([46], "v_max_f32", [47], [3])
        e(f"v_lshrrev_b32 v7, 5, v{vLANE}"); e("v_lshl_add_u32 v6, v7, 4, v6")
        allreduce([46], "v_max_f32", [47], [4])
        e(f"v_bfe_u32 v7, v{vLANE}, 4, 1"); e("v_lshl_add_u32 v6, v7, 3, v6")
        allreduce([46], "v_max_f32", [47], [5])
        e(f"s_mul_i32 s{sT0}, s{sWAVE}, 768"); e(f"s_add_u32 s{sT0}, s{sT0}, s{sPOFF}")
        e(f"v_sub_f32 v48, v{vM0}, v46")
        e(f"v_add_u32 v6, s{sT0}, v6")
        e("v_exp_f32 v48, v48")
        e(f"s_lshl_b32 s{sT0}, s{sWAVE}, 3"); e(f"s_lshr_b32 s{sT1}, s{sPOFF}, 6"); e(f"s_and_b32 s{sT1}, s{sT1}, 32"); e(f"s_add_u32 s{sT0}, s{sT0}, s{sT1}")
        e(f"v_mul_f32 v47, v{vL0}, v48")
        for i in range(12):
            e(f"v_pk_mul_f32 v[{acc+2*i}:{acc+2*i+1}], v[{acc+2*i}:{acc+2*i+1}], v[48:49] op_sel_hi:[1,0]")
        prs5 = [(acc+8*s_+i, acc+8*s_+4+i) for s_ in range(3) for i in range(4)]
        e("v_add_f32_dpp v47, v47, v47 row_ror:8 row_mask:0xf bank_mask:0xf")
        for x, y in prs5: e(f"v_permlane32_swap_b32 v{x}, v{y}")
        e("v_mov_b32 v49, v47")
        for x, y in prs5: e(f"v_add_f32 v{x}, v{x}, v{y}")
        e("v_permlane16_swap_b32 v47, v49")
        prs4 = [(acc+8*s_+i, acc+8*s_+2+i) for s_ in range(3) for i in range(2)]
        for x, y in prs4: e(f"v_permlane16_swap_b32 v{x}, v{y}")
        e("v_add_f32 v47, v47, v49")
        for x, y in prs4: e(f"v_add_f32 v{x}, v{x}, v{y}")
        e("v_mov_b32 v49, v47")
        e(f"v_mov_b32 v7, s{sT0}")
        allreduce([acc+8*s_+i for s_ in range(3) for i in range(2)], "v_add_f32", None, [3])
        e("v_permlane32_swap_b32 v47, v49")
        for s_ in range(3): e(f"ds_write_b64 v6, v[{acc+8*s_}:{acc+8*s_+1}] offset:{PART + 256*s_}")
        e("v_add_f32 v47, v47, v49")
        e(f"ds_write_b64 v7, v[46:47] offset:{STAT}")
    a.label("L_flush")
    flush_code()
    e(f"s_setpc_b64 s[{sRET2}:{sRET2+1}]")
    a.label("L_loopend")
    stamp()
    if WOLATE == 1: wo_dma('L_nowo')
    if WOLATE == 3:
        a.label("L_dmafix")
        e("s_cmp_ge_u32 s25, 15360"); e("s_cbranch_scc1 L_dmafix_done")
        e(f"buffer_load_dwordx4 v254, {srd(sAUX2)}, s25 offen{nt} lds")
        e("s_add_u32 m0, m0, 1024"); e("s_add_u32 s25, s25, 1280")
        e("s_branch L_dmafix")
        a.label("L_dmafix_done")
    if WOLATE == 2:
        n0 = len(a.L)
        flush_code()
        code = a.L[n0:]; del a.L[n0:]
        e("s_mov_b32 m0, s24")
        e("s_mov_b32 s25, 0")
        step = max(1, len(code) // 13)
        k = 0
        for j, l in enumerate(code):
            a.L.append(l)
            if j % step == step - 1 and k < 12:
                a.L.append(f"buffer_load_dwordx4 v254, {srd(sAUX2)}, s25 offen{nt} lds")
                if k < 11:
                    a.L.append("s_add_u32 m0, m0, 1024"); a.L.append("s_add_u32 s25, s25, 1280")
                k += 1
        assert k == 12
    else:
        e(f"s_call_b64 s[{sRET2}:{sRET2+1}], L_flush")
    e("s_waitcnt lgkmcnt(0)")
    stamp(3)
    e("s_barrier")
    e("v_and_b32 v5, 127, v0"); e("v_lshrrev_b32 v4, 7, v0")
    e("v_cmp_gt_u32 vcc, 96, v5"); e("s_and_saveexec_b64 s[16:17], vcc"); e("s_cbranch_execz L_pub_done")
    e("v_mul_u32_u24 v6, 3072, v4"); e("v_lshl_add_u32 v6, v5, 3, v6")
    e("v_lshlrev_b32 v7, 5, v4")
    for w in range(4): e(f"ds_read_b64 v[{20+2*w}:{21+2*w}], v6 offset:{PART + 768*w}")
    e(f"ds_read_b128 v[28:31], v7 offset:{STAT}"); e(f"ds_read_b128 v[32:35], v7 offset:{STAT+16}")
    e("v_lshlrev_b32 v6, 11, v4"); e("v_lshl_add_u32 v6, v5, 4, v6")
    e(f"s_lshl_b32 s{sT0}, s{sH}, 3"); e(f"s_add_u32 s{sT0}, s{sT0}, s{sR}"); e(f"s_lshl_b32 s{sT0}, s{sT0}, 12"); e(f"s_add_u32 s{sT0}, s{sT0}, {OBOX}")
    e("v_and_b32 v5, 1, v5"); e("v_cmp_eq_u32 vcc, 1, v5")
    e(f"v_mov_b32 v43, s{sTAG}")
    e("s_waitcnt lgkmcnt(0)")
    e("v_max_f32 v36, v28, v30"); e("v_max3_f32 v36, v36, v32, v34")
    for w in range(4): e(f"v_sub_f32 v{28+2*w}, v{28+2*w}, v36")
    for w in range(4): e(f"v_exp_f32 v{28+2*w}, v{28+2*w}")
    e("v_mul_f32 v40, v20, v28"); e("v_mul_f32 v41, v21, v28"); e("v_mul_f32 v37, v29, v28")
    for w in range(1, 4):
        e(f"v_fmac_f32 v40, v{20+2*w}, v{28+2*w}"); e(f"v_fmac_f32 v41, v{21+2*w}, v{28+2*w}"); e(f"v_fmac_f32 v37, v{29+2*w}, v{28+2*w}")
    e("v_cndmask_b32 v42, v36, v37, vcc")
    e(f"buffer_store_dwordx4 v[40:43], v6, {srd(sWS)}, s{sT0} offen {SCS}")
    a.label("L_pub_done")
    e("s_mov_b64 exec, s[16:17]")
    if WOLATE == 4:
        e("s_mov_b32 m0, s24"); e("s_mov_b32 s25, 0")
        for k in range(12):
            e(f"buffer_load_dwordx4 v254, {srd(sAUX2)}, s25 offen{nt} lds")
            if k < 11: e("s_add_u32 m0, m0, 1024"); e("s_add_u32 s25, s25, 1280")
    stamp()
    e(f"s_cmp_lt_u32 s{sR}, 3"); e("s_cbranch_scc1 L_final")
    def wo_reads():
        e(f"v_lshlrev_b32 v9, 4, v{vLANE}"); e(f"s_mul_i32 s{sT0}, s{sWAVE}, 12288"); e(f"v_add_u32 v9, s{sT0}, v9")
        for i in range(12): e(f"ds_read_b128 v[{100+4*i}:{103+4*i}], v9 offset:{WOL + 1024*i}")
    if not WOLATE: wo_reads()
    e(f"v_and_b32 v24, 7, v{vLANE}")
    e("v_and_b32 v25, 1, v24")
    e("v_lshrrev_b32 v24, 1, v24")
    e("v_cmp_eq_u32 vcc, 1, v25")
    e("v_mov_b32 v26, 0x0c0c0100"); e("v_mov_b32 v27, 0x01000c0c"); e("v_mov_b32 v28, 0x0c0c0302"); e("v_mov_b32 v29, 0x03020c0c")
    e("v_cndmask_b32 v26, v26, v27, vcc"); e("v_cndmask_b32 v28, v28, v29, vcc")
    e("v_mov_b32 v27, 0x0c0c0c0c")
    for r in range(4):
        e(f"v_cmp_eq_u32 vcc, {r}, v24")
        e(f"v_cndmask_b32 v{148+r}, v27, v26, vcc"); e(f"v_cndmask_b32 v{152+r}, v27, v28, vcc")
    e(f"v_lshrrev_b32 v6, 4, v{vLANE}"); e("v_mul_u32_u24 v6, 24, v6")
    e(f"v_bfe_u32 v7, v{vLANE}, 3, 1"); e("v_mul_u32_u24 v7, 384, v7"); e("v_add_u32 v6, v6, v7")
    e(f"s_mul_i32 s{sT0}, s{sWAVE}, 96"); e(f"v_add_u32 v156, s{sT0}, v6")
    e(f"v_lshrrev_b32 v6, 5, v{vLANE}"); e("v_lshlrev_b32 v6, 9, v6")
    e(f"v_and_b32 v7, 15, v{vLANE}"); e("v_lshl_add_u32 v6, v7, 5, v6")
    e(f"v_bfe_u32 v7, v{vLANE}, 4, 1"); e("v_lshl_add_u32 v6, v7, 4, v6")
    e(f"s_lshl_b32 s{sT0}, s{sWAVE}, 10"); e(f"v_add_u32 v157, s{sT0}, v6")
    e(f"s_cmp_eq_u32 s{sWAVE}, 3"); e("s_cbranch_scc1 L_wo_w3")
    e("v_cmp_le_u32 vcc, 96, v0")
    e("v_cndmask_b32 v7, 0, 1, vcc")
    e("v_mul_u32_u24 v5, 96, v7"); e("v_sub_u32 v5, v0, v5")
    e("v_lshlrev_b32 v6, 11, v7")
    e("v_lshl_add_u32 v6, v5, 4, v6")
    e(f"s_lshl_b32 s{sT0}, s{sH}, 15"); e(f"s_add_u32 s{sT0}, s{sT0}, {OBOX}")
    for p in range(8): e(f"s_mov_b64 s[{4+2*p}:{5+2*p}], -1")
    e(f"s_mov_b32 s{sCNT}, {SPIN}")
    a.label("L_p1")
    e(f"s_mov_b32 s{sT1}, s{sT0}")
    for p in range(8):
        e(f"s_mov_b64 exec, s[{4+2*p}:{5+2*p}]"); e(f"s_cbranch_execz L_p1_s{p}")
        e(f"buffer_load_dwordx4 v[{60+4*p}:{63+4*p}], v6, {srd(sWS)}, s{sT1} offen {SCL}")
        a.label(f"L_p1_s{p}")
        if p < 7: e(f"s_add_u32 s{sT1}, s{sT1}, 4096")
    e("s_waitcnt vmcnt(0)")
    for p in range(8):
        e(f"s_mov_b64 exec, s[{4+2*p}:{5+2*p}]"); e(f"s_cbranch_execz L_p1_c{p}")
        e(f"v_cmp_ne_u32 s[{4+2*p}:{5+2*p}], s{sTAG}, v{63+4*p}")
        a.label(f"L_p1_c{p}")
    e("s_mov_b64 exec, -1")
    e("s_nop 1")
    e("s_or_b64 s[20:21], s[4:5], s[6:7]")
    for p in range(2, 8): e(f"s_or_b64 s[20:21], s[20:21], s[{4+2*p}:{5+2*p}]")
    e("s_cbranch_scc0 L_p1_done")
    e(f"s_sleep {SLP}")
    e(f"s_sub_u32 s{sCNT}, s{sCNT}, 1"); e(f"s_cmp_lg_u32 s{sCNT}, 0"); e("s_cbranch_scc1 L_p1")
    a.label("L_p1_done")
    stamp(3)
    if PROF == 3: e(f"s_sub_u32 s97, {SPIN}, s{sCNT}")
    if WOLATE: wo_reads()
    e("v_and_b32 v8, 1, v5"); e("v_cmp_eq_u32 vcc, 1, v8")
    for p in range(8): e(f"v_mov_b32_dpp v{63+4*p}, v{62+4*p} quad_perm:[1,0,3,2] row_mask:0xf bank_mask:0xf")
    for p in range(8):
        e(f"v_cndmask_b32 v{8+p}, v{62+4*p}, v{63+4*p}, vcc")
        e(f"v_cndmask_b32 v{62+4*p}, v{63+4*p}, v{62+4*p}, vcc")
    e("v_max3_f32 v36, v8, v9, v10"); e("v_max3_f32 v36, v36, v11, v12"); e("v_max3_f32 v36, v36, v13, v14"); e("v_max_f32 v36, v36, v15")
    for p in range(8): e(f"v_sub_f32 v{8+p}, v{8+p}, v36")
    for p in range(8): e(f"v_exp_f32 v{8+p}, v{8+p}")
    e("v_mul_f32 v40, v60, v8"); e("v_mul_f32 v41, v61, v8"); e("v_mul_f32 v37, v62, v8")
    for p in range(1, 8):
        e(f"v_fmac_f32 v40, v{60+4*p}, v{8+p}"); e(f"v_fmac_f32 v41, v{61+4*p}, v{8+p}"); e(f"v_fmac_f32 v37, v{62+4*p}, v{8+p}")
    e("v_rcp_f32 v37, v37")
    e("v_mul_f32 v40, v40, v37"); e("v_mul_f32 v41, v41, v37")
    e("v_cvt_pk_bf16_f32 v40, v40, v41")
    e("v_mul_u32_u24 v6, 384, v7"); e("v_lshl_add_u32 v6, v5, 2, v6")
    e(f"ds_write_b32 v6, v40 offset:{SEL}")
    e("s_branch L_wo_bar")
    a.label("L_wo_w3")
    if WOLATE:
        e("s_waitcnt vmcnt(0)")
        wo_reads()
    a.label("L_wo_bar")
    for i in range(4): e(f"v_mov_b32 v{20+i}, 0")
    e("s_waitcnt lgkmcnt(0)")
    e("s_barrier")
    stamp()
    for p in range(3): e(f"ds_read_b64 v[{60+2*p}:{61+2*p}], v156 offset:{SEL + 8*p}")
    e("s_waitcnt lgkmcnt(0)")
    def aperm(i):
        A = 44 + 4 * (i & 1)
        for r in range(4):
            e(f"v_perm_b32 v{A+r}, v{60 + (i >> 1)}, v{60 + (i >> 1)}, v{(152 if i & 1 else 148) + r}")
    aperm(0)
    for i in range(12):
        if i < 11: aperm(i + 1)
        else: e("s_nop 1")
        A = 44 + 4 * (i & 1)
        e(f"v_mfma_f32_16x16x32_bf16 v[20:23], v[{A}:{A+3}], v[{100+4*i}:{103+4*i}], v[20:23]")
    e("s_nop 7")
    e(f"ds_write_b128 v157, v[20:23] offset:{YP}")
    e("v_lshlrev_b32 v6, 3, v0")
    e(f"s_mul_i32 s{sT0}, s{sH}, 5"); e(f"s_add_u32 s{sT0}, s{sT0}, s{sR}"); e(f"s_sub_u32 s{sT0}, s{sT0}, 3")
    e(f"s_lshl_b32 s{sT0}, s{sT0}, 11"); e(f"s_add_u32 s{sT0}, s{sT0}, {YBOX}")
    e(f"v_mov_b32 v41, s{sTAG}"); e(f"v_mov_b32 v43, s{sTAG}")
    e("s_waitcnt lgkmcnt(0)")
    e("s_barrier")
    e(f"s_cmp_ge_u32 s{sWAVE}, 2"); e("s_cbranch_scc1 L_fin")
    for w in range(4): e(f"ds_read_b64 v[{20+2*w}:{21+2*w}], v6 offset:{YP + 1024*w}")
    e("v_lshlrev_b32 v6, 4, v0")
    e("s_waitcnt lgkmcnt(0)")
    e("v_add_f32 v20, v20, v22"); e("v_add_f32 v21, v21, v23"); e("v_add_f32 v24, v24, v26"); e("v_add_f32 v25, v25, v27")
    e("v_add_f32 v40, v20, v24"); e("v_add_f32 v42, v21, v25")
    e(f"buffer_store_dwordx4 v[40:43], v6, {srd(sWS)}, s{sT0} offen {SCS}")
    stamp(3)
    e("s_branch L_fin")
    a.label("L_final")
    e(f"s_cmp_lg_u32 s{sWAVE}, 0"); e("s_cbranch_scc1 L_fin")
    e(f"s_mul_i32 s14, s{sH}, 3"); e(f"s_add_u32 s14, s14, s{sR}")
    e("s_cmp_ge_u32 s14, 40"); e("s_cbranch_scc1 L_fin")
    e("s_cmp_ge_u32 s14, 20"); e("s_cselect_b32 s15, 1, 0")
    e("s_mul_i32 s16, s15, 20"); e("s_sub_u32 s16, s14, s16")
    e("s_lshr_b32 s17, s16, 2"); e("s_and_b32 s18, s16, 3")
    e("s_mul_i32 s19, s15, 640"); e("s_lshl_b32 s20, s16, 5"); e("s_add_u32 s19, s19, s20")
    e(f"v_and_b32 v7, 7, v{vLANE}"); e("v_lshlrev_b32 v4, 2, v7")
    e(f"v_lshrrev_b32 v5, 5, v{vLANE}"); e("v_lshl_add_u32 v4, v5, 1, v4")
    e(f"v_bfe_u32 v5, v{vLANE}, 4, 1"); e("v_add_u32 v4, v4, v5")
    e("v_add_u32 v4, s19, v4"); e("v_lshlrev_b32 v4, 1, v4")
    e(f"buffer_load_ushort v58, v4, {srd(sX)}, 0 offen")
    e(f"v_lshrrev_b32 v5, 3, v{vLANE}")
    e("v_mul_u32_u24 v6, 10240, v5"); e("v_lshl_add_u32 v6, v7, 5, v6")
    e("s_lshl_b32 s20, s17, 11"); e("s_lshl_b32 s21, s15, 10"); e("s_add_u32 s20, s20, s21"); e("s_lshl_b32 s21, s18, 8"); e("s_add_u32 s20, s20, s21")
    e(f"s_add_u32 s20, s20, {YBOX}")
    e("s_lshl_b32 s21, s19, 3"); e(f"s_add_u32 s21, s21, {FBOX}")
    for i in range(1, 4):
        e(f"s_add_u32 s{4+i}, s20, {81920*i}"); e(f"s_add_u32 s{8+i}, s21, {81920*i}")
    e("s_mov_b32 s4, s20"); e("s_mov_b32 s8, s21")
    def red4(base, n):
        for i in range(1, n):
            for c in range(4): e(f"v_add_f32 v{base+2*c}, v{base+2*c}, v{base+8*i+2*c}")
        swapred([(base, base+4), (base+2, base+6)], 5)
        swapred([(base, base+2)], 4)
        allreduce([base], "v_add_f32", None, [3])
    lds_ = []
    for i in range(3):
        lds_.append(f"buffer_load_dwordx4 v[{100+8*i}:{103+8*i}], v6, {srd(sWS)}, s{8+i} offen {SCL}")
        lds_.append(f"buffer_load_dwordx4 v[{104+8*i}:{107+8*i}], v6, {srd(sWS)}, s{8+i} offen offset:16 {SCL}")
    lane_poll("L_pf", lds_, [101 + 2*k for k in range(12)], 52)
    red4(100, 3)
    e("s_mov_b32 s22, 0xbfb8aa3b")
    e("v_cvt_pk_bf16_f32 v24, v100, v100"); e("v_and_b32 v24, 0xffff0000, v24")
    e("v_mul_f32 v25, s22, v24"); e("v_exp_f32 v25, v25"); e("v_add_f32 v25, 1.0, v25"); e("v_rcp_f32 v25, v25")
    e("v_mul_f32 v24, v24, v25")
    e("v_cvt_pk_bf16_f32 v24, v24, v24"); e("v_and_b32 v24, 0xffff0000, v24")
    e("v_lshlrev_b32 v58, 16, v58")
    stamp(3)
    lds_ = []
    for i in range(4):
        lds_.append(f"buffer_load_dwordx4 v[{60+8*i}:{63+8*i}], v6, {srd(sWS)}, s{4+i} offen {SCL}")
        lds_.append(f"buffer_load_dwordx4 v[{64+8*i}:{67+8*i}], v6, {srd(sWS)}, s{4+i} offen offset:16 {SCL}")
    lane_poll("L_p2", lds_, [61 + 2*k for k in range(16)], 52)
    stamp(3)
    if PROF == 3: e(f"s_sub_u32 s97, {SPIN}, s{sCNT}")
    red4(60, 4)
    e("v_cvt_pk_bf16_f32 v20, v60, v60"); e("v_and_b32 v20, 0xffff0000, v20")
    e("v_mul_f32 v20, v20, v24")
    e("v_cvt_pk_bf16_f32 v20, v20, v20"); e("v_and_b32 v20, 0xffff0000, v20")
    e("v_add_f32 v20, v58, v20")
    e("v_cvt_pk_bf16_f32 v20, v20, v20")
    e(f"buffer_store_short v20, v4, {srd(sOUT)}, 0 offen")
    e("s_cmp_lg_u32 s14, 0"); e("s_cbranch_scc1 L_fin")
    e("s_mov_b64 exec, 1")
    e(f"v_mov_b32 v21, s{sTAG}"); e("v_mov_b32 v22, 0")
    e(f"buffer_store_dword v21, v22, {srd(sWS)}, 0 offen")
    e("s_branch L_fin")

    a.label("L_ffn")
    e("s_setprio 3")
    e("s_sub_u32 s57, s2, 256")
    e(f"s_lshl_b32 s{sT0}, s57, 7")
    e(f"s_add_u32 s{sAUX}, s16, s{sT0}"); e(f"s_addc_u32 s{sAUX+1}, s17, 0"); e(f"s_mov_b32 s{sAUX+2}, {639*3072+128}"); e(f"s_mov_b32 s{sAUX+3}, 0x20000")
    e(f"s_add_u32 s{sAUX2}, s18, s{sT0}"); e(f"s_addc_u32 s{sAUX2+1}, s19, 0"); e(f"s_mov_b32 s{sAUX2+2}, {639*3072+128}"); e(f"s_mov_b32 s{sAUX2+3}, 0x20000")
    e(f"s_mul_i32 s{sT0}, s57, {64*1280}")
    e(f"s_add_u32 s{sK}, s20, s{sT0}"); e(f"s_addc_u32 s{sK+1}, s21, 0"); e(f"s_mov_b32 s{sK+2}, {64*1280}"); e(f"s_mov_b32 s{sK+3}, 0x20000")
    xloads()
    unit_addr(3072, 20, 2)
    e(f"v_lshrrev_b32 v3, 4, v{vLANE}"); e("v_lshlrev_b32 v3, 2, v3")
    e(f"s_lshl_b32 s{sT0}, s{sWAVE}, 4"); e(f"v_add_u32 v3, s{sT0}, v3")
    e("v_mul_u32_u24 v3, 1280, v3")
    e(f"v_and_b32 v7, 15, v{vLANE}"); e("v_lshl_add_u32 v3, v7, 4, v3")
    def fload(n):
        if n < 20:
            e(f"s_mov_b32 s{sT1}, {3072*n}")
            e(f"buffer_load_dwordx4 v[{60+4*n}:{63+4*n}], v2, {srd(sAUX)}, s{sT1} offen{nt}")
        elif n < 40:
            i = n - 20
            e(f"s_mov_b32 s{sT1}, {3072*i}")
            e(f"buffer_load_dwordx4 v[{140+4*i}:{143+4*i}], v2, {srd(sAUX2)}, s{sT1} offen{nt}")
        elif n < 60:
            k = n - 40; i, sg = k // 5, k % 5
            e(f"s_mov_b32 s{sT1}, {1280*i}")
            e(f"buffer_load_dwordx4 v[{60+4*k}:{63+4*k}], v3, {srd(sK)}, s{sT1} offen offset:{256*sg}{nt}")
    if FTHR:
        e("s_waitcnt vmcnt(0)")
        layernorm()
        xp_read(20)
        e("s_waitcnt lgkmcnt(0)")
        mktag()
        e(f"s_lshl_b32 s{sT0}, s57, 13"); e(f"s_add_u32 s{sT0}, s{sT0}, {QBOX}")
        e("v_mov_b32 v6, 0")
        e(f"s_mov_b32 s{sCNT}, {SPIN}")
        a.label("L_ft1")
        e(f"buffer_load_dwordx4 v[48:51], v6, {srd(sWS)}, s{sT0} offen {SCL}")
        e("s_waitcnt vmcnt(0)")
        e(f"v_cmp_ne_u32 vcc, s{sTAG}, v49")
        e("s_cbranch_vccz L_ft1_done")
        e("s_sleep 16")
        e(f"s_sub_u32 s{sCNT}, s{sCNT}, 1"); e(f"s_cmp_lg_u32 s{sCNT}, 0"); e("s_cbranch_scc1 L_ft1")
        a.label("L_ft1_done")
        e(f"s_lshl_b32 s{sT1}, s57, 8"); e(f"s_add_u32 s{sT1}, s{sT1}, {CNT}")
        e(f"s_add_u32 s{sCTR}, s26, s{sT1}"); e(f"s_addc_u32 s{sCTR+1}, s27, 0")
        e(f"s_mov_b32 s{sCNT}, {SPIN}")
        a.label("L_ft2")
        e(f"s_mov_b32 s{sN}, 0")
        e(f"s_atomic_add s{sN}, s[{sCTR}:{sCTR+1}], 0 glc")
        e("s_waitcnt lgkmcnt(0)")
        e(f"s_cmp_ge_u32 s{sN}, {FTHR}"); e("s_cbranch_scc1 L_ft2_done")
        e("s_sleep 16")
        e(f"s_sub_u32 s{sCNT}, s{sCNT}, 1"); e(f"s_cmp_lg_u32 s{sCNT}, 0"); e("s_cbranch_scc1 L_ft2")
        a.label("L_ft2_done")
        for n in range(FLA): fload(n)
    else:
        for n in range(FLA): fload(n)
        e(f"s_waitcnt vmcnt({FLA})")
        layernorm()
        xp_read(20)
    for i in range(32): e(f"v_mov_b32 v{20+i}, 0")
    e("s_waitcnt lgkmcnt(0)")
    for n in range(40):
        issued = min(60, n + FLA)
        e(f"s_waitcnt vmcnt({issued - n - 1})")
        i = n % 20
        sel_ops([XP + (i >> 1), XP + 10 + (i >> 1)], i & 1, 52)
        mac16((60 if n < 20 else 140) + 4*i, 20 if n < 20 else 36, 52)
        if n + FLA < 60: fload(n + FLA)
    unit_reduce(20, QP)
    unit_reduce(36, UP)
    for n in range(40 + FLA, 60): fload(n)
    e("s_waitcnt lgkmcnt(0)")
    e("s_barrier")
    e(f"s_cmp_ge_u32 s{sWAVE}, 2"); e("s_cbranch_scc1 L_ffn_h")
    e("v_lshlrev_b32 v6, 2, v0")
    for w in range(4):
        e(f"ds_read_b32 v{20+w}, v6 offset:{QP + 512*w}"); e(f"ds_read_b32 v{24+w}, v6 offset:{UP + 512*w}")
    e("s_waitcnt lgkmcnt(0)")
    e("v_add_f32 v20, v20, v21"); e("v_add_f32 v22, v22, v23"); e("v_add_f32 v24, v24, v25"); e("v_add_f32 v26, v26, v27")
    e("v_add_f32 v20, v20, v22"); e("v_add_f32 v24, v24, v26")
    e("v_cvt_pk_bf16_f32 v28, v20, v24")
    e("v_lshlrev_b32 v20, 16, v28"); e("v_and_b32 v24, 0xffff0000, v28")
    e("v_mul_f32 v25, v20, v20"); e("v_mul_f32 v25, v25, v20")
    e("s_mov_b32 s22, 0x3d372713"); e("v_fma_f32 v25, v25, s22, v20")
    e("s_mov_b32 s22, 0xc0135761"); e("v_mul_f32 v25, s22, v25")
    e("v_exp_f32 v25, v25"); e("v_add_f32 v25, 1.0, v25"); e("v_rcp_f32 v25, v25")
    e("v_mul_f32 v20, v20, v25")
    e("v_cvt_pk_bf16_f32 v20, v20, v20"); e("v_and_b32 v20, 0xffff0000, v20")
    e("v_mul_f32 v20, v20, v24")
    e("v_cvt_pk_bf16_f32 v20, v20, v20")
    e("v_lshlrev_b32 v6, 1, v0")
    e(f"ds_write_b16 v6, v20 offset:{H}")
    e("s_waitcnt lgkmcnt(0)")
    a.label("L_ffn_h")
    e("s_barrier")
    e(f"v_lshrrev_b32 v6, 4, v{vLANE}"); e("v_lshlrev_b32 v6, 3, v6")
    e(f"s_lshl_b32 s{sT0}, s{sWAVE}, 5"); e(f"v_add_u32 v6, s{sT0}, v6")
    e(f"ds_read_b64 v[56:57], v6 offset:{H}"); e(f"ds_read_b64 v[58:59], v6 offset:{H+128}")
    for i in range(80): e(f"v_mov_b32 v{140+i}, 0")
    e("s_waitcnt vmcnt(0) lgkmcnt(0)")
    for i in range(4):
        sel_ops([56 + (i >> 1), 58 + (i >> 1)], i & 1, 52)
        for sg in range(5):
            mac16(60 + 20*i + 4*sg, 140 + 16*sg, 52)
    for sg in range(5):
        A = 140 + 16*sg
        swapred([(A+i, A+8+i) for i in range(8)], 5)
        swapred([(A+i, A+4+i) for i in range(4)], 4)
    e(f"v_lshrrev_b32 v6, 5, v{vLANE}"); e("v_mul_u32_u24 v6, 2560, v6")
    e(f"v_and_b32 v7, 15, v{vLANE}"); e("v_lshl_add_u32 v6, v7, 5, v6")
    e(f"v_bfe_u32 v7, v{vLANE}, 4, 1"); e("v_lshl_add_u32 v6, v7, 4, v6")
    e(f"s_mul_i32 s{sT0}, s{sWAVE}, 5120"); e(f"v_add_u32 v6, s{sT0}, v6")
    for sg in range(5): e(f"ds_write_b128 v6, v[{140+16*sg}:{143+16*sg}] offset:{DP + 512*sg}")
    e("s_waitcnt lgkmcnt(0)")
    e("s_barrier")
    mktag()
    e(f"s_mul_i32 s{sT0}, s57, 10240"); e(f"s_add_u32 s{sT0}, s{sT0}, {FBOX}")
    e(f"v_mov_b32 v41, s{sTAG}"); e(f"v_mov_b32 v43, s{sTAG}")
    for q in range(3):
        if q == 2:
            e(f"s_cmp_ge_u32 s{sWAVE}, 2"); e("s_cbranch_scc1 L_fin")
        e(f"v_add_u32 v5, {256*q}, v0"); e("v_lshlrev_b32 v6, 3, v5")
        for w in range(4): e(f"ds_read_b64 v[{20+2*w}:{21+2*w}], v6 offset:{DP + 5120*w}")
        e("s_waitcnt lgkmcnt(0)")
        e("v_add_f32 v20, v20, v22"); e("v_add_f32 v21, v21, v23"); e("v_add_f32 v24, v24, v26"); e("v_add_f32 v25, v25, v27")
        e("v_add_f32 v40, v20, v24"); e("v_add_f32 v42, v21, v25")
        e("v_lshlrev_b32 v6, 4, v5")
        e(f"buffer_store_dwordx4 v[40:43], v6, {srd(sWS)}, s{sT0} offen {SCS}")
        e("s_nop 1")

    a.label("L_fin")
    if DBGT:
        e("s_mov_b64 exec, -1")
        e(f"s_cmp_lg_u32 s{sWAVE}, 0"); e("s_cbranch_scc1 L_end")
        e("s_memrealtime s[100:101]")
        e("s_load_dwordx2 s[4:5], s[0:1], 80")
        e("s_waitcnt lgkmcnt(0)")
        e("s_mov_b32 s6, 256"); e("s_mov_b32 s7, 0x20000")
        e("s_not_b32 s98, s98")
        e("v_mov_b32 v20, s98"); e("v_mov_b32 v21, s100"); e("v_mov_b32 v6, 0")
        e("s_mov_b64 exec, 1")
        e("buffer_atomic_umax v20, v6, s[4:7], 0 offen")
        e("buffer_atomic_umax v21, v6, s[4:7], 0 offen offset:4")
    if PROF:
        stamp()
        n = prof_n[0]
        e("s_mov_b64 exec, -1")
        e(f"s_cmp_lg_u32 s{sWAVE}, 0"); e("s_cbranch_scc1 L_end")
        e("s_waitcnt lgkmcnt(0)")
        e("s_getreg_b32 s14, hwreg(HW_REG_XCC_ID)")
        e(f"s_lshl_b32 s{sT0}, s2, 7"); e(f"s_add_u32 s{sT0}, s{sT0}, {PROFO}")
        e("v_mov_b32 v6, 0")
        e("s_mov_b64 exec, 1")
        for i in range(n):
            e(f"v_mov_b32 v20, s{SP[i]}"); e(f"v_mov_b32 v21, s{SP[i]+1}")
            e(f"buffer_store_dwordx2 v[20:21], v6, {srd(sWS)}, s{sT0} offen offset:{8*i}")
            e("s_nop 1")
        e("v_mov_b32 v20, s14"); e("v_mov_b32 v21, s97")
        e(f"buffer_store_dwordx2 v[20:21], v6, {srd(sWS)}, s{sT0} offen offset:120")
    a.label("L_end")
    e("s_endpgm")
    body = fix_hazards([l for l in a.L if l is not None])
    out += body
    out += ['.section .rodata,"a"', ".p2align 6", f".amdhsa_kernel {KNAME}", "  .amdhsa_next_free_vgpr 256", "  .amdhsa_next_free_sgpr 102",
            "  .amdhsa_accum_offset 256", "  .amdhsa_group_segment_fixed_size 0", "  .amdhsa_kernarg_size 96", "  .amdhsa_user_sgpr_count 2",
            "  .amdhsa_user_sgpr_kernarg_segment_ptr 1", "  .amdhsa_system_sgpr_workgroup_id_x 1", ".end_amdhsa_kernel"]
    return "\n".join(out) + "\n"

WOLATE_DEFAULT = 1
if __name__ == "__main__":
    import json
    kw = json.loads(sys.argv[2]) if len(sys.argv) > 2 else {}
    open(sys.argv[1], "w").write(gen(**kw))

LAST = 5
```

```python
import sys
sys.path.insert(0, "gen")
from asmlib import Asm, fix_hazards

KNAME = "recurrent_scan__mha_block_cached__geglu_ffn__decode_kernel"

XN, QP, UP, Q, PART, STAT, SEL, YP, RED, H = 0, 2560, 4608, 6656, 7424, 13568, 13696, 14464, 18560, 19584
WOL = 19968
DP = WOL
LDS_BYTES = WOL + 49152
CNT, QBOX, OBOX, YBOX, FBOX, PROFO = 0x1000, 0x4000, 0x50000, 0x150000, 0x1A0000, 0x200000
WS_REC = 0x400000
NFFN = 24
FFN_LAST = 1
NWG = NFFN + 256
SPIN = 1 << 17

sK, sV, sAUX, sWS, sX, sOUT, sAUX2 = 28, 32, 36, 40, 44, 48, 52
sWAVE, sH, sR, sTAG, sE, sT0, sT1, sCNT = 56, 57, 58, 60, 61, 62, 63, 3
sTILE = 80
sN, sNEXT = 86, 87
sRET1, sRET2, sLIM, sPOFF, sPH, sPROD = 84, 22, 59, 21, 20, 19
sCTR = 88
vLANE, vKV, vOFF = 1, 3, 2
RING = 60
vQ0, vQ1 = 8, 204
vACC0, vM0, vL0 = 20, 44, 45
vACC1, vM1, vL1 = 216, 240, 241
WQ = 156
XP = 236
KVREC = 50331648 + 1572864

def srd(s): return f"s[{s}:{s+3}]"

def gen(PROF=0, NT=1, FLA=12, STG=2, SLP=0, EARLY=1, DL=2, NS=6, STATIC=0, CH1=1, SCS='sc0 sc1', SCL='sc0 sc1', DBGT=0, MF=1, PUB1=1, PRE=4, WOLATE=3, THR=0, JIT=0, FTHR=0, W0PRE=1, PC=1, ZS=0, ZR=69, P1S=1, BOP=1):
    a = Asm(); e = a.e
    nt = " nt" if NT else ""
    prof_n = [0]
    SP = [64, 66, 68, 70, 72, 74, 76, 78, 90, 92, 98, 100, 4, 6]
    def stamp(level=1):
        if (PROF and level == 1) or PROF == level:
            i = prof_n[0]; prof_n[0] += 1
            e(f"s_memrealtime s[{SP[i]}:{SP[i]+1}]")
    def allreduce(regs, op, tmps, bits):
        for bit in bits:
            if bit in (0, 1, 2, 3, "m"):
                mod = {0: "quad_perm:[1,0,3,2]", 1: "quad_perm:[2,3,0,1]", 2: "row_half_mirror", 3: "row_ror:8", "m": "row_mirror"}[bit]
                for r in regs:
                    e(f"{op}_dpp v{r}, v{r}, v{r} {mod} row_mask:0xf bank_mask:0xf")
            else:
                sw = "v_permlane16_swap_b32" if bit == 4 else "v_permlane32_swap_b32"
                for r, t in zip(regs, tmps): e(f"v_mov_b32 v{t}, v{r}")
                for r, t in zip(regs, tmps): e(f"{sw} v{r}, v{t}")
                for r, t in zip(regs, tmps): e(f"{op} v{r}, v{r}, v{t}")
    def swapred(pairs, bit):
        sw = "v_permlane16_swap_b32" if bit == 4 else "v_permlane32_swap_b32"
        for x, y in pairs: e(f"{sw} v{x}, v{y}")
        for x, y in pairs: e(f"v_add_f32 v{x}, v{x}, v{y}")
    def mktag():
        e(f"s_mul_i32 s{sTAG}, s{sE}, 0x9E3779B1"); e(f"s_add_u32 s{sTAG}, s{sTAG}, 0x7F4A7C15")
    def lane_poll(name, loads, tagregs, tmp):
        e(f"s_mov_b32 s{sCNT}, {SPIN}")
        a.label(name)
        for l in loads: e(l)
        e("s_waitcnt vmcnt(0)")
        e(f"v_xor_b32 v{tmp}, s{sTAG}, v{tagregs[0]}")
        for t in tagregs[1:]:
            if BOP:
                e(f"v_bitop3_b32 v{tmp}, v{tmp}, v{t}, s{sTAG} bitop3:0xf6")
            else:
                e(f"v_xor_b32 v{tmp+1}, s{sTAG}, v{t}")
                e(f"v_or_b32 v{tmp}, v{tmp}, v{tmp+1}")
        e(f"v_cmp_ne_u32 vcc, 0, v{tmp}")
        e("s_mov_b64 exec, vcc")
        e(f"s_cbranch_execz {name}_done")
        e(f"s_sleep {SLP}")
        e(f"s_sub_u32 s{sCNT}, s{sCNT}, 1")
        e(f"s_cmp_lg_u32 s{sCNT}, 0")
        e(f"s_cbranch_scc1 {name}")
        a.label(name + "_done")
        e("s_mov_b64 exec, -1")

    def layernorm():
        D_ = [[8, 9, 10, 11, 12], [14, 15, 16, 17, 18]]
        X = [[20 + i for i in range(10)], [30 + i for i in range(10)]]
        for b in range(2):
            for i in range(5):
                e(f"v_lshlrev_b32 v{X[b][2*i]}, 16, v{D_[b][i]}")
                e(f"v_and_b32 v{X[b][2*i+1]}, 0xffff0000, v{D_[b][i]}")
        for b in range(2):
            e(f"v_add_f32 v{40+b}, v{X[b][0]}, v{X[b][1]}")
        for i in range(2, 10):
            for b in range(2): e(f"v_add_f32 v{40+b}, v{40+b}, v{X[b][i]}")
        allreduce([40, 41], "v_add_f32", [46, 47], [0, 1, 2, "m", 4, 5])
        e(f"s_mov_b32 s{sT0}, 0x3acccccd")
        for b in range(2): e(f"v_mul_f32 v{40+b}, s{sT0}, v{40+b}")
        for b in range(2):
            e(f"v_sub_f32 v{48+b}, v{X[b][0]}, v{40+b}")
        for b in range(2):
            e(f"v_mul_f32 v{42+b}, v{48+b}, v{48+b}")
        for i in range(1, 10):
            for b in range(2): e(f"v_sub_f32 v{48+2*(i&1)+b}, v{X[b][i]}, v{40+b}")
            for b in range(2): e(f"v_fmac_f32 v{42+b}, v{48+2*(i&1)+b}, v{48+2*(i&1)+b}")
        allreduce([42, 43], "v_add_f32", [46, 47], [0, 1, 2, "m", 4, 5])
        for b in range(2): e(f"v_mul_f32 v{42+b}, s{sT0}, v{42+b}")
        e("v_cvt_pk_bf16_f32 v46, v40, v41")
        e("v_cvt_pk_bf16_f32 v47, v42, v43")
        e("v_lshlrev_b32 v40, 16, v46"); e("v_and_b32 v41, 0xffff0000, v46")
        e("v_lshlrev_b32 v42, 16, v47"); e("v_and_b32 v43, 0xffff0000, v47")
        e("v_add_f32 v42, 0x3727c5ac, v42"); e("v_add_f32 v43, 0x3727c5ac, v43")
        e("v_cvt_pk_bf16_f32 v46, v42, v43")
        e("v_lshlrev_b32 v42, 16, v46"); e("v_and_b32 v43, 0xffff0000, v46")
        e("v_sqrt_f32 v42, v42"); e("v_sqrt_f32 v43, v43")
        e("v_cvt_pk_bf16_f32 v46, v42, v43")
        e("v_lshlrev_b32 v42, 16, v46"); e("v_and_b32 v43, 0xffff0000, v46")
        e("v_rcp_f32 v42, v42"); e("v_rcp_f32 v43, v43")
        e(f"v_mul_u32_u24 v5, 20, v{vLANE}")
        for i in range(5):
            for b in range(2):
                x0, x1 = X[b][2*i], X[b][2*i+1]
                e(f"v_sub_f32 v{x0}, v{x0}, v{40+b}"); e(f"v_sub_f32 v{x1}, v{x1}, v{40+b}")
            for b in range(2):
                x0, x1 = X[b][2*i], X[b][2*i+1]
                e(f"v_cvt_pk_bf16_f32 v{46+b}, v{x0}, v{x1}")
            for b in range(2):
                x0, x1 = X[b][2*i], X[b][2*i+1]
                e(f"v_lshlrev_b32 v{x0}, 16, v{46+b}"); e(f"v_and_b32 v{x1}, 0xffff0000, v{46+b}")
            for b in range(2):
                x0, x1 = X[b][2*i], X[b][2*i+1]
                e(f"v_mul_f32 v{x0}, v{x0}, v{42+b}"); e(f"v_mul_f32 v{x1}, v{x1}, v{42+b}")
            for b in range(2):
                x0, x1 = X[b][2*i], X[b][2*i+1]
                e(f"v_cvt_pk_bf16_f32 v{x0}, v{x0}, v{x1}")
            for b in range(2):
                e(f"ds_write_b32 v5, v{X[b][2*i]} offset:{XN + 1280*b + 4*i}")

    def xp_read(nrows, base_sgpr=None):
        e(f"v_lshrrev_b32 v6, 3, v{vLANE}")
        e(f"v_mul_u32_u24 v6, {nrows*8}, v6")
        e(f"s_mul_i32 s{sT0}, s{sWAVE}, {nrows*2}")
        if base_sgpr is not None: e(f"s_add_u32 s{sT0}, s{sT0}, s{base_sgpr}")
        e(f"v_add_u32 v6, s{sT0}, v6")
        e("s_waitcnt lgkmcnt(0)")
        n = nrows // 2
        for b in range(2):
            for p in range(n):
                e(f"ds_read_b32 v{XP+10*b+p}, v6 offset:{XN + 1280*b + 4*p}")

    def xloads():
        e(f"v_mul_u32_u24 v4, 20, v{vLANE}")
        e(f"buffer_load_dwordx4 v[8:11], v4, {srd(sX)}, 0 offen")
        e(f"buffer_load_dword v12, v4, {srd(sX)}, 0 offen offset:16")
        e(f"buffer_load_dwordx4 v[14:17], v4, {srd(sX)}, 0 offen offset:1280")
        e(f"buffer_load_dword v18, v4, {srd(sX)}, 0 offen offset:1296")

    def unit_addr(RS, nrows, vdst):
        e(f"v_lshrrev_b32 v6, 3, v{vLANE}")
        e(f"v_mul_u32_u24 v6, {nrows*4}, v6")
        e(f"s_mul_i32 s{sT0}, s{sWAVE}, {nrows}")
        e(f"v_add_u32 v6, s{sT0}, v6")
        e(f"s_mov_b32 s{sT0}, {RS}")
        e(f"v_mul_lo_u32 v6, v6, s{sT0}")
        e(f"v_and_b32 v7, 7, v{vLANE}")
        e(f"v_lshl_add_u32 v{vdst}, v7, 4, v6")

    def sel_ops(src, odd, d):
        for b in range(2):
            if not odd:
                e(f"v_and_b32 v{d+2*b}, 0xffff, v{src[b]}")
                e(f"v_lshlrev_b32 v{d+2*b+1}, 16, v{src[b]}")
            else:
                e(f"v_lshrrev_b32 v{d+2*b}, 16, v{src[b]}")
                e(f"v_and_b32 v{d+2*b+1}, 0xffff0000, v{src[b]}")

    def mac16(W, A, sel):
        for dd in range(4):
            for b in range(2):
                e(f"v_dot2c_f32_bf16 v{A+8*b+2*dd}, v{W+dd}, v{sel+2*b}")
                e(f"v_dot2c_f32_bf16 v{A+8*b+2*dd+1}, v{W+dd}, v{sel+2*b+1}")

    def unit_reduce(A, ldsbase):
        swapred([(A+i, A+8+i) for i in range(8)], 5)
        swapred([(A+i, A+4+i) for i in range(4)], 4)
        allreduce([A, A+1, A+2, A+3], "v_add_f32", None, [3])
        e(f"v_lshrrev_b32 v6, 5, v{vLANE}"); e("v_lshlrev_b32 v6, 8, v6")
        e(f"v_and_b32 v7, 7, v{vLANE}"); e("v_lshl_add_u32 v6, v7, 5, v6")
        e(f"v_bfe_u32 v7, v{vLANE}, 4, 1"); e("v_lshl_add_u32 v6, v7, 4, v6")
        e(f"s_lshl_b32 s{sT0}, s{sWAVE}, 9")
        e(f"v_add_u32 v6, s{sT0}, v6")
        e(f"ds_write_b128 v6, v[{A}:{A+3}] offset:{ldsbase}")

    def kv_loads(slot, t):
        e(f"s_lshr_b32 s{sT0}, s{t}, 9"); e(f"s_mul_i32 s{sT0}, s{sT0}, 50331648")
        e(f"s_and_b32 s{sT1}, s{t}, 511"); e(f"s_mul_i32 s{sT1}, s{sT1}, 3072")
        e(f"s_add_u32 s{sT0}, s{sT0}, s{sT1}")
        e(f"s_cmp_ge_u32 s{t}, 1024"); e(f"s_cselect_b32 s{sT0}, 0xf0000000, s{sT0}")
        e(f"v_add_u32 v{vOFF}, s{sT0}, v{vKV}")
        b = RING + 24 * slot
        for s in range(3): e(f"buffer_load_dwordx4 v[{b+4*s}:{b+4*s+3}], v{vOFF}, {srd(sK)}, 0 offen offset:{128*s}{nt}")
        for s in range(3): e(f"buffer_load_dwordx4 v[{b+12+4*s}:{b+12+4*s+3}], v{vOFF}, {srd(sV)}, 0 offen offset:{128*s}{nt}")

    def wo_dma(lab):
        e(f"s_cmp_lt_u32 s{sR}, 3"); e(f"s_cbranch_scc1 {lab}")
        e(f"s_mul_i32 s{sT0}, s{sH}, {192*1280}"); e(f"s_sub_u32 s{sT1}, s{sR}, 3"); e(f"s_lshl_b32 s{sT1}, s{sT1}, 8")
        e(f"s_add_u32 s{sT0}, s{sT0}, s{sT1}")
        e(f"s_add_u32 s{sAUX2}, s12, s{sT0}"); e(f"s_addc_u32 s{sAUX2+1}, s13, 0")
        e(f"s_mov_b32 s{sAUX2+2}, {191*1280+256}"); e(f"s_mov_b32 s{sAUX2+3}, 0x20000")
        e(f"v_lshrrev_b32 v6, 4, v{vLANE}"); e("v_mul_u32_u24 v6, 12, v6")
        e(f"s_mul_i32 s{sT0}, s{sWAVE}, 48"); e(f"v_add_u32 v6, s{sT0}, v6")
        e("v_mul_u32_u24 v6, 1280, v6")
        e(f"v_and_b32 v7, 15, v{vLANE}"); e("v_lshl_add_u32 v6, v7, 4, v6")
        e(f"s_mov_b32 s{sT1}, 0")
        e(f"s_mul_i32 s{sT0}, s{sWAVE}, 12288"); e(f"s_add_u32 s{sT0}, s{sT0}, {WOL}")
        for i in range(12):
            e(f"s_mov_b32 m0, s{sT0}"); e("s_nop 0")
            e(f"buffer_load_dwordx4 v6, {srd(sAUX2)}, s{sT1} offen{nt} lds")
            if i < 11: e(f"s_add_u32 s{sT1}, s{sT1}, 1280"); e(f"s_add_u32 s{sT0}, s{sT0}, 1024")
        a.label(lab)

    hdr = open("recurrent_scan__mha_block_cached__geglu_ffn__decode.s.ref").read().split("\n")
    out = []
    for l in hdr:
        if not l.startswith(";"): break
        if "@launch" in l or "Override" in l or "grid=ceil" in l: continue
        out.append(l)
    out.append(f"; @launch grid=({NWG},1,1) block=(256,1,1) lds={LDS_BYTES}")
    out += ['.amdgcn_target "amdgcn-amd-amdhsa--gfx950"', ".text", f".globl {KNAME}", ".p2align 8", f".type {KNAME},@function", f"{KNAME}:"]

    e(f"s_cmp_ge_u32 s2, {NWG}"); e("s_cbranch_scc1 L_end")
    stamp()
    if DBGT: e("s_memrealtime s[98:99]")
    e("s_load_dwordx8 s[4:11], s[0:1], 0")
    e("s_load_dwordx2 s[12:13], s[0:1], 32")
    e("s_load_dwordx4 s[24:27], s[0:1], 80")
    e("s_load_dwordx4 s[16:19], s[0:1], 48")
    e("s_load_dwordx4 s[20:23], s[0:1], 64")
    e(f"v_and_b32 v{vLANE}, 63, v0")
    e("v_lshrrev_b32 v2, 6, v0")
    e(f"v_readfirstlane_b32 s{sWAVE}, v2")
    e(f"s_and_b32 s{sR}, s2, 7")
    e(f"s_lshr_b32 s{sH}, s2, 3")
    e(f"s_lshl_b32 s{sT1}, s{sR}, 2"); e(f"s_add_u32 s{sH}, s{sH}, s{sT1}"); e(f"s_and_b32 s{sH}, s{sH}, 31")
    e(f"s_lshr_b32 s{sT1}, s{sH}, 2"); e(f"s_sub_u32 s{sR}, s{sR}, s{sT1}"); e(f"s_add_u32 s{sR}, s{sR}, 7"); e(f"s_and_b32 s{sR}, s{sR}, 7")
    e("s_lshr_b32 s94, s2, 3"); e("s_sub_u32 s94, s94, 3")
    e("s_mul_i32 s95, s94, 43"); e("s_lshr_b32 s95, s95, 8")
    e("s_and_b32 s96, s2, 7"); e("s_lshl_b32 s96, s96, 2"); e("s_add_u32 s96, s96, s95")
    e("s_mul_i32 s95, s95, 6"); e("s_sub_u32 s95, s94, s95")
    e("s_cmp_ge_u32 s95, 3"); e("s_cselect_b32 s15, 1, 0")
    e("s_mul_i32 s14, s15, 3"); e("s_sub_u32 s14, s95, s14")
    e(f"s_mov_b32 s{sX+2}, 2560"); e(f"s_mov_b32 s{sX+3}, 0x20000")
    e(f"s_mov_b32 s{sWS+2}, {WS_REC}"); e(f"s_mov_b32 s{sWS+3}, 0x20000")
    e(f"s_mov_b32 s{sOUT+2}, 2560"); e(f"s_mov_b32 s{sOUT+3}, 0x20000")
    e(f"v_mul_u32_u24 v4, 20, v{vLANE}")
    e("s_waitcnt lgkmcnt(0)")
    stamp(2)
    e(f"s_mov_b32 s{sX}, s4"); e(f"s_mov_b32 s{sX+1}, s5")
    e(f"s_load_dword s{sE}, s[26:27], 0")
    e(f"s_mov_b32 s{sWS}, s26"); e(f"s_mov_b32 s{sWS+1}, s27")
    e(f"s_mov_b32 s{sOUT}, s22"); e(f"s_mov_b32 s{sOUT+1}, s23")
    e(f"s_cmp_ge_u32 s2, 256"); e("s_cbranch_scc1 L_ffn")

    e("s_cmp_ge_u32 s94, 24"); e("s_cbranch_scc1 L_setup")
    xloads()
    e(f"s_mul_i32 s{sT0}, s96, 384"); e(f"s_lshl_b32 s{sT1}, s14, 7"); e(f"s_add_u32 s{sT0}, s{sT0}, s{sT1}")
    e(f"s_mul_i32 s{sT1}, s15, {320*12288}"); e(f"s_add_u32 s{sT0}, s{sT0}, s{sT1}")
    e(f"s_add_u32 s{sAUX}, s10, s{sT0}"); e(f"s_addc_u32 s{sAUX+1}, s11, 0")
    e(f"s_mov_b32 s{sAUX+2}, {319*12288+128}"); e(f"s_mov_b32 s{sAUX+3}, 0x20000")
    unit_addr(12288, 10, 4)
    e(f"s_mov_b32 s{sT1}, 0")
    for i in range(10):
        e(f"buffer_load_dwordx4 v[{WQ+4*i}:{WQ+4*i+3}], v4, {srd(sAUX)}, s{sT1} offen{nt}")
        if i < 9: e(f"s_add_u32 s{sT1}, s{sT1}, 12288")
    a.label("L_setup")
    e(f"s_mul_i32 s{sT1}, s{sH}, 1572864")
    e(f"s_add_u32 s{sK}, s6, s{sT1}"); e(f"s_addc_u32 s{sK+1}, s7, 0"); e(f"s_mov_b32 s{sK+3}, 0x20000")
    e(f"s_add_u32 s{sV}, s8, s{sT1}"); e(f"s_addc_u32 s{sV+1}, s9, 0"); e(f"s_mov_b32 s{sV+3}, 0x20000")
    if W0PRE:
        e(f"s_mov_b32 s{sK+2}, {KVREC}"); e(f"s_mov_b32 s{sV+2}, {KVREC}")
    else:
        e(f"s_cmp_eq_u32 s{sWAVE}, 0")
        e(f"s_cselect_b32 s{sK+2}, 0, {KVREC}"); e(f"s_cselect_b32 s{sV+2}, 0, {KVREC}")
    e(f"s_lshl_b32 s{sT1}, s{sH}, 8"); e(f"s_add_u32 s{sT1}, s{sT1}, {CNT}")
    e(f"s_add_u32 s{sCTR}, s26, s{sT1}"); e(f"s_addc_u32 s{sCTR+1}, s27, 0")
    e(f"v_lshrrev_b32 v6, 3, v{vLANE}"); e(f"v_mul_u32_u24 v{vKV}, 384, v6")
    e(f"v_and_b32 v7, 7, v{vLANE}"); e(f"v_lshl_add_u32 v{vKV}, v7, 4, v{vKV}")
    e(f"s_lshl_b32 s{sT0}, s{sR}, 2"); e(f"s_add_u32 s{sT0}, s{sT0}, s{sWAVE}"); e(f"s_mul_i32 s{sT0}, s{sT0}, {NS}")
    for d in range(NS): e(f"s_add_u32 s{sTILE+d}, s{sT0}, {d}")
    e(f"s_or_b32 s{sT0}, s95, s{sWAVE}"); e(f"s_cmp_lg_u32 s{sT0}, 0"); e("s_cbranch_scc1 L_noinit")
    e("s_cmp_ge_u32 s94, 24"); e("s_cbranch_scc1 L_noinit")
    e(f"s_lshl_b32 s{sT1}, s96, 8"); e(f"s_add_u32 s{sT1}, s{sT1}, {CNT}")
    e(f"s_add_u32 s16, s26, s{sT1}"); e(f"s_addc_u32 s17, s27, 0")
    e(f"s_mov_b32 s{sN}, {32*NS}")
    e(f"s_atomic_swap s{sN}, s[16:17], 0 glc")
    a.label("L_noinit")
    e("s_cmp_ge_u32 s94, 24"); e("s_cbranch_scc1 L_nowq")
    stamp(2)
    e("s_waitcnt vmcnt(10)")
    stamp(2)
    layernorm()
    e(f"s_mul_i32 s{sT1}, s15, 640")
    xp_read(10, sT1)
    for d in range(EARLY): kv_loads(d, sTILE + d)
    for i in range(16): e(f"v_mov_b32 v{20+i}, 0")
    e("s_waitcnt lgkmcnt(0)")
    stamp(2)
    for i in range(10):
        e(f"s_waitcnt vmcnt({6*EARLY + 9 - i})")
        sel_ops([XP + (i >> 1), XP + 10 + (i >> 1)], i & 1, 52)
        mac16(WQ + 4*i, 20, 52)
    stamp(2)
    unit_reduce(20, QP)
    e("s_waitcnt lgkmcnt(0)")
    e("s_barrier")
    stamp(2)
    e(f"s_cmp_lg_u32 s{sWAVE}, 0"); e("s_cbranch_scc1 L_kvrest0")
    e(f"v_lshlrev_b32 v6, 3, v{vLANE}")
    for w in range(4): e(f"ds_read_b64 v[{20+2*w}:{21+2*w}], v6 offset:{QP + 512*w}")
    mktag()
    e(f"v_lshrrev_b32 v6, 5, v{vLANE}"); e("v_mul_u32_u24 v6, 3072, v6")
    e(f"v_and_b32 v7, 31, v{vLANE}"); e("v_lshl_add_u32 v6, v7, 5, v6")
    e(f"s_lshl_b32 s{sT0}, s96, 13"); e(f"s_lshl_b32 s{sT1}, s14, 10"); e(f"s_add_u32 s{sT0}, s{sT0}, s{sT1}")
    e(f"s_lshl_b32 s{sT1}, s15, 4"); e(f"s_add_u32 s{sT0}, s{sT0}, s{sT1}")
    e(f"s_add_u32 s{sT0}, s{sT0}, {QBOX}")
    e("s_waitcnt lgkmcnt(0)")
    e("v_add_f32 v20, v20, v22"); e("v_add_f32 v21, v21, v23"); e("v_add_f32 v24, v24, v26"); e("v_add_f32 v25, v25, v27")
    e("v_add_f32 v40, v20, v24"); e("v_add_f32 v42, v21, v25")
    e(f"v_mov_b32 v41, s{sTAG}"); e(f"v_mov_b32 v43, s{sTAG}")
    e(f"buffer_store_dwordx4 v[40:43], v6, {srd(sWS)}, s{sT0} offen {SCS}")
    if PUB1: e("s_barrier")
    e("s_branch L_kvrest" if W0PRE else "s_branch L_qwait")
    a.label("L_kvrest0")
    if PUB1: e("s_barrier")
    e("s_branch L_kvrest")
    a.label("L_nowq")
    if not W0PRE:
        e(f"s_cmp_eq_u32 s{sWAVE}, 0"); e("s_cbranch_scc1 L_qwait")
    for d in range(EARLY): kv_loads(d, sTILE + d)
    a.label("L_kvrest")
    for d in range(EARLY, PRE):
        if STG: e(f"s_waitcnt vmcnt({6*(STG-1)})")
        kv_loads(d, sTILE + d)
    a.label("L_qwait")
    stamp(2)
    if PC:
        e(f"v_and_b32 v6, 7, v{vLANE}"); e("v_lshlrev_b32 v6, 5, v6")
        e(f"v_lshrrev_b32 v7, 5, v{vLANE}"); e("v_lshl_add_u32 v6, v7, 4, v6")
        e(f"v_bfe_u32 v7, v{vLANE}, 4, 1"); e("v_lshl_add_u32 v6, v7, 3, v6")
        e(f"s_mul_i32 s{sT0}, s{sWAVE}, 768"); e(f"v_add_u32 v236, s{sT0}, v6")
        e("v_and_b32 v5, 127, v0"); e("v_lshrrev_b32 v4, 7, v0")
        e("v_mul_u32_u24 v6, 3072, v4"); e("v_lshl_add_u32 v237, v5, 3, v6")
        e("v_lshlrev_b32 v238, 5, v4")
        e("v_lshlrev_b32 v6, 11, v4"); e("v_lshl_add_u32 v239, v5, 4, v6")
        e(f"v_and_b32 v24, 7, v{vLANE}"); e("v_and_b32 v25, 1, v24"); e("v_lshrrev_b32 v24, 1, v24")
        e("v_cmp_eq_u32 vcc, 1, v25")
        e("v_mov_b32 v26, 0x0c0c0100"); e("v_mov_b32 v27, 0x01000c0c"); e("v_mov_b32 v28, 0x0c0c0302"); e("v_mov_b32 v29, 0x03020c0c")
        e("v_cndmask_b32 v26, v26, v27, vcc"); e("v_cndmask_b32 v28, v28, v29, vcc")
        e("v_mov_b32 v27, 0x0c0c0c0c")
        for r in range(4):
            e(f"v_cmp_eq_u32 vcc, {r}, v24")
            e(f"v_cndmask_b32 v{240+r}, v27, v26, vcc"); e(f"v_cndmask_b32 v{244+r}, v27, v28, vcc")
        e(f"v_lshrrev_b32 v6, 4, v{vLANE}"); e("v_mul_u32_u24 v6, 24, v6")
        e(f"v_bfe_u32 v7, v{vLANE}, 3, 1"); e("v_mul_u32_u24 v7, 384, v7"); e("v_add_u32 v6, v6, v7")
        e(f"s_mul_i32 s{sT0}, s{sWAVE}, 96"); e(f"v_add_u32 v248, s{sT0}, v6")
        e(f"v_lshrrev_b32 v6, 5, v{vLANE}"); e("v_lshlrev_b32 v6, 9, v6")
        e(f"v_and_b32 v7, 15, v{vLANE}"); e("v_lshl_add_u32 v6, v7, 5, v6")
        e(f"v_bfe_u32 v7, v{vLANE}, 4, 1"); e("v_lshl_add_u32 v6, v7, 4, v6")
        e(f"s_lshl_b32 s{sT0}, s{sWAVE}, 10"); e(f"v_add_u32 v249, s{sT0}, v6")
        e("v_cmp_le_u32 vcc, 96, v0")
        e("v_cndmask_b32 v7, 0, 1, vcc")
        e("v_mul_u32_u24 v5, 96, v7"); e("v_sub_u32 v5, v0, v5")
        e("v_lshlrev_b32 v6, 11, v7"); e("v_lshl_add_u32 v250, v5, 4, v6")
        e("v_mul_u32_u24 v6, 384, v7"); e("v_lshl_add_u32 v251, v5, 2, v6")
        e(f"v_lshlrev_b32 v6, 4, v{vLANE}"); e(f"s_mul_i32 s{sT0}, s{sWAVE}, 12288"); e(f"v_add_u32 v252, s{sT0}, v6")
    e("s_waitcnt lgkmcnt(0)")
    mktag()
    e(f"s_cmp_lg_u32 s{sWAVE}, 0"); e("s_cbranch_scc1 L_qbar")
    e("s_setprio 2")
    e(f"s_lshl_b32 s{sT0}, s{sH}, 13"); e(f"s_add_u32 s{sT0}, s{sT0}, {QBOX}")
    e(f"s_add_u32 s{sT1}, s{sT0}, 3072")
    e(f"v_lshlrev_b32 v6, 5, v{vLANE}")
    e(f"v_and_b32 v7, 31, v{vLANE}"); e("v_lshlrev_b32 v7, 5, v7"); e("v_add_u32 v7, 2048, v7")
    loads = []
    for b, so in ((0, sT0), (1, sT1)):
        base = (204 if W0PRE else 60) + 16 * b
        loads.append(f"buffer_load_dwordx4 v[{base}:{base+3}], v6, {srd(sWS)}, s{so} offen {SCL}")
        loads.append(f"buffer_load_dwordx4 v[{base+4}:{base+7}], v6, {srd(sWS)}, s{so} offen offset:16 {SCL}")
        loads.append(f"buffer_load_dwordx4 v[{base+8}:{base+11}], v7, {srd(sWS)}, s{so} offen {SCL}")
        loads.append(f"buffer_load_dwordx4 v[{base+12}:{base+15}], v7, {srd(sWS)}, s{so} offen offset:16 {SCL}")
    lane_poll("L_pq", loads, [(205 if W0PRE else 61) + 2*i for i in range(16)], 52)
    e(f"v_lshlrev_b32 v6, 2, v{vLANE}")
    e(f"v_and_b32 v7, 31, v{vLANE}"); e("v_lshlrev_b32 v7, 2, v7")
    for b in range(2):
        base = (204 if W0PRE else 60) + 16 * b
        e(f"v_add_f32 v{base}, v{base}, v{base+4}"); e(f"v_add_f32 v{base+2}, v{base+2}, v{base+6}")
        e(f"v_add_f32 v{base+8}, v{base+8}, v{base+12}"); e(f"v_add_f32 v{base+10}, v{base+10}, v{base+14}")
        e(f"v_cvt_pk_bf16_f32 v{base}, v{base}, v{base+2}"); e(f"v_cvt_pk_bf16_f32 v{base+8}, v{base+8}, v{base+10}")
        e(f"ds_write_b32 v6, v{base} offset:{Q + 384*b}")
        e(f"ds_write_b32 v7, v{base+8} offset:{Q + 384*b + 256}")
    e("s_waitcnt lgkmcnt(0)")
    e("s_setprio 0")
    stamp(2)
    e(f"s_mov_b32 s{sK+2}, {KVREC}"); e(f"s_mov_b32 s{sV+2}, {KVREC}")
    a.label("L_qbar")
    e("s_barrier")
    stamp()
    e(f"s_mov_b32 s{sN}, {1 if CH1 else DL}")
    e(f"v_and_b32 v7, 7, v{vLANE}"); e("v_lshlrev_b32 v6, 4, v7")
    for s in range(3): e(f"ds_read_b128 v[{vQ0+4*s}:{vQ0+4*s+3}], v6 offset:{Q + 128*s}")
    if not W0PRE:
        e(f"s_cmp_lg_u32 s{sWAVE}, 0"); e("s_cbranch_scc1 L_w0kv")
        for d in range(min(PRE, NS)): kv_loads(d, sTILE + d)
        a.label("L_w0kv")
    for d in range(min(PRE, NS), NS): kv_loads(d, sTILE + d)
    if not WOLATE: wo_dma('L_nowo')
    if WOLATE >= 2:
        e(f"s_mul_i32 s{sT0}, s{sH}, {192*1280}"); e(f"s_max_u32 s{sT1}, s{sR}, 3"); e(f"s_sub_u32 s{sT1}, s{sT1}, 3"); e(f"s_lshl_b32 s{sT1}, s{sT1}, 8")
        e(f"s_add_u32 s{sT0}, s{sT0}, s{sT1}")
        e(f"s_add_u32 s{sAUX2}, s12, s{sT0}"); e(f"s_addc_u32 s{sAUX2+1}, s13, 0")
        e(f"s_cmp_lt_u32 s{sR}, 3"); e(f"s_cselect_b32 s{sAUX2+2}, 0, {191*1280+256}"); e(f"s_mov_b32 s{sAUX2+3}, 0x20000")
        e(f"v_lshrrev_b32 v6, 4, v{vLANE}"); e("v_mul_u32_u24 v6, 12, v6")
        e(f"s_mul_i32 s{sT0}, s{sWAVE}, 48"); e(f"v_add_u32 v6, s{sT0}, v6")
        e("v_mul_u32_u24 v6, 1280, v6")
        e(f"v_and_b32 v7, 15, v{vLANE}"); e("v_lshl_add_u32 v254, v7, 4, v6")
        e(f"s_mul_i32 s24, s{sWAVE}, 12288"); e(f"s_add_u32 s24, s24, {WOL}")
        if WOLATE in (3, 5): e("s_mov_b32 m0, s24"); e("s_mov_b32 s25, 0")
        if PC:
            e(f"s_lshl_b32 s{sT0}, s{sH}, 15"); e(f"s_add_u32 s4, s{sT0}, {OBOX}")
            for p in range(1, 8): e(f"s_add_u32 s{4+p}, s4, {4096*p}")
            e(f"s_lshl_b32 s{sT1}, s{sR}, 12"); e(f"s_add_u32 s13, s4, s{sT1}")
            e(f"s_mul_i32 s{sT0}, s{sH}, 5"); e(f"s_add_u32 s{sT0}, s{sT0}, s{sR}"); e(f"s_sub_u32 s{sT0}, s{sT0}, 3")
            e(f"s_lshl_b32 s{sT0}, s{sT0}, 11"); e(f"s_add_u32 s12, s{sT0}, {YBOX}")
    for i in range(24): e(f"v_mov_b32 v{vACC0+i}, 0")
    e(f"v_mov_b32 v{vM0}, 0xff000000"); e(f"v_mov_b32 v{vL0}, 0")
    e(f"v_lshlrev_b32 v6, 2, v{vLANE}"); e(f"s_mul_i32 s{sT0}, s{sWAVE}, 768"); e(f"v_add_u32 v6, s{sT0}, v6")
    for c in range(2):
        for k in range(3): e(f"ds_write_b32 v6, v{vL0} offset:{PART + 3072*c + 256*k}")
    e(f"s_lshl_b32 s{sT0}, s{sWAVE}, 3"); e(f"v_mov_b32 v7, s{sT0}")
    e(f"ds_write_b64 v7, v[{vM0}:{vL0}] offset:{STAT}"); e(f"ds_write_b64 v7, v[{vM0}:{vL0}] offset:{STAT+32}")
    e(f"s_mov_b32 s{sLIM}, 512"); e(f"s_mov_b32 s{sPOFF}, 0")
    e("s_mov_b32 s14, 0x3d93cd3a"); e("s_mov_b32 s15, 0x3fb8aa3b")
    e("s_waitcnt lgkmcnt(0)")
    e(f"s_atomic_add s{sN}, s[{sCTR}:{sCTR+1}], 0 glc")

    def tile_compute(slot, q, acc, m, l, waitV):
        b = RING + 24 * slot
        e(f"v_mov_b32 v46, 0"); e("v_mov_b32 v47, 0")
        for i in range(12): e(f"v_dot2c_f32_bf16 v{46+(i&1)}, v{b+i}, v{q+i}")
        e("v_add_f32 v46, v46, v47")
        allreduce([46], "v_add_f32", None, [0, 1, 2])
        e("v_cvt_pk_bf16_f32 v46, v46, v46"); e("v_and_b32 v46, 0xffff0000, v46")
        e("v_mul_f32 v46, s14, v46")
        e("v_cvt_pk_bf16_f32 v46, v46, v46"); e("v_and_b32 v46, 0xffff0000, v46")
        e("v_mul_f32 v46, s15, v46")
        e(f"v_max_f32 v47, v{m}, v46")
        e(f"v_sub_f32 v48, v{m}, v47"); e("v_sub_f32 v49, v46, v47")
        e("v_exp_f32 v48, v48"); e("v_exp_f32 v49, v49")
        e(f"v_mov_b32 v{m}, v47")
        e(f"v_fma_f32 v{l}, v{l}, v48, v49")
        e("v_cvt_pk_bf16_f32 v50, v49, 0"); e("v_lshlrev_b32 v51, 16, v50")
        for i in range(12):
            e(f"v_pk_mul_f32 v[{acc+2*i}:{acc+2*i+1}], v[{acc+2*i}:{acc+2*i+1}], v[48:49] op_sel_hi:[1,0]")
        e(f"s_waitcnt vmcnt({waitV})")
        for i in range(12):
            e(f"v_dot2c_f32_bf16 v{acc+2*i}, v{b+12+i}, v50")
            e(f"v_dot2c_f32_bf16 v{acc+2*i+1}, v{b+12+i}, v51")
    def refill(d):
        if STATIC:
            if first[0]:
                e(f"s_lshl_b32 s{sT0}, s{sR}, 2"); e(f"s_add_u32 s{sT0}, s{sT0}, s{sWAVE}"); e(f"s_mul_i32 s{sT0}, s{sT0}, {DL}")
                e(f"s_add_u32 s{sTILE+d}, s{sT0}, {32*NS + d}")
            else:
                e(f"s_add_u32 s{sTILE+d}, s{sTILE+d}, {32*DL}")
        elif CH1 and THR and not first[0]:
            e("s_waitcnt lgkmcnt(0)")
            e(f"s_mov_b32 s{sTILE+d}, s{sN}")
            e(f"s_cmp_ge_u32 s{sN}, {THR}"); e("s_cselect_b32 s95, 1, 0")
            e(f"s_cbranch_scc1 L_nopre_{d}")
            e(f"s_mov_b32 s{sN}, 1")
            e(f"s_atomic_add s{sN}, s[{sCTR}:{sCTR+1}], 0 glc")
            a.label(f"L_nopre_{d}")
        elif CH1 and ZS and not first[0]:
            e("s_waitcnt lgkmcnt(0)")
            e(f"s_mov_b32 s{sTILE+d}, s{sN}")
            e("s_add_u32 s94, s94, 1")
            e(f"s_cmp_lt_u32 s{sN}, {1024 - ZS}"); e(f"s_cbranch_scc1 L_grab_{d}")
            e(f"s_cmp_ge_u32 s{sN}, 1024"); e(f"s_cbranch_scc1 L_nograb_{d}")
            e(f"s_cmp_eq_u32 s{sWAVE}, 0"); e(f"s_cbranch_scc1 L_grab_{d}")
            e(f"s_sub_u32 s{sT0}, s{sN}, {32*NS}"); e(f"s_lshl_b32 s{sT0}, s{sT0}, 1")
            e(f"s_mul_i32 s{sT1}, s94, {ZR}")
            e(f"s_cmp_le_u32 s{sT0}, s{sT1}"); e(f"s_cbranch_scc1 L_grab_{d}")
            e(f"s_mov_b32 s{sN}, 1024")
            e(f"s_branch L_nograb_{d}")
            a.label(f"L_grab_{d}")
            e(f"s_mov_b32 s{sN}, 1")
            e(f"s_atomic_add s{sN}, s[{sCTR}:{sCTR+1}], 0 glc")
            a.label(f"L_nograb_{d}")
        elif CH1:
            e("s_waitcnt lgkmcnt(0)")
            e(f"s_mov_b32 s{sTILE+d}, s{sN}")
            if ZS: e("s_add_u32 s94, s94, 1")
            e(f"s_mov_b32 s{sN}, 1")
            e(f"s_atomic_add s{sN}, s[{sCTR}:{sCTR+1}], 0 glc")
        elif d == 0:
            e("s_waitcnt lgkmcnt(0)")
            e(f"s_mov_b32 s{sTILE}, s{sN}")
            e(f"s_add_u32 s{sNEXT}, s{sN}, 1")
            e(f"s_mov_b32 s{sN}, {DL}")
            e(f"s_atomic_add s{sN}, s[{sCTR}:{sCTR+1}], 0 glc")
        else:
            e(f"s_mov_b32 s{sTILE+d}, s{sNEXT}")
            if d < DL - 1: e(f"s_add_u32 s{sNEXT}, s{sNEXT}, 1")
        if WOLATE in (3, 5) and not first[0]:
            e(f"s_cmp_ge_u32 s{sTILE+d}, 1024"); e(f"s_cbranch_scc1 L_dma_{d}")
            kv_loads(d, sTILE + d)
            a.label(f"L_rj_{d}")
        else:
            kv_loads(d, sTILE + d)
    first = [True]
    if ZS: e("s_mov_b32 s94, 0")
    if THR: e("s_mov_b32 s95, 0")
    order = list(range(NS))
    for d in range(NS):
        younger = len(order) - 1 - order.index(d)
        e(f"s_waitcnt vmcnt({6*younger+3})")
        tile_compute(d, vQ0, vACC0, vM0, vL0, 6*younger)
        order.remove(d)
        if d < DL:
            refill(d); order.append(d)
    first[0] = False
    a.label("L_loop")
    for d in range(DL):
        e(f"s_cmp_ge_u32 s{sTILE+d}, s{sLIM}"); e(f"s_cbranch_scc1 L_sw_{d}")
        a.label(f"L_cont_{d}")
        e(f"s_waitcnt vmcnt({6*(DL-1)+3})")
        if THR:
            e("s_cmp_eq_u32 s95, 0"); e(f"s_cbranch_scc1 L_nojit_{d}")
            e(f"s_mov_b32 s{sN}, 1")
            e(f"s_atomic_add s{sN}, s[{sCTR}:{sCTR+1}], 0 glc")
            a.label(f"L_nojit_{d}")
        tile_compute(d, vQ0, vACC0, vM0, vL0, 6*(DL-1))
        refill(d)
    e("s_branch L_loop")
    if WOLATE == 5:
        assert DL == 2
        for d in range(DL):
            a.label(f"L_dma_{d}")
            stamp(4)
            e(f"s_cmp_ge_u32 s{sTILE+1-d}, 1024"); e(f"s_cbranch_scc1 L_dma2_{d}")
            kv_loads(d, sTILE + d)
            e(f"s_branch L_rj_{d}")
            a.label(f"L_dma2_{d}")
            for k in range(12):
                e(f"buffer_load_dwordx4 v254, {srd(sAUX2)}, s25 offen{nt} lds")
                e("s_add_u32 m0, m0, 1024"); e("s_add_u32 s25, s25, 1280")
            e(f"s_branch L_rj_{d}")
    if WOLATE == 3:
        assert DL == 2
        for d in range(DL):
            a.label(f"L_dma_{d}")
            stamp(4)
            for k in range(6):
                e(f"buffer_load_dwordx4 v254, {srd(sAUX2)}, s25 offen{nt} lds")
                e("s_add_u32 m0, m0, 1024"); e("s_add_u32 s25, s25, 1280")
            e(f"s_branch L_rj_{d}")
    for d in range(DL):
        a.label(f"L_sw_{d}")
        e(f"s_cmp_ge_u32 s{sTILE+d}, 1024"); e("s_cbranch_scc1 L_loopend")
        e(f"s_call_b64 s[{sRET1}:{sRET1+1}], L_switch")
        e(f"s_branch L_cont_{d}")
    a.label("L_switch")
    e(f"s_call_b64 s[{sRET2}:{sRET2+1}], L_flush")
    for i in range(24): e(f"v_mov_b32 v{vACC0+i}, 0")
    e(f"v_mov_b32 v{vM0}, 0xff000000"); e(f"v_mov_b32 v{vL0}, 0")
    e(f"v_and_b32 v7, 7, v{vLANE}"); e("v_lshlrev_b32 v6, 4, v7")
    for s_ in range(3): e(f"ds_read_b128 v[{vQ0+4*s_}:{vQ0+4*s_+3}], v6 offset:{Q + 384 + 128*s_}")
    e(f"s_mov_b32 s{sLIM}, 1024"); e(f"s_mov_b32 s{sPOFF}, 3072")
    e("s_waitcnt lgkmcnt(0)")
    e(f"s_setpc_b64 s[{sRET1}:{sRET1+1}]")
    def flush_code():
        acc = vACC0
        e(f"v_mov_b32 v46, v{vM0}")
        e(f"v_add_u32 v6, s{sPOFF}, v236")
        e(f"s_lshl_b32 s{sT0}, s{sWAVE}, 3"); e(f"s_lshr_b32 s{sT1}, s{sPOFF}, 6"); e(f"s_and_b32 s{sT1}, s{sT1}, 32"); e(f"s_add_u32 s{sT0}, s{sT0}, s{sT1}")
        allreduce([46], "v_max_f32", [47], [3])
        e(f"v_mov_b32 v7, s{sT0}")
        allreduce([46], "v_max_f32", [47], [4, 5])
        e(f"v_sub_f32 v48, v{vM0}, v46")
        e("v_exp_f32 v48, v48")
        e(f"v_mul_f32 v47, v{vL0}, v48")
        for i in range(12):
            e(f"v_pk_mul_f32 v[{acc+2*i}:{acc+2*i+1}], v[{acc+2*i}:{acc+2*i+1}], v[48:49] op_sel_hi:[1,0]")
        prs5 = [(acc+8*s_+i, acc+8*s_+4+i) for s_ in range(3) for i in range(4)]
        e("v_add_f32_dpp v47, v47, v47 row_ror:8 row_mask:0xf bank_mask:0xf")
        for x, y in prs5: e(f"v_permlane32_swap_b32 v{x}, v{y}")
        e("v_mov_b32 v49, v47")
        for x, y in prs5: e(f"v_add_f32 v{x}, v{x}, v{y}")
        e("v_permlane16_swap_b32 v47, v49")
        prs4 = [(acc+8*s_+i, acc+8*s_+2+i) for s_ in range(3) for i in range(2)]
        for x, y in prs4: e(f"v_permlane16_swap_b32 v{x}, v{y}")
        e("v_add_f32 v47, v47, v49")
        for x, y in prs4: e(f"v_add_f32 v{x}, v{x}, v{y}")
        e("v_mov_b32 v49, v47")
        allreduce([acc+8*s_+i for s_ in range(3) for i in range(2)], "v_add_f32", None, [3])
        e("v_permlane32_swap_b32 v47, v49")
        for s_ in range(3): e(f"ds_write_b64 v6, v[{acc+8*s_}:{acc+8*s_+1}] offset:{PART + 256*s_}")
        e("v_add_f32 v47, v47, v49")
        e(f"ds_write_b64 v7, v[46:47] offset:{STAT}")
    a.label("L_flush")
    flush_code()
    e(f"s_setpc_b64 s[{sRET2}:{sRET2+1}]")
    a.label("L_loopend")
    stamp()
    if WOLATE == 1: wo_dma('L_nowo')
    if WOLATE in (3, 5):
        a.label("L_dmafix")
        e("s_cmp_ge_u32 s25, 15360"); e("s_cbranch_scc1 L_dmafix_done")
        e(f"buffer_load_dwordx4 v254, {srd(sAUX2)}, s25 offen{nt} lds")
        e("s_add_u32 m0, m0, 1024"); e("s_add_u32 s25, s25, 1280")
        e("s_branch L_dmafix")
        a.label("L_dmafix_done")
    if WOLATE == 2:
        n0 = len(a.L)
        flush_code()
        code = a.L[n0:]; del a.L[n0:]
        e("s_mov_b32 m0, s24")
        e("s_mov_b32 s25, 0")
        step = max(1, len(code) // 13)
        k = 0
        for j, l in enumerate(code):
            a.L.append(l)
            if j % step == step - 1 and k < 12:
                a.L.append(f"buffer_load_dwordx4 v254, {srd(sAUX2)}, s25 offen{nt} lds")
                if k < 11:
                    a.L.append("s_add_u32 m0, m0, 1024"); a.L.append("s_add_u32 s25, s25, 1280")
                k += 1
        assert k == 12
    else:
        e(f"s_call_b64 s[{sRET2}:{sRET2+1}], L_flush")
    e("s_waitcnt lgkmcnt(0)")
    stamp(3)
    e("s_barrier")
    e(f"s_bitcmp1_b32 s{sWAVE}, 0"); e("s_cselect_b32 exec_hi, 0, -1")
    for w in range(4): e(f"ds_read_b64 v[{20+2*w}:{21+2*w}], v237 offset:{PART + 768*w}")
    e(f"ds_read_b128 v[28:31], v238 offset:{STAT}"); e(f"ds_read_b128 v[32:35], v238 offset:{STAT+16}")
    e("s_mov_b32 vcc_lo, 0xaaaaaaaa"); e("s_mov_b32 vcc_hi, 0xaaaaaaaa")
    e(f"v_mov_b32 v43, s{sTAG}")
    e("s_waitcnt lgkmcnt(0)")
    e("v_max_f32 v36, v28, v30"); e("v_max3_f32 v36, v36, v32, v34")
    for w in range(4): e(f"v_sub_f32 v{28+2*w}, v{28+2*w}, v36")
    for w in range(4): e(f"v_exp_f32 v{28+2*w}, v{28+2*w}")
    e("v_mul_f32 v40, v20, v28"); e("v_mul_f32 v41, v21, v28"); e("v_mul_f32 v37, v29, v28")
    for w in range(1, 4):
        e(f"v_fmac_f32 v40, v{20+2*w}, v{28+2*w}"); e(f"v_fmac_f32 v41, v{21+2*w}, v{28+2*w}"); e(f"v_fmac_f32 v37, v{29+2*w}, v{28+2*w}")
    e("v_cndmask_b32 v42, v36, v37, vcc")
    e(f"buffer_store_dwordx4 v[40:43], v239, {srd(sWS)}, s13 offen {SCS}")
    a.label("L_pub_done")
    e("s_mov_b64 exec, -1")
    if WOLATE == 4:
        e("s_mov_b32 m0, s24"); e("s_mov_b32 s25, 0")
        for k in range(12):
            e(f"buffer_load_dwordx4 v254, {srd(sAUX2)}, s25 offen{nt} lds")
            if k < 11: e("s_add_u32 m0, m0, 1024"); e("s_add_u32 s25, s25, 1280")
    stamp()
    e(f"s_cmp_lt_u32 s{sR}, 3"); e("s_cbranch_scc1 L_final")
    def wo_reads():
        for i in range(12): e(f"ds_read_b128 v[{100+4*i}:{103+4*i}], v252 offset:{WOL + 1024*i}")
    e(f"s_cmp_eq_u32 s{sWAVE}, 3"); e("s_cbranch_scc1 L_wo_w3")
    lane_poll("L_p1s", [f"buffer_load_dwordx4 v[{60+4*p}:{63+4*p}], v250, {srd(sWS)}, s{4+p} offen {SCL}" for p in range(8)], [63+4*p for p in range(8)], 52)
    stamp(3)
    if PROF == 3: e(f"s_sub_u32 s97, {SPIN}, s{sCNT}")
    wo_reads()
    for p in range(8): e(f"v_mov_b32_dpp v{8+p}, v{62+4*p} quad_perm:[0,0,2,2] row_mask:0xf bank_mask:0xf")
    for p in range(8): e(f"v_mov_b32_dpp v{63+4*p}, v{62+4*p} quad_perm:[1,1,3,3] row_mask:0xf bank_mask:0xf")
    e("v_max3_f32 v36, v8, v9, v10"); e("v_max3_f32 v37, v11, v12, v13"); e("v_max3_f32 v36, v36, v14, v15"); e("v_max_f32 v36, v36, v37")
    for p in range(8): e(f"v_sub_f32 v{8+p}, v{8+p}, v36")
    for p in range(8): e(f"v_exp_f32 v{8+p}, v{8+p}")
    e("v_mul_f32 v40, v60, v8"); e("v_mul_f32 v41, v61, v8"); e("v_mul_f32 v37, v63, v8")
    for p in range(1, 8):
        e(f"v_fmac_f32 v37, v{63+4*p}, v{8+p}"); e(f"v_fmac_f32 v40, v{60+4*p}, v{8+p}"); e(f"v_fmac_f32 v41, v{61+4*p}, v{8+p}")
    e("v_rcp_f32 v37, v37")
    e("v_mul_f32 v40, v40, v37"); e("v_mul_f32 v41, v41, v37")
    e("v_cvt_pk_bf16_f32 v40, v40, v41")
    e(f"ds_write_b32 v251, v40 offset:{SEL}")
    e("s_branch L_wo_bar")
    a.label("L_wo_w3")
    e("s_waitcnt vmcnt(0)")
    wo_reads()
    a.label("L_wo_bar")
    for i in range(4): e(f"v_mov_b32 v{20+i}, 0")
    e("v_lshlrev_b32 v6, 3, v0"); e("v_lshlrev_b32 v7, 4, v0")
    e(f"v_mov_b32 v41, s{sTAG}"); e(f"v_mov_b32 v43, s{sTAG}")
    e("s_waitcnt lgkmcnt(0)")
    e("s_barrier")
    stamp()
    for p in range(3): e(f"ds_read_b64 v[{60+2*p}:{61+2*p}], v248 offset:{SEL + 8*p}")
    e("s_waitcnt lgkmcnt(0)")
    def aperm(i):
        A = 44 + 4 * (i & 1)
        for r in range(4):
            e(f"v_perm_b32 v{A+r}, v{60 + (i >> 1)}, v{60 + (i >> 1)}, v{(244 if i & 1 else 240) + r}")
    aperm(0)
    for i in range(12):
        if i < 11: aperm(i + 1)
        else: e("s_nop 1")
        A = 44 + 4 * (i & 1)
        e(f"v_mfma_f32_16x16x32_bf16 v[20:23], v[{A}:{A+3}], v[{100+4*i}:{103+4*i}], v[20:23]")
    e("s_nop 7")
    e(f"ds_write_b128 v249, v[20:23] offset:{YP}")
    e("s_waitcnt lgkmcnt(0)")
    e("s_barrier")
    e(f"s_cmp_ge_u32 s{sWAVE}, 2"); e("s_cbranch_scc1 L_fin")
    for w in range(4): e(f"ds_read_b64 v[{20+2*w}:{21+2*w}], v6 offset:{YP + 1024*w}")
    e("s_waitcnt lgkmcnt(0)")
    e("v_add_f32 v20, v20, v22"); e("v_add_f32 v21, v21, v23"); e("v_add_f32 v24, v24, v26"); e("v_add_f32 v25, v25, v27")
    e("v_add_f32 v40, v20, v24"); e("v_add_f32 v42, v21, v25")
    e(f"buffer_store_dwordx4 v[40:43], v7, {srd(sWS)}, s12 offen {SCS}")
    stamp(3)
    e("s_branch L_fin")
    a.label("L_final")
    e(f"s_cmp_lg_u32 s{sWAVE}, 0"); e("s_cbranch_scc1 L_fin")
    e(f"s_mul_i32 s14, s{sH}, 3"); e(f"s_add_u32 s14, s14, s{sR}")
    e("s_cmp_ge_u32 s14, 40"); e("s_cbranch_scc1 L_fin")
    e("s_cmp_ge_u32 s14, 20"); e("s_cselect_b32 s15, 1, 0")
    e("s_mul_i32 s16, s15, 20"); e("s_sub_u32 s16, s14, s16")
    e("s_lshr_b32 s17, s16, 2"); e("s_and_b32 s18, s16, 3")
    e("s_mul_i32 s19, s15, 640"); e("s_lshl_b32 s20, s16, 5"); e("s_add_u32 s19, s19, s20")
    e(f"v_and_b32 v7, 7, v{vLANE}"); e("v_lshlrev_b32 v4, 2, v7")
    e(f"v_lshrrev_b32 v5, 5, v{vLANE}"); e("v_lshl_add_u32 v4, v5, 1, v4")
    e(f"v_bfe_u32 v5, v{vLANE}, 4, 1"); e("v_add_u32 v4, v4, v5")
    e("v_add_u32 v4, s19, v4"); e("v_lshlrev_b32 v4, 1, v4")
    e(f"buffer_load_ushort v58, v4, {srd(sX)}, 0 offen")
    e(f"v_lshrrev_b32 v5, 3, v{vLANE}")
    e("v_mul_u32_u24 v6, 10240, v5"); e("v_lshl_add_u32 v6, v7, 5, v6")
    e("s_lshl_b32 s20, s17, 11"); e("s_lshl_b32 s21, s15, 10"); e("s_add_u32 s20, s20, s21"); e("s_lshl_b32 s21, s18, 8"); e("s_add_u32 s20, s20, s21")
    e(f"s_add_u32 s20, s20, {YBOX}")
    e("s_lshl_b32 s21, s19, 3"); e(f"s_add_u32 s21, s21, {FBOX}")
    for i in range(1, 4):
        e(f"s_add_u32 s{4+i}, s20, {81920*i}"); e(f"s_add_u32 s{8+i}, s21, {81920*i}")
    e("s_mov_b32 s4, s20"); e("s_mov_b32 s8, s21")
    def red4(base, n):
        for i in range(1, n):
            for c in range(4): e(f"v_add_f32 v{base+2*c}, v{base+2*c}, v{base+8*i+2*c}")
        swapred([(base, base+4), (base+2, base+6)], 5)
        swapred([(base, base+2)], 4)
        allreduce([base], "v_add_f32", None, [3])
    lds_ = []
    for i in range(3):
        lds_.append(f"buffer_load_dwordx4 v[{100+8*i}:{103+8*i}], v6, {srd(sWS)}, s{8+i} offen {SCL}")
        lds_.append(f"buffer_load_dwordx4 v[{104+8*i}:{107+8*i}], v6, {srd(sWS)}, s{8+i} offen offset:16 {SCL}")
    lane_poll("L_pf", lds_, [101 + 2*k for k in range(12)], 52)
    red4(100, 3)
    e("s_mov_b32 s22, 0xbfb8aa3b")
    e("v_cvt_pk_bf16_f32 v24, v100, v100"); e("v_and_b32 v24, 0xffff0000, v24")
    e("v_mul_f32 v25, s22, v24"); e("v_exp_f32 v25, v25"); e("v_add_f32 v25, 1.0, v25"); e("v_rcp_f32 v25, v25")
    e("v_mul_f32 v24, v24, v25")
    e("v_cvt_pk_bf16_f32 v24, v24, v24"); e("v_and_b32 v24, 0xffff0000, v24")
    e("v_lshlrev_b32 v58, 16, v58")
    stamp(3)
    lds_ = []
    for i in range(4):
        lds_.append(f"buffer_load_dwordx4 v[{60+8*i}:{63+8*i}], v6, {srd(sWS)}, s{4+i} offen {SCL}")
        lds_.append(f"buffer_load_dwordx4 v[{64+8*i}:{67+8*i}], v6, {srd(sWS)}, s{4+i} offen offset:16 {SCL}")
    lane_poll("L_p2", lds_, [61 + 2*k for k in range(16)], 52)
    stamp(3)
    if PROF == 3: e(f"s_sub_u32 s97, {SPIN}, s{sCNT}")
    red4(60, 4)
    e("v_cvt_pk_bf16_f32 v20, v60, v60"); e("v_and_b32 v20, 0xffff0000, v20")
    e("v_mul_f32 v20, v20, v24")
    e("v_cvt_pk_bf16_f32 v20, v20, v20"); e("v_and_b32 v20, 0xffff0000, v20")
    e("v_add_f32 v20, v58, v20")
    e("v_cvt_pk_bf16_f32 v20, v20, v20")
    e(f"buffer_store_short v20, v4, {srd(sOUT)}, 0 offen")
    e("s_cmp_lg_u32 s14, 0"); e("s_cbranch_scc1 L_fin")
    e("s_mov_b64 exec, 1")
    e(f"v_mov_b32 v21, s{sTAG}"); e("v_mov_b32 v22, 0")
    e(f"buffer_store_dword v21, v22, {srd(sWS)}, 0 offen")
    e("s_branch L_fin")

    a.label("L_ffn")
    e("s_setprio 3")
    e("s_sub_u32 s57, s2, 256")
    e(f"s_lshl_b32 s{sT0}, s57, 7")
    e(f"s_add_u32 s{sAUX}, s16, s{sT0}"); e(f"s_addc_u32 s{sAUX+1}, s17, 0"); e(f"s_mov_b32 s{sAUX+2}, {639*3072+128}"); e(f"s_mov_b32 s{sAUX+3}, 0x20000")
    e(f"s_add_u32 s{sAUX2}, s18, s{sT0}"); e(f"s_addc_u32 s{sAUX2+1}, s19, 0"); e(f"s_mov_b32 s{sAUX2+2}, {639*3072+128}"); e(f"s_mov_b32 s{sAUX2+3}, 0x20000")
    e(f"s_mul_i32 s{sT0}, s57, {64*1280}")
    e(f"s_add_u32 s{sK}, s20, s{sT0}"); e(f"s_addc_u32 s{sK+1}, s21, 0"); e(f"s_mov_b32 s{sK+2}, {64*1280}"); e(f"s_mov_b32 s{sK+3}, 0x20000")
    xloads()
    unit_addr(3072, 20, 2)
    e(f"v_lshrrev_b32 v3, 4, v{vLANE}"); e("v_lshlrev_b32 v3, 2, v3")
    e(f"s_lshl_b32 s{sT0}, s{sWAVE}, 4"); e(f"v_add_u32 v3, s{sT0}, v3")
    e("v_mul_u32_u24 v3, 1280, v3")
    e(f"v_and_b32 v7, 15, v{vLANE}"); e("v_lshl_add_u32 v3, v7, 4, v3")
    def fload(n):
        if n < 20:
            e(f"s_mov_b32 s{sT1}, {3072*n}")
            e(f"buffer_load_dwordx4 v[{60+4*n}:{63+4*n}], v2, {srd(sAUX)}, s{sT1} offen{nt}")
        elif n < 40:
            i = n - 20
            e(f"s_mov_b32 s{sT1}, {3072*i}")
            e(f"buffer_load_dwordx4 v[{140+4*i}:{143+4*i}], v2, {srd(sAUX2)}, s{sT1} offen{nt}")
        elif n < 60:
            k = n - 40; i, sg = k // 5, k % 5
            e(f"s_mov_b32 s{sT1}, {1280*i}")
            e(f"buffer_load_dwordx4 v[{60+4*k}:{63+4*k}], v3, {srd(sK)}, s{sT1} offen offset:{256*sg}{nt}")
    if FTHR:
        e("s_waitcnt vmcnt(0)")
        layernorm()
        xp_read(20)
        e("s_waitcnt lgkmcnt(0)")
        mktag()
        e(f"s_lshl_b32 s{sT0}, s57, 13"); e(f"s_add_u32 s{sT0}, s{sT0}, {QBOX}")
        e("v_mov_b32 v6, 0")
        e(f"s_mov_b32 s{sCNT}, {SPIN}")
        a.label("L_ft1")
        e(f"buffer_load_dwordx4 v[48:51], v6, {srd(sWS)}, s{sT0} offen {SCL}")
        e("s_waitcnt vmcnt(0)")
        e(f"v_cmp_ne_u32 vcc, s{sTAG}, v49")
        e("s_cbranch_vccz L_ft1_done")
        e("s_sleep 16")
        e(f"s_sub_u32 s{sCNT}, s{sCNT}, 1"); e(f"s_cmp_lg_u32 s{sCNT}, 0"); e("s_cbranch_scc1 L_ft1")
        a.label("L_ft1_done")
        e(f"s_lshl_b32 s{sT1}, s57, 8"); e(f"s_add_u32 s{sT1}, s{sT1}, {CNT}")
        e(f"s_add_u32 s{sCTR}, s26, s{sT1}"); e(f"s_addc_u32 s{sCTR+1}, s27, 0")
        e(f"s_mov_b32 s{sCNT}, {SPIN}")
        a.label("L_ft2")
        e(f"s_mov_b32 s{sN}, 0")
        e(f"s_atomic_add s{sN}, s[{sCTR}:{sCTR+1}], 0 glc")
        e("s_waitcnt lgkmcnt(0)")
        e(f"s_cmp_ge_u32 s{sN}, {FTHR}"); e("s_cbranch_scc1 L_ft2_done")
        e("s_sleep 16")
        e(f"s_sub_u32 s{sCNT}, s{sCNT}, 1"); e(f"s_cmp_lg_u32 s{sCNT}, 0"); e("s_cbranch_scc1 L_ft2")
        a.label("L_ft2_done")
        for n in range(FLA): fload(n)
    else:
        for n in range(FLA): fload(n)
        e(f"s_waitcnt vmcnt({FLA})")
        layernorm()
        xp_read(20)
    for i in range(32): e(f"v_mov_b32 v{20+i}, 0")
    e("s_waitcnt lgkmcnt(0)")
    for n in range(40):
        issued = min(60, n + FLA)
        e(f"s_waitcnt vmcnt({issued - n - 1})")
        i = n % 20
        sel_ops([XP + (i >> 1), XP + 10 + (i >> 1)], i & 1, 52)
        mac16((60 if n < 20 else 140) + 4*i, 20 if n < 20 else 36, 52)
        if n + FLA < 60: fload(n + FLA)
    unit_reduce(20, QP)
    unit_reduce(36, UP)
    for n in range(40 + FLA, 60): fload(n)
    e("s_waitcnt lgkmcnt(0)")
    e("s_barrier")
    e(f"s_cmp_ge_u32 s{sWAVE}, 2"); e("s_cbranch_scc1 L_ffn_h")
    e("v_lshlrev_b32 v6, 2, v0")
    for w in range(4):
        e(f"ds_read_b32 v{20+w}, v6 offset:{QP + 512*w}"); e(f"ds_read_b32 v{24+w}, v6 offset:{UP + 512*w}")
    e("s_waitcnt lgkmcnt(0)")
    e("v_add_f32 v20, v20, v21"); e("v_add_f32 v22, v22, v23"); e("v_add_f32 v24, v24, v25"); e("v_add_f32 v26, v26, v27")
    e("v_add_f32 v20, v20, v22"); e("v_add_f32 v24, v24, v26")
    e("v_cvt_pk_bf16_f32 v28, v20, v24")
    e("v_lshlrev_b32 v20, 16, v28"); e("v_and_b32 v24, 0xffff0000, v28")
    e("v_mul_f32 v25, v20, v20"); e("v_mul_f32 v25, v25, v20")
    e("s_mov_b32 s22, 0x3d372713"); e("v_fma_f32 v25, v25, s22, v20")
    e("s_mov_b32 s22, 0xc0135761"); e("v_mul_f32 v25, s22, v25")
    e("v_exp_f32 v25, v25"); e("v_add_f32 v25, 1.0, v25"); e("v_rcp_f32 v25, v25")
    e("v_mul_f32 v20, v20, v25")
    e("v_cvt_pk_bf16_f32 v20, v20, v20"); e("v_and_b32 v20, 0xffff0000, v20")
    e("v_mul_f32 v20, v20, v24")
    e("v_cvt_pk_bf16_f32 v20, v20, v20")
    e("v_lshlrev_b32 v6, 1, v0")
    e(f"ds_write_b16 v6, v20 offset:{H}")
    e("s_waitcnt lgkmcnt(0)")
    a.label("L_ffn_h")
    e("s_barrier")
    e(f"v_lshrrev_b32 v6, 4, v{vLANE}"); e("v_lshlrev_b32 v6, 3, v6")
    e(f"s_lshl_b32 s{sT0}, s{sWAVE}, 5"); e(f"v_add_u32 v6, s{sT0}, v6")
    e(f"ds_read_b64 v[56:57], v6 offset:{H}"); e(f"ds_read_b64 v[58:59], v6 offset:{H+128}")
    for i in range(80): e(f"v_mov_b32 v{140+i}, 0")
    e("s_waitcnt vmcnt(0) lgkmcnt(0)")
    for i in range(4):
        sel_ops([56 + (i >> 1), 58 + (i >> 1)], i & 1, 52)
        for sg in range(5):
            mac16(60 + 20*i + 4*sg, 140 + 16*sg, 52)
    for sg in range(5):
        A = 140 + 16*sg
        swapred([(A+i, A+8+i) for i in range(8)], 5)
        swapred([(A+i, A+4+i) for i in range(4)], 4)
    e(f"v_lshrrev_b32 v6, 5, v{vLANE}"); e("v_mul_u32_u24 v6, 2560, v6")
    e(f"v_and_b32 v7, 15, v{vLANE}"); e("v_lshl_add_u32 v6, v7, 5, v6")
    e(f"v_bfe_u32 v7, v{vLANE}, 4, 1"); e("v_lshl_add_u32 v6, v7, 4, v6")
    e(f"s_mul_i32 s{sT0}, s{sWAVE}, 5120"); e(f"v_add_u32 v6, s{sT0}, v6")
    for sg in range(5): e(f"ds_write_b128 v6, v[{140+16*sg}:{143+16*sg}] offset:{DP + 512*sg}")
    e("s_waitcnt lgkmcnt(0)")
    e("s_barrier")
    mktag()
    e(f"s_mul_i32 s{sT0}, s57, 10240"); e(f"s_add_u32 s{sT0}, s{sT0}, {FBOX}")
    e(f"v_mov_b32 v41, s{sTAG}"); e(f"v_mov_b32 v43, s{sTAG}")
    for q in range(3):
        if q == 2:
            e(f"s_cmp_ge_u32 s{sWAVE}, 2"); e("s_cbranch_scc1 L_fin")
        e(f"v_add_u32 v5, {256*q}, v0"); e("v_lshlrev_b32 v6, 3, v5")
        for w in range(4): e(f"ds_read_b64 v[{20+2*w}:{21+2*w}], v6 offset:{DP + 5120*w}")
        e("s_waitcnt lgkmcnt(0)")
        e("v_add_f32 v20, v20, v22"); e("v_add_f32 v21, v21, v23"); e("v_add_f32 v24, v24, v26"); e("v_add_f32 v25, v25, v27")
        e("v_add_f32 v40, v20, v24"); e("v_add_f32 v42, v21, v25")
        e("v_lshlrev_b32 v6, 4, v5")
        e(f"buffer_store_dwordx4 v[40:43], v6, {srd(sWS)}, s{sT0} offen {SCS}")
        e("s_nop 1")

    a.label("L_fin")
    if DBGT:
        e("s_mov_b64 exec, -1")
        e(f"s_cmp_lg_u32 s{sWAVE}, 0"); e("s_cbranch_scc1 L_end")
        e("s_memrealtime s[100:101]")
        e("s_load_dwordx2 s[4:5], s[0:1], 80")
        e("s_waitcnt lgkmcnt(0)")
        e("s_mov_b32 s6, 256"); e("s_mov_b32 s7, 0x20000")
        e("s_not_b32 s98, s98")
        e("v_mov_b32 v20, s98"); e("v_mov_b32 v21, s100"); e("v_mov_b32 v6, 0")
        e("s_mov_b64 exec, 1")
        e("buffer_atomic_umax v20, v6, s[4:7], 0 offen")
        e("buffer_atomic_umax v21, v6, s[4:7], 0 offen offset:4")
    if PROF:
        stamp()
        n = prof_n[0]
        e("s_mov_b64 exec, -1")
        e(f"s_cmp_lg_u32 s{sWAVE}, 0"); e("s_cbranch_scc1 L_end")
        e("s_waitcnt lgkmcnt(0)")
        e("s_getreg_b32 s14, hwreg(HW_REG_XCC_ID)")
        e(f"s_lshl_b32 s{sT0}, s2, 7"); e(f"s_add_u32 s{sT0}, s{sT0}, {PROFO}")
        e("v_mov_b32 v6, 0")
        e("s_mov_b64 exec, 1")
        for i in range(n):
            e(f"v_mov_b32 v20, s{SP[i]}"); e(f"v_mov_b32 v21, s{SP[i]+1}")
            e(f"buffer_store_dwordx2 v[20:21], v6, {srd(sWS)}, s{sT0} offen offset:{8*i}")
            e("s_nop 1")
        e("v_mov_b32 v20, s14"); e("v_mov_b32 v21, s97")
        e(f"buffer_store_dwordx2 v[20:21], v6, {srd(sWS)}, s{sT0} offen offset:120")
    a.label("L_end")
    e("s_endpgm")
    body = fix_hazards([l for l in a.L if l is not None])
    out += body
    out += ['.section .rodata,"a"', ".p2align 6", f".amdhsa_kernel {KNAME}", "  .amdhsa_next_free_vgpr 256", "  .amdhsa_next_free_sgpr 102",
            "  .amdhsa_accum_offset 256", "  .amdhsa_group_segment_fixed_size 0", "  .amdhsa_kernarg_size 96", "  .amdhsa_user_sgpr_count 2",
            "  .amdhsa_user_sgpr_kernarg_segment_ptr 1", "  .amdhsa_system_sgpr_workgroup_id_x 1", ".end_amdhsa_kernel"]
    return "\n".join(out) + "\n"

WOLATE_DEFAULT = 1
if __name__ == "__main__":
    import json
    kw = json.loads(sys.argv[2]) if len(sys.argv) > 2 else {}
    open(sys.argv[1], "w").write(gen(**kw))

LAST = 5
```

```python
import sys
sys.path.insert(0, "gen")
from asmlib import Asm, fix_hazards

KNAME = "recurrent_scan__mha_block_cached__geglu_ffn__decode_kernel"

XN, QP, UP, Q, PART, STAT, SEL, YP, RED, H = 0, 2560, 4608, 6656, 7424, 13568, 13696, 14464, 18560, 19584
WOL = 19968
DP = WOL
LDS_BYTES = WOL + 49152
CNT, QBOX, OBOX, YBOX, FBOX, PROFO = 0x1000, 0x4000, 0x50000, 0x150000, 0x1A0000, 0x200000
WS_REC = 0x400000
NFFN = 24
FFN_LAST = 1
NWG = NFFN + 256
SPIN = 1 << 17

sK, sV, sAUX, sWS, sX, sOUT, sAUX2 = 28, 32, 36, 40, 44, 48, 52
sWAVE, sH, sR, sTAG, sE, sT0, sT1, sCNT = 56, 57, 58, 60, 61, 62, 63, 3
sTILE = 80
sN, sNEXT = 86, 87
sRET1, sRET2, sLIM, sPOFF, sPH, sPROD = 84, 22, 59, 21, 20, 19
sCTR = 88
vLANE, vKV, vOFF = 1, 3, 2
RING = 60
vQ0, vQ1 = 8, 204
vACC0, vM0, vL0 = 20, 44, 45
vACC1, vM1, vL1 = 216, 240, 241
WQ = 156
XP = 236
KVREC = 50331648 + 1572864

def srd(s): return f"s[{s}:{s+3}]"

def gen(PROF=0, NT=1, FLA=12, STG=2, SLP=0, EARLY=1, DL=2, NS=6, STATIC=0, CH1=1, SCS='sc0 sc1', SCL='sc0 sc1', DBGT=0, MF=1, PUB1=1, PRE=4, WOLATE=3, THR=0, JIT=0, FTHR=0, W0PRE=1, PC=1, ZS=0, ZR=69, P1S=1, BOP=1):
    a = Asm(); e = a.e
    nt = " nt" if NT else ""
    prof_n = [0]
    SP = [64, 66, 68, 70, 72, 74, 76, 78, 90, 92, 98, 100, 4, 6]
    def stamp(level=1):
        if (PROF and level == 1) or PROF == level:
            i = prof_n[0]; prof_n[0] += 1
            e(f"s_memrealtime s[{SP[i]}:{SP[i]+1}]")
    def allreduce(regs, op, tmps, bits):
        for bit in bits:
            if bit in (0, 1, 2, 3, "m"):
                mod = {0: "quad_perm:[1,0,3,2]", 1: "quad_perm:[2,3,0,1]", 2: "row_half_mirror", 3: "row_ror:8", "m": "row_mirror"}[bit]
                for r in regs:
                    e(f"{op}_dpp v{r}, v{r}, v{r} {mod} row_mask:0xf bank_mask:0xf")
            else:
                sw = "v_permlane16_swap_b32" if bit == 4 else "v_permlane32_swap_b32"
                for r, t in zip(regs, tmps): e(f"v_mov_b32 v{t}, v{r}")
                for r, t in zip(regs, tmps): e(f"{sw} v{r}, v{t}")
                for r, t in zip(regs, tmps): e(f"{op} v{r}, v{r}, v{t}")
    def swapred(pairs, bit):
        sw = "v_permlane16_swap_b32" if bit == 4 else "v_permlane32_swap_b32"
        for x, y in pairs: e(f"{sw} v{x}, v{y}")
        for x, y in pairs: e(f"v_add_f32 v{x}, v{x}, v{y}")
    def mktag():
        e(f"s_mul_i32 s{sTAG}, s{sE}, 0x9E3779B1"); e(f"s_add_u32 s{sTAG}, s{sTAG}, 0x7F4A7C15")
    def lane_poll(name, loads, tagregs, tmp):
        e(f"s_mov_b32 s{sCNT}, {SPIN}")
        a.label(name)
        for l in loads: e(l)
        e("s_waitcnt vmcnt(0)")
        e(f"v_xor_b32 v{tmp}, s{sTAG}, v{tagregs[0]}")
        for t in tagregs[1:]:
            if BOP:
                e(f"v_bitop3_b32 v{tmp}, v{tmp}, v{t}, s{sTAG} bitop3:0xf6")
            else:
                e(f"v_xor_b32 v{tmp+1}, s{sTAG}, v{t}")
                e(f"v_or_b32 v{tmp}, v{tmp}, v{tmp+1}")
        e(f"v_cmp_ne_u32 vcc, 0, v{tmp}")
        e("s_mov_b64 exec, vcc")
        e(f"s_cbranch_execz {name}_done")
        e(f"s_sleep {SLP}")
        e(f"s_sub_u32 s{sCNT}, s{sCNT}, 1")
        e(f"s_cmp_lg_u32 s{sCNT}, 0")
        e(f"s_cbranch_scc1 {name}")
        a.label(name + "_done")
        e("s_mov_b64 exec, -1")

    def layernorm():
        D_ = [[8, 9, 10, 11, 12], [14, 15, 16, 17, 18]]
        X = [[20 + i for i in range(10)], [30 + i for i in range(10)]]
        for b in range(2):
            for i in range(5):
                e(f"v_lshlrev_b32 v{X[b][2*i]}, 16, v{D_[b][i]}")
                e(f"v_and_b32 v{X[b][2*i+1]}, 0xffff0000, v{D_[b][i]}")
        for b in range(2):
            e(f"v_add_f32 v{40+b}, v{X[b][0]}, v{X[b][1]}")
        for i in range(2, 10):
            for b in range(2): e(f"v_add_f32 v{40+b}, v{40+b}, v{X[b][i]}")
        allreduce([40, 41], "v_add_f32", [46, 47], [0, 1, 2, "m", 4, 5])
        e(f"s_mov_b32 s{sT0}, 0x3acccccd")
        for b in range(2): e(f"v_mul_f32 v{40+b}, s{sT0}, v{40+b}")
        for b in range(2):
            e(f"v_sub_f32 v{48+b}, v{X[b][0]}, v{40+b}")
        for b in range(2):
            e(f"v_mul_f32 v{42+b}, v{48+b}, v{48+b}")
        for i in range(1, 10):
            for b in range(2): e(f"v_sub_f32 v{48+2*(i&1)+b}, v{X[b][i]}, v{40+b}")
            for b in range(2): e(f"v_fmac_f32 v{42+b}, v{48+2*(i&1)+b}, v{48+2*(i&1)+b}")
        allreduce([42, 43], "v_add_f32", [46, 47], [0, 1, 2, "m", 4, 5])
        for b in range(2): e(f"v_mul_f32 v{42+b}, s{sT0}, v{42+b}")
        e("v_cvt_pk_bf16_f32 v46, v40, v41")
        e("v_cvt_pk_bf16_f32 v47, v42, v43")
        e("v_lshlrev_b32 v40, 16, v46"); e("v_and_b32 v41, 0xffff0000, v46")
        e("v_lshlrev_b32 v42, 16, v47"); e("v_and_b32 v43, 0xffff0000, v47")
        e("v_add_f32 v42, 0x3727c5ac, v42"); e("v_add_f32 v43, 0x3727c5ac, v43")
        e("v_cvt_pk_bf16_f32 v46, v42, v43")
        e("v_lshlrev_b32 v42, 16, v46"); e("v_and_b32 v43, 0xffff0000, v46")
        e("v_sqrt_f32 v42, v42"); e("v_sqrt_f32 v43, v43")
        e("v_cvt_pk_bf16_f32 v46, v42, v43")
        e("v_lshlrev_b32 v42, 16, v46"); e("v_and_b32 v43, 0xffff0000, v46")
        e("v_rcp_f32 v42, v42"); e("v_rcp_f32 v43, v43")
        e(f"v_mul_u32_u24 v5, 20, v{vLANE}")
        for i in range(5):
            for b in range(2):
                x0, x1 = X[b][2*i], X[b][2*i+1]
                e(f"v_sub_f32 v{x0}, v{x0}, v{40+b}"); e(f"v_sub_f32 v{x1}, v{x1}, v{40+b}")
            for b in range(2):
                x0, x1 = X[b][2*i], X[b][2*i+1]
                e(f"v_cvt_pk_bf16_f32 v{46+b}, v{x0}, v{x1}")
            for b in range(2):
                x0, x1 = X[b][2*i], X[b][2*i+1]
                e(f"v_lshlrev_b32 v{x0}, 16, v{46+b}"); e(f"v_and_b32 v{x1}, 0xffff0000, v{46+b}")
            for b in range(2):
                x0, x1 = X[b][2*i], X[b][2*i+1]
                e(f"v_mul_f32 v{x0}, v{x0}, v{42+b}"); e(f"v_mul_f32 v{x1}, v{x1}, v{42+b}")
            for b in range(2):
                x0, x1 = X[b][2*i], X[b][2*i+1]
                e(f"v_cvt_pk_bf16_f32 v{x0}, v{x0}, v{x1}")
            for b in range(2):
                e(f"ds_write_b32 v5, v{X[b][2*i]} offset:{XN + 1280*b + 4*i}")

    def xp_read(nrows, base_sgpr=None):
        e(f"v_lshrrev_b32 v6, 3, v{vLANE}")
        e(f"v_mul_u32_u24 v6, {nrows*8}, v6")
        e(f"s_mul_i32 s{sT0}, s{sWAVE}, {nrows*2}")
        if base_sgpr is not None: e(f"s_add_u32 s{sT0}, s{sT0}, s{base_sgpr}")
        e(f"v_add_u32 v6, s{sT0}, v6")
        e("s_waitcnt lgkmcnt(0)")
        n = nrows // 2
        for b in range(2):
            for p in range(n):
                e(f"ds_read_b32 v{XP+10*b+p}, v6 offset:{XN + 1280*b + 4*p}")

    def xloads():
        e(f"v_mul_u32_u24 v4, 20, v{vLANE}")
        e(f"buffer_load_dwordx4 v[8:11], v4, {srd(sX)}, 0 offen")
        e(f"buffer_load_dword v12, v4, {srd(sX)}, 0 offen offset:16")
        e(f"buffer_load_dwordx4 v[14:17], v4, {srd(sX)}, 0 offen offset:1280")
        e(f"buffer_load_dword v18, v4, {srd(sX)}, 0 offen offset:1296")

    def unit_addr(RS, nrows, vdst):
        e(f"v_lshrrev_b32 v6, 3, v{vLANE}")
        e(f"v_mul_u32_u24 v6, {nrows*4}, v6")
        e(f"s_mul_i32 s{sT0}, s{sWAVE}, {nrows}")
        e(f"v_add_u32 v6, s{sT0}, v6")
        e(f"s_mov_b32 s{sT0}, {RS}")
        e(f"v_mul_lo_u32 v6, v6, s{sT0}")
        e(f"v_and_b32 v7, 7, v{vLANE}")
        e(f"v_lshl_add_u32 v{vdst}, v7, 4, v6")

    def sel_ops(src, odd, d):
        for b in range(2):
            if not odd:
                e(f"v_and_b32 v{d+2*b}, 0xffff, v{src[b]}")
                e(f"v_lshlrev_b32 v{d+2*b+1}, 16, v{src[b]}")
            else:
                e(f"v_lshrrev_b32 v{d+2*b}, 16, v{src[b]}")
                e(f"v_and_b32 v{d+2*b+1}, 0xffff0000, v{src[b]}")

    def mac16(W, A, sel):
        for dd in range(4):
            for b in range(2):
                e(f"v_dot2c_f32_bf16 v{A+8*b+2*dd}, v{W+dd}, v{sel+2*b}")
                e(f"v_dot2c_f32_bf16 v{A+8*b+2*dd+1}, v{W+dd}, v{sel+2*b+1}")

    def unit_reduce(A, ldsbase):
        swapred([(A+i, A+8+i) for i in range(8)], 5)
        swapred([(A+i, A+4+i) for i in range(4)], 4)
        allreduce([A, A+1, A+2, A+3], "v_add_f32", None, [3])
        e(f"v_lshrrev_b32 v6, 5, v{vLANE}"); e("v_lshlrev_b32 v6, 8, v6")
        e(f"v_and_b32 v7, 7, v{vLANE}"); e("v_lshl_add_u32 v6, v7, 5, v6")
        e(f"v_bfe_u32 v7, v{vLANE}, 4, 1"); e("v_lshl_add_u32 v6, v7, 4, v6")
        e(f"s_lshl_b32 s{sT0}, s{sWAVE}, 9")
        e(f"v_add_u32 v6, s{sT0}, v6")
        e(f"ds_write_b128 v6, v[{A}:{A+3}] offset:{ldsbase}")

    def kv_loads(slot, t):
        e(f"s_lshr_b32 s{sT0}, s{t}, 9"); e(f"s_mul_i32 s{sT0}, s{sT0}, 50331648")
        e(f"s_and_b32 s{sT1}, s{t}, 511"); e(f"s_mul_i32 s{sT1}, s{sT1}, 3072")
        e(f"s_add_u32 s{sT0}, s{sT0}, s{sT1}")
        e(f"s_cmp_ge_u32 s{t}, 1024"); e(f"s_cselect_b32 s{sT0}, 0xf0000000, s{sT0}")
        e(f"v_add_u32 v{vOFF}, s{sT0}, v{vKV}")
        b = RING + 24 * slot
        for s in range(3): e(f"buffer_load_dwordx4 v[{b+4*s}:{b+4*s+3}], v{vOFF}, {srd(sK)}, 0 offen offset:{128*s}{nt}")
        for s in range(3): e(f"buffer_load_dwordx4 v[{b+12+4*s}:{b+12+4*s+3}], v{vOFF}, {srd(sV)}, 0 offen offset:{128*s}{nt}")

    def wo_dma(lab):
        e(f"s_cmp_lt_u32 s{sR}, 3"); e(f"s_cbranch_scc1 {lab}")
        e(f"s_mul_i32 s{sT0}, s{sH}, {192*1280}"); e(f"s_sub_u32 s{sT1}, s{sR}, 3"); e(f"s_lshl_b32 s{sT1}, s{sT1}, 8")
        e(f"s_add_u32 s{sT0}, s{sT0}, s{sT1}")
        e(f"s_add_u32 s{sAUX2}, s12, s{sT0}"); e(f"s_addc_u32 s{sAUX2+1}, s13, 0")
        e(f"s_mov_b32 s{sAUX2+2}, {191*1280+256}"); e(f"s_mov_b32 s{sAUX2+3}, 0x20000")
        e(f"v_lshrrev_b32 v6, 4, v{vLANE}"); e("v_mul_u32_u24 v6, 12, v6")
        e(f"s_mul_i32 s{sT0}, s{sWAVE}, 48"); e(f"v_add_u32 v6, s{sT0}, v6")
        e("v_mul_u32_u24 v6, 1280, v6")
        e(f"v_and_b32 v7, 15, v{vLANE}"); e("v_lshl_add_u32 v6, v7, 4, v6")
        e(f"s_mov_b32 s{sT1}, 0")
        e(f"s_mul_i32 s{sT0}, s{sWAVE}, 12288"); e(f"s_add_u32 s{sT0}, s{sT0}, {WOL}")
        for i in range(12):
            e(f"s_mov_b32 m0, s{sT0}"); e("s_nop 0")
            e(f"buffer_load_dwordx4 v6, {srd(sAUX2)}, s{sT1} offen{nt} lds")
            if i < 11: e(f"s_add_u32 s{sT1}, s{sT1}, 1280"); e(f"s_add_u32 s{sT0}, s{sT0}, 1024")
        a.label(lab)

    hdr = open("recurrent_scan__mha_block_cached__geglu_ffn__decode.s.ref").read().split("\n")
    out = []
    for l in hdr:
        if not l.startswith(";"): break
        if "@launch" in l or "Override" in l or "grid=ceil" in l: continue
        out.append(l)
    out.append(f"; @launch grid=({NWG},1,1) block=(256,1,1) lds={LDS_BYTES}")
    out += ['.amdgcn_target "amdgcn-amd-amdhsa--gfx950"', ".text", f".globl {KNAME}", ".p2align 8", f".type {KNAME},@function", f"{KNAME}:"]

    e(f"s_cmp_ge_u32 s2, {NWG}"); e("s_cbranch_scc1 L_end")
    stamp()
    if DBGT: e("s_memrealtime s[98:99]")
    e("s_load_dwordx8 s[4:11], s[0:1], 0")
    e("s_load_dwordx2 s[12:13], s[0:1], 32")
    e("s_load_dwordx4 s[24:27], s[0:1], 80")
    e("s_load_dwordx4 s[16:19], s[0:1], 48")
    e("s_load_dwordx4 s[20:23], s[0:1], 64")
    e(f"v_and_b32 v{vLANE}, 63, v0")
    e("v_lshrrev_b32 v2, 6, v0")
    e(f"v_readfirstlane_b32 s{sWAVE}, v2")
    e(f"s_and_b32 s{sR}, s2, 7")
    e(f"s_lshr_b32 s{sH}, s2, 3")
    e(f"s_lshl_b32 s{sT1}, s{sR}, 2"); e(f"s_add_u32 s{sH}, s{sH}, s{sT1}"); e(f"s_and_b32 s{sH}, s{sH}, 31")
    e(f"s_lshr_b32 s{sT1}, s{sH}, 2"); e(f"s_sub_u32 s{sR}, s{sR}, s{sT1}"); e(f"s_add_u32 s{sR}, s{sR}, 7"); e(f"s_and_b32 s{sR}, s{sR}, 7")
    e("s_lshr_b32 s94, s2, 3"); e("s_sub_u32 s94, s94, 3")
    e("s_mul_i32 s95, s94, 43"); e("s_lshr_b32 s95, s95, 8")
    e("s_and_b32 s96, s2, 7"); e("s_lshl_b32 s96, s96, 2"); e("s_add_u32 s96, s96, s95")
    e("s_mul_i32 s95, s95, 6"); e("s_sub_u32 s95, s94, s95")
    e("s_cmp_ge_u32 s95, 3"); e("s_cselect_b32 s15, 1, 0")
    e("s_mul_i32 s14, s15, 3"); e("s_sub_u32 s14, s95, s14")
    e(f"s_mov_b32 s{sX+2}, 2560"); e(f"s_mov_b32 s{sX+3}, 0x20000")
    e(f"s_mov_b32 s{sWS+2}, {WS_REC}"); e(f"s_mov_b32 s{sWS+3}, 0x20000")
    e(f"s_mov_b32 s{sOUT+2}, 2560"); e(f"s_mov_b32 s{sOUT+3}, 0x20000")
    e(f"v_mul_u32_u24 v4, 20, v{vLANE}")
    e("s_waitcnt lgkmcnt(0)")
    stamp(2)
    e(f"s_mov_b32 s{sX}, s4"); e(f"s_mov_b32 s{sX+1}, s5")
    e(f"s_load_dword s{sE}, s[26:27], 0")
    e(f"s_mov_b32 s{sWS}, s26"); e(f"s_mov_b32 s{sWS+1}, s27")
    e(f"s_mov_b32 s{sOUT}, s22"); e(f"s_mov_b32 s{sOUT+1}, s23")
    e(f"s_cmp_ge_u32 s2, 256"); e("s_cbranch_scc1 L_ffn")

    e("s_cmp_ge_u32 s94, 24"); e("s_cbranch_scc1 L_setup")
    xloads()
    e(f"s_mul_i32 s{sT0}, s96, 384"); e(f"s_lshl_b32 s{sT1}, s14, 7"); e(f"s_add_u32 s{sT0}, s{sT0}, s{sT1}")
    e(f"s_mul_i32 s{sT1}, s15, {320*12288}"); e(f"s_add_u32 s{sT0}, s{sT0}, s{sT1}")
    e(f"s_add_u32 s{sAUX}, s10, s{sT0}"); e(f"s_addc_u32 s{sAUX+1}, s11, 0")
    e(f"s_mov_b32 s{sAUX+2}, {319*12288+128}"); e(f"s_mov_b32 s{sAUX+3}, 0x20000")
    unit_addr(12288, 10, 4)
    e(f"s_mov_b32 s{sT1}, 0")
    for i in range(10):
        e(f"buffer_load_dwordx4 v[{WQ+4*i}:{WQ+4*i+3}], v4, {srd(sAUX)}, s{sT1} offen{nt}")
        if i < 9: e(f"s_add_u32 s{sT1}, s{sT1}, 12288")
    a.label("L_setup")
    e(f"s_mul_i32 s{sT1}, s{sH}, 1572864")
    e(f"s_add_u32 s{sK}, s6, s{sT1}"); e(f"s_addc_u32 s{sK+1}, s7, 0"); e(f"s_mov_b32 s{sK+3}, 0x20000")
    e(f"s_add_u32 s{sV}, s8, s{sT1}"); e(f"s_addc_u32 s{sV+1}, s9, 0"); e(f"s_mov_b32 s{sV+3}, 0x20000")
    if W0PRE:
        e(f"s_mov_b32 s{sK+2}, {KVREC}"); e(f"s_mov_b32 s{sV+2}, {KVREC}")
    else:
        e(f"s_cmp_eq_u32 s{sWAVE}, 0")
        e(f"s_cselect_b32 s{sK+2}, 0, {KVREC}"); e(f"s_cselect_b32 s{sV+2}, 0, {KVREC}")
    e(f"s_lshl_b32 s{sT1}, s{sH}, 8"); e(f"s_add_u32 s{sT1}, s{sT1}, {CNT}")
    e(f"s_add_u32 s{sCTR}, s26, s{sT1}"); e(f"s_addc_u32 s{sCTR+1}, s27, 0")
    e(f"v_lshrrev_b32 v6, 3, v{vLANE}"); e(f"v_mul_u32_u24 v{vKV}, 384, v6")
    e(f"v_and_b32 v7, 7, v{vLANE}"); e(f"v_lshl_add_u32 v{vKV}, v7, 4, v{vKV}")
    e(f"s_lshl_b32 s{sT0}, s{sR}, 2"); e(f"s_add_u32 s{sT0}, s{sT0}, s{sWAVE}"); e(f"s_mul_i32 s{sT0}, s{sT0}, {NS}")
    for d in range(NS): e(f"s_add_u32 s{sTILE+d}, s{sT0}, {d}")
    e(f"s_or_b32 s{sT0}, s95, s{sWAVE}"); e(f"s_cmp_lg_u32 s{sT0}, 0"); e("s_cbranch_scc1 L_noinit")
    e("s_cmp_ge_u32 s94, 24"); e("s_cbranch_scc1 L_noinit")
    e(f"s_lshl_b32 s{sT1}, s96, 8"); e(f"s_add_u32 s{sT1}, s{sT1}, {CNT}")
    e(f"s_add_u32 s16, s26, s{sT1}"); e(f"s_addc_u32 s17, s27, 0")
    e(f"s_mov_b32 s{sN}, {32*NS}")
    e(f"s_atomic_swap s{sN}, s[16:17], 0 glc")
    a.label("L_noinit")
    e("s_cmp_ge_u32 s94, 24"); e("s_cbranch_scc1 L_nowq")
    stamp(2)
    e("s_waitcnt vmcnt(10)")
    stamp(2)
    layernorm()
    e(f"s_mul_i32 s{sT1}, s15, 640")
    xp_read(10, sT1)
    for d in range(EARLY): kv_loads(d, sTILE + d)
    for i in range(16): e(f"v_mov_b32 v{20+i}, 0")
    e("s_waitcnt lgkmcnt(0)")
    stamp(2)
    for i in range(10):
        e(f"s_waitcnt vmcnt({6*EARLY + 9 - i})")
        sel_ops([XP + (i >> 1), XP + 10 + (i >> 1)], i & 1, 52)
        mac16(WQ + 4*i, 20, 52)
    stamp(2)
    unit_reduce(20, QP)
    e("s_waitcnt lgkmcnt(0)")
    e("s_barrier")
    stamp(2)
    e(f"s_cmp_lg_u32 s{sWAVE}, 0"); e("s_cbranch_scc1 L_kvrest0")
    e(f"v_lshlrev_b32 v6, 3, v{vLANE}")
    for w in range(4): e(f"ds_read_b64 v[{20+2*w}:{21+2*w}], v6 offset:{QP + 512*w}")
    mktag()
    e(f"v_lshrrev_b32 v6, 5, v{vLANE}"); e("v_mul_u32_u24 v6, 3072, v6")
    e(f"v_and_b32 v7, 31, v{vLANE}"); e("v_lshl_add_u32 v6, v7, 5, v6")
    e(f"s_lshl_b32 s{sT0}, s96, 13"); e(f"s_lshl_b32 s{sT1}, s14, 10"); e(f"s_add_u32 s{sT0}, s{sT0}, s{sT1}")
    e(f"s_lshl_b32 s{sT1}, s15, 4"); e(f"s_add_u32 s{sT0}, s{sT0}, s{sT1}")
    e(f"s_add_u32 s{sT0}, s{sT0}, {QBOX}")
    e("s_waitcnt lgkmcnt(0)")
    e("v_add_f32 v20, v20, v22"); e("v_add_f32 v21, v21, v23"); e("v_add_f32 v24, v24, v26"); e("v_add_f32 v25, v25, v27")
    e("v_add_f32 v40, v20, v24"); e("v_add_f32 v42, v21, v25")
    e(f"v_mov_b32 v41, s{sTAG}"); e(f"v_mov_b32 v43, s{sTAG}")
    e(f"buffer_store_dwordx4 v[40:43], v6, {srd(sWS)}, s{sT0} offen {SCS}")
    if PUB1: e("s_barrier")
    e("s_branch L_kvrest" if W0PRE else "s_branch L_qwait")
    a.label("L_kvrest0")
    if PUB1: e("s_barrier")
    e("s_branch L_kvrest")
    a.label("L_nowq")
    if not W0PRE:
        e(f"s_cmp_eq_u32 s{sWAVE}, 0"); e("s_cbranch_scc1 L_qwait")
    for d in range(EARLY): kv_loads(d, sTILE + d)
    a.label("L_kvrest")
    for d in range(EARLY, PRE):
        if STG: e(f"s_waitcnt vmcnt({6*(STG-1)})")
        kv_loads(d, sTILE + d)
    a.label("L_qwait")
    stamp(2)
    if PC:
        e(f"v_and_b32 v6, 7, v{vLANE}"); e("v_lshlrev_b32 v6, 5, v6")
        e(f"v_lshrrev_b32 v7, 5, v{vLANE}"); e("v_lshl_add_u32 v6, v7, 4, v6")
        e(f"v_bfe_u32 v7, v{vLANE}, 4, 1"); e("v_lshl_add_u32 v6, v7, 3, v6")
        e(f"s_mul_i32 s{sT0}, s{sWAVE}, 768"); e(f"v_add_u32 v236, s{sT0}, v6")
        e("v_and_b32 v5, 127, v0"); e("v_lshrrev_b32 v4, 7, v0")
        e("v_mul_u32_u24 v6, 3072, v4"); e("v_lshl_add_u32 v237, v5, 3, v6")
        e("v_lshlrev_b32 v238, 5, v4")
        e("v_lshlrev_b32 v6, 11, v4"); e("v_lshl_add_u32 v239, v5, 4, v6")
        e(f"v_and_b32 v24, 7, v{vLANE}"); e("v_and_b32 v25, 1, v24"); e("v_lshrrev_b32 v24, 1, v24")
        e("v_cmp_eq_u32 vcc, 1, v25")
        e("v_mov_b32 v26, 0x0c0c0100"); e("v_mov_b32 v27, 0x01000c0c"); e("v_mov_b32 v28, 0x0c0c0302"); e("v_mov_b32 v29, 0x03020c0c")
        e("v_cndmask_b32 v26, v26, v27, vcc"); e("v_cndmask_b32 v28, v28, v29, vcc")
        e("v_mov_b32 v27, 0x0c0c0c0c")
        for r in range(4):
            e(f"v_cmp_eq_u32 vcc, {r}, v24")
            e(f"v_cndmask_b32 v{240+r}, v27, v26, vcc"); e(f"v_cndmask_b32 v{244+r}, v27, v28, vcc")
        e(f"v_lshrrev_b32 v6, 4, v{vLANE}"); e("v_mul_u32_u24 v6, 24, v6")
        e(f"v_bfe_u32 v7, v{vLANE}, 3, 1"); e("v_mul_u32_u24 v7, 384, v7"); e("v_add_u32 v6, v6, v7")
        e(f"s_mul_i32 s{sT0}, s{sWAVE}, 96"); e(f"v_add_u32 v248, s{sT0}, v6")
        e(f"v_lshrrev_b32 v6, 5, v{vLANE}"); e("v_lshlrev_b32 v6, 9, v6")
        e(f"v_and_b32 v7, 15, v{vLANE}"); e("v_lshl_add_u32 v6, v7, 5, v6")
        e(f"v_bfe_u32 v7, v{vLANE}, 4, 1"); e("v_lshl_add_u32 v6, v7, 4, v6")
        e(f"s_lshl_b32 s{sT0}, s{sWAVE}, 10"); e(f"v_add_u32 v249, s{sT0}, v6")
        e("v_cmp_le_u32 vcc, 96, v0")
        e("v_cndmask_b32 v7, 0, 1, vcc")
        e("v_mul_u32_u24 v5, 96, v7"); e("v_sub_u32 v5, v0, v5")
        e("v_lshlrev_b32 v6, 11, v7"); e("v_lshl_add_u32 v250, v5, 4, v6")
        e("v_mul_u32_u24 v6, 384, v7"); e("v_lshl_add_u32 v251, v5, 2, v6")
        e(f"v_lshlrev_b32 v6, 4, v{vLANE}"); e(f"s_mul_i32 s{sT0}, s{sWAVE}, 12288"); e(f"v_add_u32 v252, s{sT0}, v6")
    e("s_waitcnt lgkmcnt(0)")
    mktag()
    e(f"s_cmp_lg_u32 s{sWAVE}, 0"); e("s_cbranch_scc1 L_qbar")
    e("s_setprio 2")
    e(f"s_lshl_b32 s{sT0}, s{sH}, 13"); e(f"s_add_u32 s{sT0}, s{sT0}, {QBOX}")
    e(f"s_add_u32 s{sT1}, s{sT0}, 3072")
    e(f"v_lshlrev_b32 v6, 5, v{vLANE}")
    e(f"v_and_b32 v7, 31, v{vLANE}"); e("v_lshlrev_b32 v7, 5, v7"); e("v_add_u32 v7, 2048, v7")
    loads = []
    for b, so in ((0, sT0), (1, sT1)):
        base = (204 if W0PRE else 60) + 16 * b
        loads.append(f"buffer_load_dwordx4 v[{base}:{base+3}], v6, {srd(sWS)}, s{so} offen {SCL}")
        loads.append(f"buffer_load_dwordx4 v[{base+4}:{base+7}], v6, {srd(sWS)}, s{so} offen offset:16 {SCL}")
        loads.append(f"buffer_load_dwordx4 v[{base+8}:{base+11}], v7, {srd(sWS)}, s{so} offen {SCL}")
        loads.append(f"buffer_load_dwordx4 v[{base+12}:{base+15}], v7, {srd(sWS)}, s{so} offen offset:16 {SCL}")
    lane_poll("L_pq", loads, [(205 if W0PRE else 61) + 2*i for i in range(16)], 52)
    e(f"v_lshlrev_b32 v6, 2, v{vLANE}")
    e(f"v_and_b32 v7, 31, v{vLANE}"); e("v_lshlrev_b32 v7, 2, v7")
    for b in range(2):
        base = (204 if W0PRE else 60) + 16 * b
        e(f"v_add_f32 v{base}, v{base}, v{base+4}"); e(f"v_add_f32 v{base+2}, v{base+2}, v{base+6}")
        e(f"v_add_f32 v{base+8}, v{base+8}, v{base+12}"); e(f"v_add_f32 v{base+10}, v{base+10}, v{base+14}")
        e(f"v_cvt_pk_bf16_f32 v{base}, v{base}, v{base+2}"); e(f"v_cvt_pk_bf16_f32 v{base+8}, v{base+8}, v{base+10}")
        e(f"ds_write_b32 v6, v{base} offset:{Q + 384*b}")
        e(f"ds_write_b32 v7, v{base+8} offset:{Q + 384*b + 256}")
    e("s_waitcnt lgkmcnt(0)")
    e("s_setprio 0")
    stamp(2)
    e(f"s_mov_b32 s{sK+2}, {KVREC}"); e(f"s_mov_b32 s{sV+2}, {KVREC}")
    a.label("L_qbar")
    e("s_barrier")
    stamp()
    if DBGT: e("s_memrealtime s[66:67]")
    e(f"s_mov_b32 s{sN}, {1 if CH1 else DL}")
    e(f"v_and_b32 v7, 7, v{vLANE}"); e("v_lshlrev_b32 v6, 4, v7")
    for s in range(3): e(f"ds_read_b128 v[{vQ0+4*s}:{vQ0+4*s+3}], v6 offset:{Q + 128*s}")
    if not W0PRE:
        e(f"s_cmp_lg_u32 s{sWAVE}, 0"); e("s_cbranch_scc1 L_w0kv")
        for d in range(min(PRE, NS)): kv_loads(d, sTILE + d)
        a.label("L_w0kv")
    for d in range(min(PRE, NS), NS): kv_loads(d, sTILE + d)
    if not WOLATE: wo_dma('L_nowo')
    if WOLATE >= 2:
        e(f"s_mul_i32 s{sT0}, s{sH}, {192*1280}"); e(f"s_max_u32 s{sT1}, s{sR}, 3"); e(f"s_sub_u32 s{sT1}, s{sT1}, 3"); e(f"s_lshl_b32 s{sT1}, s{sT1}, 8")
        e(f"s_add_u32 s{sT0}, s{sT0}, s{sT1}")
        e(f"s_add_u32 s{sAUX2}, s12, s{sT0}"); e(f"s_addc_u32 s{sAUX2+1}, s13, 0")
        e(f"s_cmp_lt_u32 s{sR}, 3"); e(f"s_cselect_b32 s{sAUX2+2}, 0, {191*1280+256}"); e(f"s_mov_b32 s{sAUX2+3}, 0x20000")
        e(f"v_lshrrev_b32 v6, 4, v{vLANE}"); e("v_mul_u32_u24 v6, 12, v6")
        e(f"s_mul_i32 s{sT0}, s{sWAVE}, 48"); e(f"v_add_u32 v6, s{sT0}, v6")
        e("v_mul_u32_u24 v6, 1280, v6")
        e(f"v_and_b32 v7, 15, v{vLANE}"); e("v_lshl_add_u32 v254, v7, 4, v6")
        e(f"s_mul_i32 s24, s{sWAVE}, 12288"); e(f"s_add_u32 s24, s24, {WOL}")
        if WOLATE in (3, 5): e("s_mov_b32 m0, s24"); e("s_mov_b32 s25, 0")
        if PC:
            e(f"s_lshl_b32 s{sT0}, s{sH}, 15"); e(f"s_add_u32 s4, s{sT0}, {OBOX}")
            for p in range(1, 8): e(f"s_add_u32 s{4+p}, s4, {4096*p}")
            e(f"s_lshl_b32 s{sT1}, s{sR}, 12"); e(f"s_add_u32 s13, s4, s{sT1}")
            e(f"s_mul_i32 s{sT0}, s{sH}, 5"); e(f"s_add_u32 s{sT0}, s{sT0}, s{sR}"); e(f"s_sub_u32 s{sT0}, s{sT0}, 3")
            e(f"s_lshl_b32 s{sT0}, s{sT0}, 11"); e(f"s_add_u32 s12, s{sT0}, {YBOX}")
    for i in range(24): e(f"v_mov_b32 v{vACC0+i}, 0")
    e(f"v_mov_b32 v{vM0}, 0xff000000"); e(f"v_mov_b32 v{vL0}, 0")
    e(f"v_lshlrev_b32 v6, 2, v{vLANE}"); e(f"s_mul_i32 s{sT0}, s{sWAVE}, 768"); e(f"v_add_u32 v6, s{sT0}, v6")
    for c in range(2):
        for k in range(3): e(f"ds_write_b32 v6, v{vL0} offset:{PART + 3072*c + 256*k}")
    e(f"s_lshl_b32 s{sT0}, s{sWAVE}, 3"); e(f"v_mov_b32 v7, s{sT0}")
    e(f"ds_write_b64 v7, v[{vM0}:{vL0}] offset:{STAT}"); e(f"ds_write_b64 v7, v[{vM0}:{vL0}] offset:{STAT+32}")
    e(f"s_mov_b32 s{sLIM}, 512"); e(f"s_mov_b32 s{sPOFF}, 0")
    e("s_mov_b32 s14, 0x3d93cd3a"); e("s_mov_b32 s15, 0x3fb8aa3b")
    e("s_waitcnt lgkmcnt(0)")
    e(f"s_atomic_add s{sN}, s[{sCTR}:{sCTR+1}], 0 glc")

    def tile_compute(slot, q, acc, m, l, waitV):
        b = RING + 24 * slot
        e(f"v_mov_b32 v46, 0"); e("v_mov_b32 v47, 0")
        for i in range(12): e(f"v_dot2c_f32_bf16 v{46+(i&1)}, v{b+i}, v{q+i}")
        e("v_add_f32 v46, v46, v47")
        allreduce([46], "v_add_f32", None, [0, 1, 2])
        e("v_cvt_pk_bf16_f32 v46, v46, v46"); e("v_and_b32 v46, 0xffff0000, v46")
        e("v_mul_f32 v46, s14, v46")
        e("v_cvt_pk_bf16_f32 v46, v46, v46"); e("v_and_b32 v46, 0xffff0000, v46")
        e("v_mul_f32 v46, s15, v46")
        e(f"v_max_f32 v47, v{m}, v46")
        e(f"v_sub_f32 v48, v{m}, v47"); e("v_sub_f32 v49, v46, v47")
        e("v_exp_f32 v48, v48"); e("v_exp_f32 v49, v49")
        e(f"v_mov_b32 v{m}, v47")
        e(f"v_fma_f32 v{l}, v{l}, v48, v49")
        e("v_cvt_pk_bf16_f32 v50, v49, 0"); e("v_lshlrev_b32 v51, 16, v50")
        for i in range(12):
            e(f"v_pk_mul_f32 v[{acc+2*i}:{acc+2*i+1}], v[{acc+2*i}:{acc+2*i+1}], v[48:49] op_sel_hi:[1,0]")
        e(f"s_waitcnt vmcnt({waitV})")
        for i in range(12):
            e(f"v_dot2c_f32_bf16 v{acc+2*i}, v{b+12+i}, v50")
            e(f"v_dot2c_f32_bf16 v{acc+2*i+1}, v{b+12+i}, v51")
    def refill(d):
        if STATIC:
            if first[0]:
                e(f"s_lshl_b32 s{sT0}, s{sR}, 2"); e(f"s_add_u32 s{sT0}, s{sT0}, s{sWAVE}"); e(f"s_mul_i32 s{sT0}, s{sT0}, {DL}")
                e(f"s_add_u32 s{sTILE+d}, s{sT0}, {32*NS + d}")
            else:
                e(f"s_add_u32 s{sTILE+d}, s{sTILE+d}, {32*DL}")
        elif CH1 and THR and not first[0]:
            e("s_waitcnt lgkmcnt(0)")
            e(f"s_mov_b32 s{sTILE+d}, s{sN}")
            e(f"s_cmp_ge_u32 s{sN}, {THR}"); e("s_cselect_b32 s95, 1, 0")
            e(f"s_cbranch_scc1 L_nopre_{d}")
            e(f"s_mov_b32 s{sN}, 1")
            e(f"s_atomic_add s{sN}, s[{sCTR}:{sCTR+1}], 0 glc")
            a.label(f"L_nopre_{d}")
        elif CH1 and ZS and not first[0]:
            e("s_waitcnt lgkmcnt(0)")
            e(f"s_mov_b32 s{sTILE+d}, s{sN}")
            e("s_add_u32 s94, s94, 1")
            e(f"s_cmp_lt_u32 s{sN}, {1024 - ZS}"); e(f"s_cbranch_scc1 L_grab_{d}")
            e(f"s_cmp_ge_u32 s{sN}, 1024"); e(f"s_cbranch_scc1 L_nograb_{d}")
            e(f"s_cmp_eq_u32 s{sWAVE}, 0"); e(f"s_cbranch_scc1 L_grab_{d}")
            e(f"s_sub_u32 s{sT0}, s{sN}, {32*NS}"); e(f"s_lshl_b32 s{sT0}, s{sT0}, 1")
            e(f"s_mul_i32 s{sT1}, s94, {ZR}")
            e(f"s_cmp_le_u32 s{sT0}, s{sT1}"); e(f"s_cbranch_scc1 L_grab_{d}")
            e(f"s_mov_b32 s{sN}, 1024")
            e(f"s_branch L_nograb_{d}")
            a.label(f"L_grab_{d}")
            e(f"s_mov_b32 s{sN}, 1")
            e(f"s_atomic_add s{sN}, s[{sCTR}:{sCTR+1}], 0 glc")
            a.label(f"L_nograb_{d}")
        elif CH1:
            e("s_waitcnt lgkmcnt(0)")
            e(f"s_mov_b32 s{sTILE+d}, s{sN}")
            if ZS: e("s_add_u32 s94, s94, 1")
            e(f"s_mov_b32 s{sN}, 1")
            e(f"s_atomic_add s{sN}, s[{sCTR}:{sCTR+1}], 0 glc")
        elif d == 0:
            e("s_waitcnt lgkmcnt(0)")
            e(f"s_mov_b32 s{sTILE}, s{sN}")
            e(f"s_add_u32 s{sNEXT}, s{sN}, 1")
            e(f"s_mov_b32 s{sN}, {DL}")
            e(f"s_atomic_add s{sN}, s[{sCTR}:{sCTR+1}], 0 glc")
        else:
            e(f"s_mov_b32 s{sTILE+d}, s{sNEXT}")
            if d < DL - 1: e(f"s_add_u32 s{sNEXT}, s{sNEXT}, 1")
        if WOLATE in (3, 5) and not first[0]:
            e(f"s_cmp_ge_u32 s{sTILE+d}, 1024"); e(f"s_cbranch_scc1 L_dma_{d}")
            kv_loads(d, sTILE + d)
            a.label(f"L_rj_{d}")
        else:
            kv_loads(d, sTILE + d)
    first = [True]
    if ZS: e("s_mov_b32 s94, 0")
    if THR: e("s_mov_b32 s95, 0")
    order = list(range(NS))
    for d in range(NS):
        younger = len(order) - 1 - order.index(d)
        e(f"s_waitcnt vmcnt({6*younger+3})")
        tile_compute(d, vQ0, vACC0, vM0, vL0, 6*younger)
        order.remove(d)
        if d < DL:
            refill(d); order.append(d)
    first[0] = False
    a.label("L_loop")
    for d in range(DL):
        e(f"s_cmp_ge_u32 s{sTILE+d}, s{sLIM}"); e(f"s_cbranch_scc1 L_sw_{d}")
        a.label(f"L_cont_{d}")
        e(f"s_waitcnt vmcnt({6*(DL-1)+3})")
        if THR:
            e("s_cmp_eq_u32 s95, 0"); e(f"s_cbranch_scc1 L_nojit_{d}")
            e(f"s_mov_b32 s{sN}, 1")
            e(f"s_atomic_add s{sN}, s[{sCTR}:{sCTR+1}], 0 glc")
            a.label(f"L_nojit_{d}")
        tile_compute(d, vQ0, vACC0, vM0, vL0, 6*(DL-1))
        refill(d)
    e("s_branch L_loop")
    if WOLATE == 5:
        assert DL == 2
        for d in range(DL):
            a.label(f"L_dma_{d}")
            stamp(4)
            e(f"s_cmp_ge_u32 s{sTILE+1-d}, 1024"); e(f"s_cbranch_scc1 L_dma2_{d}")
            kv_loads(d, sTILE + d)
            e(f"s_branch L_rj_{d}")
            a.label(f"L_dma2_{d}")
            for k in range(12):
                e(f"buffer_load_dwordx4 v254, {srd(sAUX2)}, s25 offen{nt} lds")
                e("s_add_u32 m0, m0, 1024"); e("s_add_u32 s25, s25, 1280")
            e(f"s_branch L_rj_{d}")
    if WOLATE == 3:
        assert DL == 2
        for d in range(DL):
            a.label(f"L_dma_{d}")
            stamp(4)
            for k in range(6):
                e(f"buffer_load_dwordx4 v254, {srd(sAUX2)}, s25 offen{nt} lds")
                e("s_add_u32 m0, m0, 1024"); e("s_add_u32 s25, s25, 1280")
            e(f"s_branch L_rj_{d}")
    for d in range(DL):
        a.label(f"L_sw_{d}")
        e(f"s_cmp_ge_u32 s{sTILE+d}, 1024"); e("s_cbranch_scc1 L_loopend")
        e(f"s_call_b64 s[{sRET1}:{sRET1+1}], L_switch")
        e(f"s_branch L_cont_{d}")
    a.label("L_switch")
    e(f"s_call_b64 s[{sRET2}:{sRET2+1}], L_flush")
    for i in range(24): e(f"v_mov_b32 v{vACC0+i}, 0")
    e(f"v_mov_b32 v{vM0}, 0xff000000"); e(f"v_mov_b32 v{vL0}, 0")
    e(f"v_and_b32 v7, 7, v{vLANE}"); e("v_lshlrev_b32 v6, 4, v7")
    for s_ in range(3): e(f"ds_read_b128 v[{vQ0+4*s_}:{vQ0+4*s_+3}], v6 offset:{Q + 384 + 128*s_}")
    e(f"s_mov_b32 s{sLIM}, 1024"); e(f"s_mov_b32 s{sPOFF}, 3072")
    e("s_waitcnt lgkmcnt(0)")
    e(f"s_setpc_b64 s[{sRET1}:{sRET1+1}]")
    def flush_code():
        acc = vACC0
        e(f"v_mov_b32 v46, v{vM0}")
        e(f"v_add_u32 v6, s{sPOFF}, v236")
        e(f"s_lshl_b32 s{sT0}, s{sWAVE}, 3"); e(f"s_lshr_b32 s{sT1}, s{sPOFF}, 6"); e(f"s_and_b32 s{sT1}, s{sT1}, 32"); e(f"s_add_u32 s{sT0}, s{sT0}, s{sT1}")
        allreduce([46], "v_max_f32", [47], [3])
        e(f"v_mov_b32 v7, s{sT0}")
        allreduce([46], "v_max_f32", [47], [4, 5])
        e(f"v_sub_f32 v48, v{vM0}, v46")
        e("v_exp_f32 v48, v48")
        e(f"v_mul_f32 v47, v{vL0}, v48")
        for i in range(12):
            e(f"v_pk_mul_f32 v[{acc+2*i}:{acc+2*i+1}], v[{acc+2*i}:{acc+2*i+1}], v[48:49] op_sel_hi:[1,0]")
        prs5 = [(acc+8*s_+i, acc+8*s_+4+i) for s_ in range(3) for i in range(4)]
        e("v_add_f32_dpp v47, v47, v47 row_ror:8 row_mask:0xf bank_mask:0xf")
        for x, y in prs5: e(f"v_permlane32_swap_b32 v{x}, v{y}")
        e("v_mov_b32 v49, v47")
        for x, y in prs5: e(f"v_add_f32 v{x}, v{x}, v{y}")
        e("v_permlane16_swap_b32 v47, v49")
        prs4 = [(acc+8*s_+i, acc+8*s_+2+i) for s_ in range(3) for i in range(2)]
        for x, y in prs4: e(f"v_permlane16_swap_b32 v{x}, v{y}")
        e("v_add_f32 v47, v47, v49")
        for x, y in prs4: e(f"v_add_f32 v{x}, v{x}, v{y}")
        e("v_mov_b32 v49, v47")
        allreduce([acc+8*s_+i for s_ in range(3) for i in range(2)], "v_add_f32", None, [3])
        e("v_permlane32_swap_b32 v47, v49")
        for s_ in range(3): e(f"ds_write_b64 v6, v[{acc+8*s_}:{acc+8*s_+1}] offset:{PART + 256*s_}")
        e("v_add_f32 v47, v47, v49")
        e(f"ds_write_b64 v7, v[46:47] offset:{STAT}")
    a.label("L_flush")
    flush_code()
    e(f"s_setpc_b64 s[{sRET2}:{sRET2+1}]")
    a.label("L_loopend")
    stamp()
    if DBGT: e("s_memrealtime s[64:65]")
    if WOLATE == 1: wo_dma('L_nowo')
    if WOLATE in (3, 5):
        a.label("L_dmafix")
        e("s_cmp_ge_u32 s25, 15360"); e("s_cbranch_scc1 L_dmafix_done")
        e(f"buffer_load_dwordx4 v254, {srd(sAUX2)}, s25 offen{nt} lds")
        e("s_add_u32 m0, m0, 1024"); e("s_add_u32 s25, s25, 1280")
        e("s_branch L_dmafix")
        a.label("L_dmafix_done")
    if WOLATE == 2:
        n0 = len(a.L)
        flush_code()
        code = a.L[n0:]; del a.L[n0:]
        e("s_mov_b32 m0, s24")
        e("s_mov_b32 s25, 0")
        step = max(1, len(code) // 13)
        k = 0
        for j, l in enumerate(code):
            a.L.append(l)
            if j % step == step - 1 and k < 12:
                a.L.append(f"buffer_load_dwordx4 v254, {srd(sAUX2)}, s25 offen{nt} lds")
                if k < 11:
                    a.L.append("s_add_u32 m0, m0, 1024"); a.L.append("s_add_u32 s25, s25, 1280")
                k += 1
        assert k == 12
    else:
        e(f"s_call_b64 s[{sRET2}:{sRET2+1}], L_flush")
    e("s_waitcnt lgkmcnt(0)")
    stamp(3)
    e("s_barrier")
    e(f"s_bitcmp1_b32 s{sWAVE}, 0"); e("s_cselect_b32 exec_hi, 0, -1")
    for w in range(4): e(f"ds_read_b64 v[{20+2*w}:{21+2*w}], v237 offset:{PART + 768*w}")
    e(f"ds_read_b128 v[28:31], v238 offset:{STAT}"); e(f"ds_read_b128 v[32:35], v238 offset:{STAT+16}")
    e("s_mov_b32 vcc_lo, 0xaaaaaaaa"); e("s_mov_b32 vcc_hi, 0xaaaaaaaa")
    e(f"v_mov_b32 v43, s{sTAG}")
    e("s_waitcnt lgkmcnt(0)")
    e("v_max_f32 v36, v28, v30"); e("v_max3_f32 v36, v36, v32, v34")
    for w in range(4): e(f"v_sub_f32 v{28+2*w}, v{28+2*w}, v36")
    for w in range(4): e(f"v_exp_f32 v{28+2*w}, v{28+2*w}")
    e("v_mul_f32 v40, v20, v28"); e("v_mul_f32 v41, v21, v28"); e("v_mul_f32 v37, v29, v28")
    for w in range(1, 4):
        e(f"v_fmac_f32 v40, v{20+2*w}, v{28+2*w}"); e(f"v_fmac_f32 v41, v{21+2*w}, v{28+2*w}"); e(f"v_fmac_f32 v37, v{29+2*w}, v{28+2*w}")
    e("v_cndmask_b32 v42, v36, v37, vcc")
    e(f"buffer_store_dwordx4 v[40:43], v239, {srd(sWS)}, s13 offen {SCS}")
    a.label("L_pub_done")
    e("s_mov_b64 exec, -1")
    if DBGT: e("s_memrealtime s[68:69]")
    if WOLATE == 4:
        e("s_mov_b32 m0, s24"); e("s_mov_b32 s25, 0")
        for k in range(12):
            e(f"buffer_load_dwordx4 v254, {srd(sAUX2)}, s25 offen{nt} lds")
            if k < 11: e("s_add_u32 m0, m0, 1024"); e("s_add_u32 s25, s25, 1280")
    stamp()
    e(f"s_cmp_lt_u32 s{sR}, 3"); e("s_cbranch_scc1 L_final")
    def wo_reads():
        for i in range(12): e(f"ds_read_b128 v[{100+4*i}:{103+4*i}], v252 offset:{WOL + 1024*i}")
    e(f"s_cmp_eq_u32 s{sWAVE}, 3"); e("s_cbranch_scc1 L_wo_w3")
    lane_poll("L_p1s", [f"buffer_load_dwordx4 v[{60+4*p}:{63+4*p}], v250, {srd(sWS)}, s{4+p} offen {SCL}" for p in range(8)], [63+4*p for p in range(8)], 52)
    stamp(3)
    if PROF == 3: e(f"s_sub_u32 s97, {SPIN}, s{sCNT}")
    wo_reads()
    for p in range(8): e(f"v_mov_b32_dpp v{8+p}, v{62+4*p} quad_perm:[0,0,2,2] row_mask:0xf bank_mask:0xf")
    for p in range(8): e(f"v_mov_b32_dpp v{63+4*p}, v{62+4*p} quad_perm:[1,1,3,3] row_mask:0xf bank_mask:0xf")
    e("v_max3_f32 v36, v8, v9, v10"); e("v_max3_f32 v37, v11, v12, v13"); e("v_max3_f32 v36, v36, v14, v15"); e("v_max_f32 v36, v36, v37")
    for p in range(8): e(f"v_sub_f32 v{8+p}, v{8+p}, v36")
    for p in range(8): e(f"v_exp_f32 v{8+p}, v{8+p}")
    e("v_mul_f32 v40, v60, v8"); e("v_mul_f32 v41, v61, v8"); e("v_mul_f32 v37, v63, v8")
    for p in range(1, 8):
        e(f"v_fmac_f32 v37, v{63+4*p}, v{8+p}"); e(f"v_fmac_f32 v40, v{60+4*p}, v{8+p}"); e(f"v_fmac_f32 v41, v{61+4*p}, v{8+p}")
    e("v_rcp_f32 v37, v37")
    e("v_mul_f32 v40, v40, v37"); e("v_mul_f32 v41, v41, v37")
    e("v_cvt_pk_bf16_f32 v40, v40, v41")
    e(f"ds_write_b32 v251, v40 offset:{SEL}")
    e("s_branch L_wo_bar")
    a.label("L_wo_w3")
    e("s_waitcnt vmcnt(0)")
    wo_reads()
    a.label("L_wo_bar")
    for i in range(4): e(f"v_mov_b32 v{20+i}, 0")
    e("v_lshlrev_b32 v6, 3, v0"); e("v_lshlrev_b32 v7, 4, v0")
    e(f"v_mov_b32 v41, s{sTAG}"); e(f"v_mov_b32 v43, s{sTAG}")
    e("s_waitcnt lgkmcnt(0)")
    e("s_barrier")
    stamp()
    for p in range(3): e(f"ds_read_b64 v[{60+2*p}:{61+2*p}], v248 offset:{SEL + 8*p}")
    e("s_waitcnt lgkmcnt(0)")
    def aperm(i):
        A = 44 + 4 * (i & 1)
        for r in range(4):
            e(f"v_perm_b32 v{A+r}, v{60 + (i >> 1)}, v{60 + (i >> 1)}, v{(244 if i & 1 else 240) + r}")
    aperm(0)
    for i in range(12):
        if i < 11: aperm(i + 1)
        else: e("s_nop 1")
        A = 44 + 4 * (i & 1)
        e(f"v_mfma_f32_16x16x32_bf16 v[20:23], v[{A}:{A+3}], v[{100+4*i}:{103+4*i}], v[20:23]")
    e("s_nop 7")
    e(f"ds_write_b128 v249, v[20:23] offset:{YP}")
    e("s_waitcnt lgkmcnt(0)")
    e("s_barrier")
    e(f"s_cmp_ge_u32 s{sWAVE}, 2"); e("s_cbranch_scc1 L_fin")
    for w in range(4): e(f"ds_read_b64 v[{20+2*w}:{21+2*w}], v6 offset:{YP + 1024*w}")
    e("s_waitcnt lgkmcnt(0)")
    e("v_add_f32 v20, v20, v22"); e("v_add_f32 v21, v21, v23"); e("v_add_f32 v24, v24, v26"); e("v_add_f32 v25, v25, v27")
    e("v_add_f32 v40, v20, v24"); e("v_add_f32 v42, v21, v25")
    e(f"buffer_store_dwordx4 v[40:43], v7, {srd(sWS)}, s12 offen {SCS}")
    stamp(3)
    e("s_branch L_fin")
    a.label("L_final")
    e(f"s_cmp_lg_u32 s{sWAVE}, 0"); e("s_cbranch_scc1 L_fin")
    e(f"s_mul_i32 s14, s{sH}, 3"); e(f"s_add_u32 s14, s14, s{sR}")
    e("s_cmp_ge_u32 s14, 40"); e("s_cbranch_scc1 L_fin")
    e("s_cmp_ge_u32 s14, 20"); e("s_cselect_b32 s15, 1, 0")
    e("s_mul_i32 s16, s15, 20"); e("s_sub_u32 s16, s14, s16")
    e("s_lshr_b32 s17, s16, 2"); e("s_and_b32 s18, s16, 3")
    e("s_mul_i32 s19, s15, 640"); e("s_lshl_b32 s20, s16, 5"); e("s_add_u32 s19, s19, s20")
    e(f"v_and_b32 v7, 7, v{vLANE}"); e("v_lshlrev_b32 v4, 2, v7")
    e(f"v_lshrrev_b32 v5, 5, v{vLANE}"); e("v_lshl_add_u32 v4, v5, 1, v4")
    e(f"v_bfe_u32 v5, v{vLANE}, 4, 1"); e("v_add_u32 v4, v4, v5")
    e("v_add_u32 v4, s19, v4"); e("v_lshlrev_b32 v4, 1, v4")
    e(f"buffer_load_ushort v58, v4, {srd(sX)}, 0 offen")
    e(f"v_lshrrev_b32 v5, 3, v{vLANE}")
    e("v_mul_u32_u24 v6, 10240, v5"); e("v_lshl_add_u32 v6, v7, 5, v6")
    e("s_lshl_b32 s20, s17, 11"); e("s_lshl_b32 s21, s15, 10"); e("s_add_u32 s20, s20, s21"); e("s_lshl_b32 s21, s18, 8"); e("s_add_u32 s20, s20, s21")
    e(f"s_add_u32 s20, s20, {YBOX}")
    e("s_lshl_b32 s21, s19, 3"); e(f"s_add_u32 s21, s21, {FBOX}")
    for i in range(1, 4):
        e(f"s_add_u32 s{4+i}, s20, {81920*i}"); e(f"s_add_u32 s{8+i}, s21, {81920*i}")
    e("s_mov_b32 s4, s20"); e("s_mov_b32 s8, s21")
    def red4(base, n):
        for i in range(1, n):
            for c in range(4): e(f"v_add_f32 v{base+2*c}, v{base+2*c}, v{base+8*i+2*c}")
        swapred([(base, base+4), (base+2, base+6)], 5)
        swapred([(base, base+2)], 4)
        allreduce([base], "v_add_f32", None, [3])
    lds_ = []
    for i in range(3):
        lds_.append(f"buffer_load_dwordx4 v[{100+8*i}:{103+8*i}], v6, {srd(sWS)}, s{8+i} offen {SCL}")
        lds_.append(f"buffer_load_dwordx4 v[{104+8*i}:{107+8*i}], v6, {srd(sWS)}, s{8+i} offen offset:16 {SCL}")
    lane_poll("L_pf", lds_, [101 + 2*k for k in range(12)], 52)
    red4(100, 3)
    e("s_mov_b32 s22, 0xbfb8aa3b")
    e("v_cvt_pk_bf16_f32 v24, v100, v100"); e("v_and_b32 v24, 0xffff0000, v24")
    e("v_mul_f32 v25, s22, v24"); e("v_exp_f32 v25, v25"); e("v_add_f32 v25, 1.0, v25"); e("v_rcp_f32 v25, v25")
    e("v_mul_f32 v24, v24, v25")
    e("v_cvt_pk_bf16_f32 v24, v24, v24"); e("v_and_b32 v24, 0xffff0000, v24")
    e("v_lshlrev_b32 v58, 16, v58")
    stamp(3)
    lds_ = []
    for i in range(4):
        lds_.append(f"buffer_load_dwordx4 v[{60+8*i}:{63+8*i}], v6, {srd(sWS)}, s{4+i} offen {SCL}")
        lds_.append(f"buffer_load_dwordx4 v[{64+8*i}:{67+8*i}], v6, {srd(sWS)}, s{4+i} offen offset:16 {SCL}")
    lane_poll("L_p2", lds_, [61 + 2*k for k in range(16)], 52)
    stamp(3)
    if PROF == 3: e(f"s_sub_u32 s97, {SPIN}, s{sCNT}")
    red4(60, 4)
    e("v_cvt_pk_bf16_f32 v20, v60, v60"); e("v_and_b32 v20, 0xffff0000, v20")
    e("v_mul_f32 v20, v20, v24")
    e("v_cvt_pk_bf16_f32 v20, v20, v20"); e("v_and_b32 v20, 0xffff0000, v20")
    e("v_add_f32 v20, v58, v20")
    e("v_cvt_pk_bf16_f32 v20, v20, v20")
    e(f"buffer_store_short v20, v4, {srd(sOUT)}, 0 offen")
    e("s_cmp_lg_u32 s14, 0"); e("s_cbranch_scc1 L_fin")
    e("s_mov_b64 exec, 1")
    e(f"v_mov_b32 v21, s{sTAG}"); e("v_mov_b32 v22, 0")
    e(f"buffer_store_dword v21, v22, {srd(sWS)}, 0 offen")
    e("s_branch L_fin")

    a.label("L_ffn")
    e("s_setprio 3")
    e("s_sub_u32 s57, s2, 256")
    e(f"s_lshl_b32 s{sT0}, s57, 7")
    e(f"s_add_u32 s{sAUX}, s16, s{sT0}"); e(f"s_addc_u32 s{sAUX+1}, s17, 0"); e(f"s_mov_b32 s{sAUX+2}, {639*3072+128}"); e(f"s_mov_b32 s{sAUX+3}, 0x20000")
    e(f"s_add_u32 s{sAUX2}, s18, s{sT0}"); e(f"s_addc_u32 s{sAUX2+1}, s19, 0"); e(f"s_mov_b32 s{sAUX2+2}, {639*3072+128}"); e(f"s_mov_b32 s{sAUX2+3}, 0x20000")
    e(f"s_mul_i32 s{sT0}, s57, {64*1280}")
    e(f"s_add_u32 s{sK}, s20, s{sT0}"); e(f"s_addc_u32 s{sK+1}, s21, 0"); e(f"s_mov_b32 s{sK+2}, {64*1280}"); e(f"s_mov_b32 s{sK+3}, 0x20000")
    xloads()
    unit_addr(3072, 20, 2)
    e(f"v_lshrrev_b32 v3, 4, v{vLANE}"); e("v_lshlrev_b32 v3, 2, v3")
    e(f"s_lshl_b32 s{sT0}, s{sWAVE}, 4"); e(f"v_add_u32 v3, s{sT0}, v3")
    e("v_mul_u32_u24 v3, 1280, v3")
    e(f"v_and_b32 v7, 15, v{vLANE}"); e("v_lshl_add_u32 v3, v7, 4, v3")
    def fload(n):
        if n < 20:
            e(f"s_mov_b32 s{sT1}, {3072*n}")
            e(f"buffer_load_dwordx4 v[{60+4*n}:{63+4*n}], v2, {srd(sAUX)}, s{sT1} offen{nt}")
        elif n < 40:
            i = n - 20
            e(f"s_mov_b32 s{sT1}, {3072*i}")
            e(f"buffer_load_dwordx4 v[{140+4*i}:{143+4*i}], v2, {srd(sAUX2)}, s{sT1} offen{nt}")
        elif n < 60:
            k = n - 40; i, sg = k // 5, k % 5
            e(f"s_mov_b32 s{sT1}, {1280*i}")
            e(f"buffer_load_dwordx4 v[{60+4*k}:{63+4*k}], v3, {srd(sK)}, s{sT1} offen offset:{256*sg}{nt}")
    if FTHR:
        e("s_waitcnt vmcnt(0)")
        layernorm()
        xp_read(20)
        e("s_waitcnt lgkmcnt(0)")
        mktag()
        e(f"s_lshl_b32 s{sT0}, s57, 13"); e(f"s_add_u32 s{sT0}, s{sT0}, {QBOX}")
        e("v_mov_b32 v6, 0")
        e(f"s_mov_b32 s{sCNT}, {SPIN}")
        a.label("L_ft1")
        e(f"buffer_load_dwordx4 v[48:51], v6, {srd(sWS)}, s{sT0} offen {SCL}")
        e("s_waitcnt vmcnt(0)")
        e(f"v_cmp_ne_u32 vcc, s{sTAG}, v49")
        e("s_cbranch_vccz L_ft1_done")
        e("s_sleep 16")
        e(f"s_sub_u32 s{sCNT}, s{sCNT}, 1"); e(f"s_cmp_lg_u32 s{sCNT}, 0"); e("s_cbranch_scc1 L_ft1")
        a.label("L_ft1_done")
        e(f"s_lshl_b32 s{sT1}, s57, 8"); e(f"s_add_u32 s{sT1}, s{sT1}, {CNT}")
        e(f"s_add_u32 s{sCTR}, s26, s{sT1}"); e(f"s_addc_u32 s{sCTR+1}, s27, 0")
        e(f"s_mov_b32 s{sCNT}, {SPIN}")
        a.label("L_ft2")
        e(f"s_mov_b32 s{sN}, 0")
        e(f"s_atomic_add s{sN}, s[{sCTR}:{sCTR+1}], 0 glc")
        e("s_waitcnt lgkmcnt(0)")
        e(f"s_cmp_ge_u32 s{sN}, {FTHR}"); e("s_cbranch_scc1 L_ft2_done")
        e("s_sleep 16")
        e(f"s_sub_u32 s{sCNT}, s{sCNT}, 1"); e(f"s_cmp_lg_u32 s{sCNT}, 0"); e("s_cbranch_scc1 L_ft2")
        a.label("L_ft2_done")
        for n in range(FLA): fload(n)
    else:
        for n in range(FLA): fload(n)
        e(f"s_waitcnt vmcnt({FLA})")
        layernorm()
        xp_read(20)
    for i in range(32): e(f"v_mov_b32 v{20+i}, 0")
    e("s_waitcnt lgkmcnt(0)")
    for n in range(40):
        issued = min(60, n + FLA)
        e(f"s_waitcnt vmcnt({issued - n - 1})")
        i = n % 20
        sel_ops([XP + (i >> 1), XP + 10 + (i >> 1)], i & 1, 52)
        mac16((60 if n < 20 else 140) + 4*i, 20 if n < 20 else 36, 52)
        if n + FLA < 60: fload(n + FLA)
    unit_reduce(20, QP)
    unit_reduce(36, UP)
    for n in range(40 + FLA, 60): fload(n)
    e("s_waitcnt lgkmcnt(0)")
    e("s_barrier")
    e(f"s_cmp_ge_u32 s{sWAVE}, 2"); e("s_cbranch_scc1 L_ffn_h")
    e("v_lshlrev_b32 v6, 2, v0")
    for w in range(4):
        e(f"ds_read_b32 v{20+w}, v6 offset:{QP + 512*w}"); e(f"ds_read_b32 v{24+w}, v6 offset:{UP + 512*w}")
    e("s_waitcnt lgkmcnt(0)")
    e("v_add_f32 v20, v20, v21"); e("v_add_f32 v22, v22, v23"); e("v_add_f32 v24, v24, v25"); e("v_add_f32 v26, v26, v27")
    e("v_add_f32 v20, v20, v22"); e("v_add_f32 v24, v24, v26")
    e("v_cvt_pk_bf16_f32 v28, v20, v24")
    e("v_lshlrev_b32 v20, 16, v28"); e("v_and_b32 v24, 0xffff0000, v28")
    e("v_mul_f32 v25, v20, v20"); e("v_mul_f32 v25, v25, v20")
    e("s_mov_b32 s22, 0x3d372713"); e("v_fma_f32 v25, v25, s22, v20")
    e("s_mov_b32 s22, 0xc0135761"); e("v_mul_f32 v25, s22, v25")
    e("v_exp_f32 v25, v25"); e("v_add_f32 v25, 1.0, v25"); e("v_rcp_f32 v25, v25")
    e("v_mul_f32 v20, v20, v25")
    e("v_cvt_pk_bf16_f32 v20, v20, v20"); e("v_and_b32 v20, 0xffff0000, v20")
    e("v_mul_f32 v20, v20, v24")
    e("v_cvt_pk_bf16_f32 v20, v20, v20")
    e("v_lshlrev_b32 v6, 1, v0")
    e(f"ds_write_b16 v6, v20 offset:{H}")
    e("s_waitcnt lgkmcnt(0)")
    a.label("L_ffn_h")
    e("s_barrier")
    e(f"v_lshrrev_b32 v6, 4, v{vLANE}"); e("v_lshlrev_b32 v6, 3, v6")
    e(f"s_lshl_b32 s{sT0}, s{sWAVE}, 5"); e(f"v_add_u32 v6, s{sT0}, v6")
    e(f"ds_read_b64 v[56:57], v6 offset:{H}"); e(f"ds_read_b64 v[58:59], v6 offset:{H+128}")
    for i in range(80): e(f"v_mov_b32 v{140+i}, 0")
    e("s_waitcnt vmcnt(0) lgkmcnt(0)")
    for i in range(4):
        sel_ops([56 + (i >> 1), 58 + (i >> 1)], i & 1, 52)
        for sg in range(5):
            mac16(60 + 20*i + 4*sg, 140 + 16*sg, 52)
    for sg in range(5):
        A = 140 + 16*sg
        swapred([(A+i, A+8+i) for i in range(8)], 5)
        swapred([(A+i, A+4+i) for i in range(4)], 4)
    e(f"v_lshrrev_b32 v6, 5, v{vLANE}"); e("v_mul_u32_u24 v6, 2560, v6")
    e(f"v_and_b32 v7, 15, v{vLANE}"); e("v_lshl_add_u32 v6, v7, 5, v6")
    e(f"v_bfe_u32 v7, v{vLANE}, 4, 1"); e("v_lshl_add_u32 v6, v7, 4, v6")
    e(f"s_mul_i32 s{sT0}, s{sWAVE}, 5120"); e(f"v_add_u32 v6, s{sT0}, v6")
    for sg in range(5): e(f"ds_write_b128 v6, v[{140+16*sg}:{143+16*sg}] offset:{DP + 512*sg}")
    e("s_waitcnt lgkmcnt(0)")
    e("s_barrier")
    mktag()
    e(f"s_mul_i32 s{sT0}, s57, 10240"); e(f"s_add_u32 s{sT0}, s{sT0}, {FBOX}")
    e(f"v_mov_b32 v41, s{sTAG}"); e(f"v_mov_b32 v43, s{sTAG}")
    for q in range(3):
        if q == 2:
            e(f"s_cmp_ge_u32 s{sWAVE}, 2"); e("s_cbranch_scc1 L_fin")
        e(f"v_add_u32 v5, {256*q}, v0"); e("v_lshlrev_b32 v6, 3, v5")
        for w in range(4): e(f"ds_read_b64 v[{20+2*w}:{21+2*w}], v6 offset:{DP + 5120*w}")
        e("s_waitcnt lgkmcnt(0)")
        e("v_add_f32 v20, v20, v22"); e("v_add_f32 v21, v21, v23"); e("v_add_f32 v24, v24, v26"); e("v_add_f32 v25, v25, v27")
        e("v_add_f32 v40, v20, v24"); e("v_add_f32 v42, v21, v25")
        e("v_lshlrev_b32 v6, 4, v5")
        e(f"buffer_store_dwordx4 v[40:43], v6, {srd(sWS)}, s{sT0} offen {SCS}")
        e("s_nop 1")

    a.label("L_fin")
    if DBGT:
        e("s_mov_b64 exec, -1")
        e(f"s_cmp_lg_u32 s{sWAVE}, 0"); e("s_cbranch_scc1 L_end")
        e("s_memrealtime s[100:101]")
        e("s_load_dwordx2 s[4:5], s[0:1], 80")
        e("s_waitcnt lgkmcnt(0)")
        e("s_mov_b32 s6, 256"); e("s_mov_b32 s7, 0x20000")
        e("s_not_b32 s98, s98")
        e("v_mov_b32 v20, s98"); e("v_mov_b32 v21, s100"); e("v_mov_b32 v6, 0")
        e("s_mov_b64 exec, 1")
        e("buffer_atomic_umax v20, v6, s[4:7], 0 offen")
        e("buffer_atomic_umax v21, v6, s[4:7], 0 offen offset:4")
        e("s_cmp_ge_u32 s2, 256"); e("s_cbranch_scc0 L_dbg_att")
        e("buffer_atomic_umax v21, v6, s[4:7], 0 offen offset:8")
        e("s_branch L_end")
        a.label("L_dbg_att")
        e("v_mov_b32 v22, s64"); e("v_mov_b32 v23, s66"); e("s_not_b32 s64, s64"); e("v_mov_b32 v24, s64"); e("v_mov_b32 v25, s68")
        e("buffer_atomic_umax v22, v6, s[4:7], 0 offen offset:12")
        e("buffer_atomic_umax v23, v6, s[4:7], 0 offen offset:16")
        e("buffer_atomic_umax v24, v6, s[4:7], 0 offen offset:20")
        e("buffer_atomic_umax v25, v6, s[4:7], 0 offen offset:24")
    if PROF:
        stamp()
        n = prof_n[0]
        e("s_mov_b64 exec, -1")
        e(f"s_cmp_lg_u32 s{sWAVE}, 0"); e("s_cbranch_scc1 L_end")
        e("s_waitcnt lgkmcnt(0)")
        e("s_getreg_b32 s14, hwreg(HW_REG_XCC_ID)")
        e(f"s_lshl_b32 s{sT0}, s2, 7"); e(f"s_add_u32 s{sT0}, s{sT0}, {PROFO}")
        e("v_mov_b32 v6, 0")
        e("s_mov_b64 exec, 1")
        for i in range(n):
            e(f"v_mov_b32 v20, s{SP[i]}"); e(f"v_mov_b32 v21, s{SP[i]+1}")
            e(f"buffer_store_dwordx2 v[20:21], v6, {srd(sWS)}, s{sT0} offen offset:{8*i}")
            e("s_nop 1")
        e("v_mov_b32 v20, s14"); e("v_mov_b32 v21, s97")
        e(f"buffer_store_dwordx2 v[20:21], v6, {srd(sWS)}, s{sT0} offen offset:120")
    a.label("L_end")
    e("s_endpgm")
    body = fix_hazards([l for l in a.L if l is not None])
    out += body
    out += ['.section .rodata,"a"', ".p2align 6", f".amdhsa_kernel {KNAME}", "  .amdhsa_next_free_vgpr 256", "  .amdhsa_next_free_sgpr 102",
            "  .amdhsa_accum_offset 256", "  .amdhsa_group_segment_fixed_size 0", "  .amdhsa_kernarg_size 96", "  .amdhsa_user_sgpr_count 2",
            "  .amdhsa_user_sgpr_kernarg_segment_ptr 1", "  .amdhsa_system_sgpr_workgroup_id_x 1", ".end_amdhsa_kernel"]
    return "\n".join(out) + "\n"

WOLATE_DEFAULT = 1
if __name__ == "__main__":
    import json
    kw = json.loads(sys.argv[2]) if len(sys.argv) > 2 else {}
    open(sys.argv[1], "w").write(gen(**kw))

LAST = 5
```

```python
import sys
sys.path.insert(0, "gen")
from asmlib import Asm, fix_hazards

KNAME = "recurrent_scan__mha_block_cached__geglu_ffn__decode_kernel"

XN, QP, UP, Q, PART, STAT, SEL, YP, RED, H = 0, 2560, 4608, 6656, 7424, 13568, 13696, 14464, 18560, 19584
WOL = 19968
DP = WOL
LDS_BYTES = WOL + 49152
CNT, QBOX, OBOX, YBOX, FBOX, PROFO = 0x1000, 0x4000, 0x50000, 0x150000, 0x1A0000, 0x200000
WS_REC = 0x400000
NFFN = 24
FFN_LAST = 1
NWG = NFFN + 256
SPIN = 1 << 17

sK, sV, sAUX, sWS, sX, sOUT, sAUX2 = 28, 32, 36, 40, 44, 48, 52
sWAVE, sH, sR, sTAG, sE, sT0, sT1, sCNT = 56, 57, 58, 60, 61, 62, 63, 3
sTILE = 80
sN, sNEXT = 86, 87
sRET1, sRET2, sLIM, sPOFF, sPH, sPROD = 84, 22, 59, 21, 20, 19
sCTR = 88
vLANE, vKV, vOFF = 1, 3, 2
RING = 60
vQ0, vQ1 = 8, 204
vACC0, vM0, vL0 = 20, 44, 45
vACC1, vM1, vL1 = 216, 240, 241
WQ = 156
XP = 236
KVREC = 50331648 + 1572864

def srd(s): return f"s[{s}:{s+3}]"

def gen(PROF=0, NT=1, FLA=16, STG=2, SLP=0, EARLY=1, DL=2, NS=6, STATIC=0, CH1=1, SCS='sc0 sc1', SCL='sc0 sc1', DBGT=0, MF=1, PUB1=1, PRE=4, WOLATE=3, THR=0, JIT=0, FTHR=0, W0PRE=1, PC=1, ZS=0, ZR=69, P1S=1, BOP=1, ROT=112, BX=0):
    a = Asm(); e = a.e
    nt = " nt" if NT else ""
    prof_n = [0]
    SP = [64, 66, 68, 70, 72, 74, 76, 78, 90, 92, 98, 100, 4, 6]
    def stamp(level=1):
        if (PROF and level == 1) or PROF == level:
            i = prof_n[0]; prof_n[0] += 1
            e(f"s_memrealtime s[{SP[i]}:{SP[i]+1}]")
    def allreduce(regs, op, tmps, bits):
        for bit in bits:
            if bit in (0, 1, 2, 3, "m"):
                mod = {0: "quad_perm:[1,0,3,2]", 1: "quad_perm:[2,3,0,1]", 2: "row_half_mirror", 3: "row_ror:8", "m": "row_mirror"}[bit]
                for r in regs:
                    e(f"{op}_dpp v{r}, v{r}, v{r} {mod} row_mask:0xf bank_mask:0xf")
            else:
                sw = "v_permlane16_swap_b32" if bit == 4 else "v_permlane32_swap_b32"
                for r, t in zip(regs, tmps): e(f"v_mov_b32 v{t}, v{r}")
                for r, t in zip(regs, tmps): e(f"{sw} v{r}, v{t}")
                for r, t in zip(regs, tmps): e(f"{op} v{r}, v{r}, v{t}")
    def swapred(pairs, bit):
        sw = "v_permlane16_swap_b32" if bit == 4 else "v_permlane32_swap_b32"
        for x, y in pairs: e(f"{sw} v{x}, v{y}")
        for x, y in pairs: e(f"v_add_f32 v{x}, v{x}, v{y}")
    def mktag():
        e(f"s_mul_i32 s{sTAG}, s{sE}, 0x9E3779B1"); e(f"s_add_u32 s{sTAG}, s{sTAG}, 0x7F4A7C15")
    def lane_poll(name, loads, tagregs, tmp):
        e(f"s_mov_b32 s{sCNT}, {SPIN}")
        a.label(name)
        for l in loads: e(l)
        e("s_waitcnt vmcnt(0)")
        e(f"v_xor_b32 v{tmp}, s{sTAG}, v{tagregs[0]}")
        for t in tagregs[1:]:
            if BOP:
                e(f"v_bitop3_b32 v{tmp}, v{tmp}, v{t}, s{sTAG} bitop3:0xf6")
            else:
                e(f"v_xor_b32 v{tmp+1}, s{sTAG}, v{t}")
                e(f"v_or_b32 v{tmp}, v{tmp}, v{tmp+1}")
        e(f"v_cmp_ne_u32 vcc, 0, v{tmp}")
        e("s_mov_b64 exec, vcc")
        e(f"s_cbranch_execz {name}_done")
        if SLP: e(f"s_sleep {SLP}")
        e(f"s_sub_u32 s{sCNT}, s{sCNT}, 1")
        e(f"s_cmp_lg_u32 s{sCNT}, 0")
        e(f"s_cbranch_scc1 {name}")
        a.label(name + "_done")
        e("s_mov_b64 exec, -1")

    def layernorm():
        D_ = [[8, 9, 10, 11, 12], [14, 15, 16, 17, 18]]
        X = [[20 + i for i in range(10)], [30 + i for i in range(10)]]
        for b in range(2):
            for i in range(5):
                e(f"v_lshlrev_b32 v{X[b][2*i]}, 16, v{D_[b][i]}")
                e(f"v_and_b32 v{X[b][2*i+1]}, 0xffff0000, v{D_[b][i]}")
        for b in range(2):
            e(f"v_add_f32 v{40+b}, v{X[b][0]}, v{X[b][1]}")
        for i in range(2, 10):
            for b in range(2): e(f"v_add_f32 v{40+b}, v{40+b}, v{X[b][i]}")
        allreduce([40, 41], "v_add_f32", [46, 47], [0, 1, 2, "m", 4, 5])
        e(f"s_mov_b32 s{sT0}, 0x3acccccd")
        for b in range(2): e(f"v_mul_f32 v{40+b}, s{sT0}, v{40+b}")
        for b in range(2):
            e(f"v_sub_f32 v{48+b}, v{X[b][0]}, v{40+b}")
        for b in range(2):
            e(f"v_mul_f32 v{42+b}, v{48+b}, v{48+b}")
        for i in range(1, 10):
            for b in range(2): e(f"v_sub_f32 v{48+2*(i&1)+b}, v{X[b][i]}, v{40+b}")
            for b in range(2): e(f"v_fmac_f32 v{42+b}, v{48+2*(i&1)+b}, v{48+2*(i&1)+b}")
        allreduce([42, 43], "v_add_f32", [46, 47], [0, 1, 2, "m", 4, 5])
        for b in range(2): e(f"v_mul_f32 v{42+b}, s{sT0}, v{42+b}")
        e("v_cvt_pk_bf16_f32 v46, v40, v41")
        e("v_cvt_pk_bf16_f32 v47, v42, v43")
        e("v_lshlrev_b32 v40, 16, v46"); e("v_and_b32 v41, 0xffff0000, v46")
        e("v_lshlrev_b32 v42, 16, v47"); e("v_and_b32 v43, 0xffff0000, v47")
        e("v_add_f32 v42, 0x3727c5ac, v42"); e("v_add_f32 v43, 0x3727c5ac, v43")
        e("v_cvt_pk_bf16_f32 v46, v42, v43")
        e("v_lshlrev_b32 v42, 16, v46"); e("v_and_b32 v43, 0xffff0000, v46")
        e("v_sqrt_f32 v42, v42"); e("v_sqrt_f32 v43, v43")
        e("v_cvt_pk_bf16_f32 v46, v42, v43")
        e("v_lshlrev_b32 v42, 16, v46"); e("v_and_b32 v43, 0xffff0000, v46")
        e("v_rcp_f32 v42, v42"); e("v_rcp_f32 v43, v43")
        e(f"v_mul_u32_u24 v5, 20, v{vLANE}")
        for i in range(5):
            for b in range(2):
                x0, x1 = X[b][2*i], X[b][2*i+1]
                e(f"v_sub_f32 v{x0}, v{x0}, v{40+b}"); e(f"v_sub_f32 v{x1}, v{x1}, v{40+b}")
            for b in range(2):
                x0, x1 = X[b][2*i], X[b][2*i+1]
                e(f"v_cvt_pk_bf16_f32 v{46+b}, v{x0}, v{x1}")
            for b in range(2):
                x0, x1 = X[b][2*i], X[b][2*i+1]
                e(f"v_lshlrev_b32 v{x0}, 16, v{46+b}"); e(f"v_and_b32 v{x1}, 0xffff0000, v{46+b}")
            for b in range(2):
                x0, x1 = X[b][2*i], X[b][2*i+1]
                e(f"v_mul_f32 v{x0}, v{x0}, v{42+b}"); e(f"v_mul_f32 v{x1}, v{x1}, v{42+b}")
            for b in range(2):
                x0, x1 = X[b][2*i], X[b][2*i+1]
                e(f"v_cvt_pk_bf16_f32 v{x0}, v{x0}, v{x1}")
            for b in range(2):
                e(f"ds_write_b32 v5, v{X[b][2*i]} offset:{XN + 1280*b + 4*i}")

    def xp_read(nrows, base_sgpr=None):
        e(f"v_lshrrev_b32 v6, 3, v{vLANE}")
        e(f"v_mul_u32_u24 v6, {nrows*8}, v6")
        e(f"s_mul_i32 s{sT0}, s{sWAVE}, {nrows*2}")
        if base_sgpr is not None: e(f"s_add_u32 s{sT0}, s{sT0}, s{base_sgpr}")
        e(f"v_add_u32 v6, s{sT0}, v6")
        e("s_waitcnt lgkmcnt(0)")
        n = nrows // 2
        for b in range(2):
            for p in range(n):
                e(f"ds_read_b32 v{XP+10*b+p}, v6 offset:{XN + 1280*b + 4*p}")

    def xloads():
        e(f"v_mul_u32_u24 v4, 20, v{vLANE}")
        e(f"buffer_load_dwordx4 v[8:11], v4, {srd(sX)}, 0 offen")
        e(f"buffer_load_dword v12, v4, {srd(sX)}, 0 offen offset:16")
        e(f"buffer_load_dwordx4 v[14:17], v4, {srd(sX)}, 0 offen offset:1280")
        e(f"buffer_load_dword v18, v4, {srd(sX)}, 0 offen offset:1296")

    def unit_addr(RS, nrows, vdst):
        e(f"v_lshrrev_b32 v6, 3, v{vLANE}")
        e(f"v_mul_u32_u24 v6, {nrows*4}, v6")
        e(f"s_mul_i32 s{sT0}, s{sWAVE}, {nrows}")
        e(f"v_add_u32 v6, s{sT0}, v6")
        e(f"s_mov_b32 s{sT0}, {RS}")
        e(f"v_mul_lo_u32 v6, v6, s{sT0}")
        e(f"v_and_b32 v7, 7, v{vLANE}")
        e(f"v_lshl_add_u32 v{vdst}, v7, 4, v6")

    def sel_ops(src, odd, d):
        for b in range(2):
            if not odd:
                e(f"v_and_b32 v{d+2*b}, 0xffff, v{src[b]}")
                e(f"v_lshlrev_b32 v{d+2*b+1}, 16, v{src[b]}")
            else:
                e(f"v_lshrrev_b32 v{d+2*b}, 16, v{src[b]}")
                e(f"v_and_b32 v{d+2*b+1}, 0xffff0000, v{src[b]}")

    def mac16(W, A, sel):
        for dd in range(4):
            for b in range(2):
                e(f"v_dot2c_f32_bf16 v{A+8*b+2*dd}, v{W+dd}, v{sel+2*b}")
                e(f"v_dot2c_f32_bf16 v{A+8*b+2*dd+1}, v{W+dd}, v{sel+2*b+1}")

    def unit_reduce(A, ldsbase):
        swapred([(A+i, A+8+i) for i in range(8)], 5)
        swapred([(A+i, A+4+i) for i in range(4)], 4)
        allreduce([A, A+1, A+2, A+3], "v_add_f32", None, [3])
        e(f"v_lshrrev_b32 v6, 5, v{vLANE}"); e("v_lshlrev_b32 v6, 8, v6")
        e(f"v_and_b32 v7, 7, v{vLANE}"); e("v_lshl_add_u32 v6, v7, 5, v6")
        e(f"v_bfe_u32 v7, v{vLANE}, 4, 1"); e("v_lshl_add_u32 v6, v7, 4, v6")
        e(f"s_lshl_b32 s{sT0}, s{sWAVE}, 9")
        e(f"v_add_u32 v6, s{sT0}, v6")
        e(f"ds_write_b128 v6, v[{A}:{A+3}] offset:{ldsbase}")

    def kv_loads(slot, t):
        e(f"s_lshr_b32 s{sT0}, s{t}, 9")
        if BX: e(f"s_xor_b32 s{sT0}, s{sT0}, s92"); e(f"s_and_b32 s{sT0}, s{sT0}, 1")
        e(f"s_mul_i32 s{sT0}, s{sT0}, 50331648")
        if ROT:
            e(f"s_add_u32 s{sT1}, s{t}, s93"); e(f"s_and_b32 s{sT1}, s{sT1}, 511"); e(f"s_mul_i32 s{sT1}, s{sT1}, 3072")
        else:
            e(f"s_and_b32 s{sT1}, s{t}, 511"); e(f"s_mul_i32 s{sT1}, s{sT1}, 3072")
        e(f"s_add_u32 s{sT0}, s{sT0}, s{sT1}")
        e(f"s_cmp_ge_u32 s{t}, 1024"); e(f"s_cselect_b32 s{sT0}, 0xf0000000, s{sT0}")
        e(f"v_add_u32 v{vOFF}, s{sT0}, v{vKV}")
        b = RING + 24 * slot
        for s in range(3): e(f"buffer_load_dwordx4 v[{b+4*s}:{b+4*s+3}], v{vOFF}, {srd(sK)}, 0 offen offset:{128*s}{nt}")
        for s in range(3): e(f"buffer_load_dwordx4 v[{b+12+4*s}:{b+12+4*s+3}], v{vOFF}, {srd(sV)}, 0 offen offset:{128*s}{nt}")

    def wo_dma(lab):
        e(f"s_cmp_lt_u32 s{sR}, 3"); e(f"s_cbranch_scc1 {lab}")
        e(f"s_mul_i32 s{sT0}, s{sH}, {192*1280}"); e(f"s_sub_u32 s{sT1}, s{sR}, 3"); e(f"s_lshl_b32 s{sT1}, s{sT1}, 8")
        e(f"s_add_u32 s{sT0}, s{sT0}, s{sT1}")
        e(f"s_add_u32 s{sAUX2}, s12, s{sT0}"); e(f"s_addc_u32 s{sAUX2+1}, s13, 0")
        e(f"s_mov_b32 s{sAUX2+2}, {191*1280+256}"); e(f"s_mov_b32 s{sAUX2+3}, 0x20000")
        e(f"v_lshrrev_b32 v6, 4, v{vLANE}"); e("v_mul_u32_u24 v6, 12, v6")
        e(f"s_mul_i32 s{sT0}, s{sWAVE}, 48"); e(f"v_add_u32 v6, s{sT0}, v6")
        e("v_mul_u32_u24 v6, 1280, v6")
        e(f"v_and_b32 v7, 15, v{vLANE}"); e("v_lshl_add_u32 v6, v7, 4, v6")
        e(f"s_mov_b32 s{sT1}, 0")
        e(f"s_mul_i32 s{sT0}, s{sWAVE}, 12288"); e(f"s_add_u32 s{sT0}, s{sT0}, {WOL}")
        for i in range(12):
            e(f"s_mov_b32 m0, s{sT0}"); e("s_nop 0")
            e(f"buffer_load_dwordx4 v6, {srd(sAUX2)}, s{sT1} offen{nt} lds")
            if i < 11: e(f"s_add_u32 s{sT1}, s{sT1}, 1280"); e(f"s_add_u32 s{sT0}, s{sT0}, 1024")
        a.label(lab)

    hdr = open("recurrent_scan__mha_block_cached__geglu_ffn__decode.s.ref").read().split("\n")
    out = []
    for l in hdr:
        if not l.startswith(";"): break
        if "@launch" in l or "Override" in l or "grid=ceil" in l: continue
        out.append(l)
    out.append(f"; @launch grid=({NWG},1,1) block=(256,1,1) lds={LDS_BYTES}")
    out += [
        "; One persistent launch, 256 attention workgroups + 24 FFN workgroups (all co-resident).",
        ";  - q projection: 24 workgroups per XCD-slot compute 64-column x 320-row slices of xn@wq and publish partial sums.",
        ";  - attention: the 8 workgroups of a head share its 2x4096 keys as 1024 tiles of 8 keys, handed out by a per-head",
        ";    atomic counter; every wave keeps an online-softmax state per 8-lane group (true running max).",
        ";  - per-workgroup partials (m, l, o) -> 5 workgroups per head combine them and multiply by a 128-column wo slice",
        ";    (MFMA) -> 40 final waves sum over heads, apply silu(FFN) and write the output.",
        ";  - hand-offs between workgroups: write-through stores of {data, tag} granules, polled with L1-bypassing loads;",
        ";    tag = hash(epoch word found in d_ws), the epoch word is advanced at the end of the launch; all spins are bounded.",
        "; Generated by a Python script (register allocation, unrolling and hazard padding are the script's).",
    ]
    out += ['.amdgcn_target "amdgcn-amd-amdhsa--gfx950"', ".text", f".globl {KNAME}", ".p2align 8", f".type {KNAME},@function", f"{KNAME}:"]

    e(f"s_cmp_ge_u32 s2, {NWG}"); e("s_cbranch_scc1 L_end")
    stamp()
    if DBGT: e("s_memrealtime s[98:99]")
    e("s_load_dwordx8 s[4:11], s[0:1], 0")
    e("s_load_dwordx2 s[12:13], s[0:1], 32")
    e("s_load_dwordx4 s[24:27], s[0:1], 80")
    e("s_load_dwordx4 s[16:19], s[0:1], 48")
    e("s_load_dwordx4 s[20:23], s[0:1], 64")
    e(f"v_and_b32 v{vLANE}, 63, v0")
    e("v_lshrrev_b32 v2, 6, v0")
    e(f"v_readfirstlane_b32 s{sWAVE}, v2")
    e(f"s_and_b32 s{sR}, s2, 7")
    e(f"s_lshr_b32 s{sH}, s2, 3")
    e(f"s_lshl_b32 s{sT1}, s{sR}, 2"); e(f"s_add_u32 s{sH}, s{sH}, s{sT1}"); e(f"s_and_b32 s{sH}, s{sH}, 31")
    e(f"s_lshr_b32 s{sT1}, s{sH}, 2"); e(f"s_sub_u32 s{sR}, s{sR}, s{sT1}"); e(f"s_add_u32 s{sR}, s{sR}, 7"); e(f"s_and_b32 s{sR}, s{sR}, 7")
    e("s_lshr_b32 s94, s2, 3"); e("s_sub_u32 s94, s94, 3")
    e("s_mul_i32 s95, s94, 43"); e("s_lshr_b32 s95, s95, 8")
    e("s_and_b32 s96, s2, 7"); e("s_lshl_b32 s96, s96, 2"); e("s_add_u32 s96, s96, s95")
    e("s_mul_i32 s95, s95, 6"); e("s_sub_u32 s95, s94, s95")
    e("s_cmp_ge_u32 s95, 3"); e("s_cselect_b32 s15, 1, 0")
    e("s_mul_i32 s14, s15, 3"); e("s_sub_u32 s14, s95, s14")
    e(f"s_mov_b32 s{sX+2}, 2560"); e(f"s_mov_b32 s{sX+3}, 0x20000")
    e(f"s_mov_b32 s{sWS+2}, {WS_REC}"); e(f"s_mov_b32 s{sWS+3}, 0x20000")
    e(f"s_mov_b32 s{sOUT+2}, 2560"); e(f"s_mov_b32 s{sOUT+3}, 0x20000")
    e(f"v_mul_u32_u24 v4, 20, v{vLANE}")
    e("s_waitcnt lgkmcnt(0)")
    stamp(2)
    e(f"s_mov_b32 s{sX}, s4"); e(f"s_mov_b32 s{sX+1}, s5")
    e(f"s_load_dword s{sE}, s[26:27], 0")
    e(f"s_mov_b32 s{sWS}, s26"); e(f"s_mov_b32 s{sWS+1}, s27")
    e(f"s_mov_b32 s{sOUT}, s22"); e(f"s_mov_b32 s{sOUT+1}, s23")
    e(f"s_cmp_ge_u32 s2, 256"); e("s_cbranch_scc1 L_ffn")

    e("s_cmp_ge_u32 s94, 24"); e("s_cbranch_scc1 L_setup")
    xloads()
    e(f"s_mul_i32 s{sT0}, s96, 384"); e(f"s_lshl_b32 s{sT1}, s14, 7"); e(f"s_add_u32 s{sT0}, s{sT0}, s{sT1}")
    e(f"s_mul_i32 s{sT1}, s15, {320*12288}"); e(f"s_add_u32 s{sT0}, s{sT0}, s{sT1}")
    e(f"s_add_u32 s{sAUX}, s10, s{sT0}"); e(f"s_addc_u32 s{sAUX+1}, s11, 0")
    e(f"s_mov_b32 s{sAUX+2}, {319*12288+128}"); e(f"s_mov_b32 s{sAUX+3}, 0x20000")
    unit_addr(12288, 10, 4)
    e(f"s_mov_b32 s{sT1}, 0")
    for i in range(10):
        e(f"buffer_load_dwordx4 v[{WQ+4*i}:{WQ+4*i+3}], v4, {srd(sAUX)}, s{sT1} offen{nt}")
        if i < 9: e(f"s_add_u32 s{sT1}, s{sT1}, 12288")
    a.label("L_setup")
    if BX: e(f"s_and_b32 s92, s{sH}, 1")
    if ROT and ROT < 1000: e(f"s_mul_i32 s93, s{sH}, {ROT}")
    if ROT >= 1000:
        e(f"s_add_u32 s93, s{sH}, {ROT}"); e(f"s_mul_i32 s93, s93, 0x9E3779B1"); e("s_lshr_b32 s93, s93, 23")
    e(f"s_mul_i32 s{sT1}, s{sH}, 1572864")
    e(f"s_add_u32 s{sK}, s6, s{sT1}"); e(f"s_addc_u32 s{sK+1}, s7, 0"); e(f"s_mov_b32 s{sK+3}, 0x20000")
    e(f"s_add_u32 s{sV}, s8, s{sT1}"); e(f"s_addc_u32 s{sV+1}, s9, 0"); e(f"s_mov_b32 s{sV+3}, 0x20000")
    if W0PRE:
        e(f"s_mov_b32 s{sK+2}, {KVREC}"); e(f"s_mov_b32 s{sV+2}, {KVREC}")
    else:
        e(f"s_cmp_eq_u32 s{sWAVE}, 0")
        e(f"s_cselect_b32 s{sK+2}, 0, {KVREC}"); e(f"s_cselect_b32 s{sV+2}, 0, {KVREC}")
    e(f"s_lshl_b32 s{sT1}, s{sH}, 8"); e(f"s_add_u32 s{sT1}, s{sT1}, {CNT}")
    e(f"s_add_u32 s{sCTR}, s26, s{sT1}"); e(f"s_addc_u32 s{sCTR+1}, s27, 0")
    e(f"v_lshrrev_b32 v6, 3, v{vLANE}"); e(f"v_mul_u32_u24 v{vKV}, 384, v6")
    e(f"v_and_b32 v7, 7, v{vLANE}"); e(f"v_lshl_add_u32 v{vKV}, v7, 4, v{vKV}")
    e(f"s_lshl_b32 s{sT0}, s{sR}, 2"); e(f"s_add_u32 s{sT0}, s{sT0}, s{sWAVE}"); e(f"s_mul_i32 s{sT0}, s{sT0}, {NS}")
    for d in range(NS): e(f"s_add_u32 s{sTILE+d}, s{sT0}, {d}")
    e(f"s_or_b32 s{sT0}, s95, s{sWAVE}"); e(f"s_cmp_lg_u32 s{sT0}, 0"); e("s_cbranch_scc1 L_noinit")
    e("s_cmp_ge_u32 s94, 24"); e("s_cbranch_scc1 L_noinit")
    e(f"s_lshl_b32 s{sT1}, s96, 8"); e(f"s_add_u32 s{sT1}, s{sT1}, {CNT}")
    e(f"s_add_u32 s16, s26, s{sT1}"); e(f"s_addc_u32 s17, s27, 0")
    e(f"s_mov_b32 s{sN}, {32*NS}")
    e(f"s_atomic_swap s{sN}, s[16:17], 0 glc")
    a.label("L_noinit")
    e("s_cmp_ge_u32 s94, 24"); e("s_cbranch_scc1 L_nowq")
    stamp(2)
    e("s_waitcnt vmcnt(10)")
    stamp(2)
    layernorm()
    e(f"s_mul_i32 s{sT1}, s15, 640")
    xp_read(10, sT1)
    for d in range(EARLY): kv_loads(d, sTILE + d)
    for i in range(16): e(f"v_mov_b32 v{20+i}, 0")
    e("s_waitcnt lgkmcnt(0)")
    stamp(2)
    for i in range(10):
        e(f"s_waitcnt vmcnt({6*EARLY + 9 - i})")
        sel_ops([XP + (i >> 1), XP + 10 + (i >> 1)], i & 1, 52)
        mac16(WQ + 4*i, 20, 52)
    stamp(2)
    unit_reduce(20, QP)
    e("s_waitcnt lgkmcnt(0)")
    e("s_barrier")
    stamp(2)
    e(f"s_cmp_lg_u32 s{sWAVE}, 0"); e("s_cbranch_scc1 L_kvrest0")
    e(f"v_lshlrev_b32 v6, 3, v{vLANE}")
    for w in range(4): e(f"ds_read_b64 v[{20+2*w}:{21+2*w}], v6 offset:{QP + 512*w}")
    mktag()
    e(f"v_lshrrev_b32 v6, 5, v{vLANE}"); e("v_mul_u32_u24 v6, 3072, v6")
    e(f"v_and_b32 v7, 31, v{vLANE}"); e("v_lshl_add_u32 v6, v7, 5, v6")
    e(f"s_lshl_b32 s{sT0}, s96, 13"); e(f"s_lshl_b32 s{sT1}, s14, 10"); e(f"s_add_u32 s{sT0}, s{sT0}, s{sT1}")
    e(f"s_lshl_b32 s{sT1}, s15, 4"); e(f"s_add_u32 s{sT0}, s{sT0}, s{sT1}")
    e(f"s_add_u32 s{sT0}, s{sT0}, {QBOX}")
    e("s_waitcnt lgkmcnt(0)")
    e("v_add_f32 v20, v20, v22"); e("v_add_f32 v21, v21, v23"); e("v_add_f32 v24, v24, v26"); e("v_add_f32 v25, v25, v27")
    e("v_add_f32 v40, v20, v24"); e("v_add_f32 v42, v21, v25")
    e(f"v_mov_b32 v41, s{sTAG}"); e(f"v_mov_b32 v43, s{sTAG}")
    e(f"buffer_store_dwordx4 v[40:43], v6, {srd(sWS)}, s{sT0} offen {SCS}")
    if PUB1: e("s_barrier")
    e("s_branch L_kvrest" if W0PRE else "s_branch L_qwait")
    a.label("L_kvrest0")
    if PUB1: e("s_barrier")
    e("s_branch L_kvrest")
    a.label("L_nowq")
    if not W0PRE:
        e(f"s_cmp_eq_u32 s{sWAVE}, 0"); e("s_cbranch_scc1 L_qwait")
    for d in range(EARLY): kv_loads(d, sTILE + d)
    a.label("L_kvrest")
    for d in range(EARLY, PRE):
        if STG: e(f"s_waitcnt vmcnt({6*(STG-1)})")
        kv_loads(d, sTILE + d)
    a.label("L_qwait")
    stamp(2)
    if PC:
        e(f"v_and_b32 v6, 7, v{vLANE}"); e("v_lshlrev_b32 v6, 5, v6")
        e(f"v_lshrrev_b32 v7, 5, v{vLANE}"); e("v_lshl_add_u32 v6, v7, 4, v6")
        e(f"v_bfe_u32 v7, v{vLANE}, 4, 1"); e("v_lshl_add_u32 v6, v7, 3, v6")
        e(f"s_mul_i32 s{sT0}, s{sWAVE}, 768"); e(f"v_add_u32 v236, s{sT0}, v6")
        e("v_and_b32 v5, 127, v0"); e("v_lshrrev_b32 v4, 7, v0")
        e("v_mul_u32_u24 v6, 3072, v4"); e("v_lshl_add_u32 v237, v5, 3, v6")
        e("v_lshlrev_b32 v238, 5, v4")
        e("v_lshlrev_b32 v6, 11, v4"); e("v_lshl_add_u32 v239, v5, 4, v6")
        e(f"v_and_b32 v24, 7, v{vLANE}"); e("v_and_b32 v25, 1, v24"); e("v_lshrrev_b32 v24, 1, v24")
        e("v_cmp_eq_u32 vcc, 1, v25")
        e("v_mov_b32 v26, 0x0c0c0100"); e("v_mov_b32 v27, 0x01000c0c"); e("v_mov_b32 v28, 0x0c0c0302"); e("v_mov_b32 v29, 0x03020c0c")
        e("v_cndmask_b32 v26, v26, v27, vcc"); e("v_cndmask_b32 v28, v28, v29, vcc")
        e("v_mov_b32 v27, 0x0c0c0c0c")
        for r in range(4):
            e(f"v_cmp_eq_u32 vcc, {r}, v24")
            e(f"v_cndmask_b32 v{240+r}, v27, v26, vcc"); e(f"v_cndmask_b32 v{244+r}, v27, v28, vcc")
        e(f"v_lshrrev_b32 v6, 4, v{vLANE}"); e("v_mul_u32_u24 v6, 24, v6")
        e(f"v_bfe_u32 v7, v{vLANE}, 3, 1"); e("v_mul_u32_u24 v7, 384, v7"); e("v_add_u32 v6, v6, v7")
        e(f"s_mul_i32 s{sT0}, s{sWAVE}, 96"); e(f"v_add_u32 v248, s{sT0}, v6")
        e(f"v_lshrrev_b32 v6, 5, v{vLANE}"); e("v_lshlrev_b32 v6, 9, v6")
        e(f"v_and_b32 v7, 15, v{vLANE}"); e("v_lshl_add_u32 v6, v7, 5, v6")
        e(f"v_bfe_u32 v7, v{vLANE}, 4, 1"); e("v_lshl_add_u32 v6, v7, 4, v6")
        e(f"s_lshl_b32 s{sT0}, s{sWAVE}, 10"); e(f"v_add_u32 v249, s{sT0}, v6")
        e("v_cmp_le_u32 vcc, 96, v0")
        e("v_cndmask_b32 v7, 0, 1, vcc")
        e("v_mul_u32_u24 v5, 96, v7"); e("v_sub_u32 v5, v0, v5")
        e("v_lshlrev_b32 v6, 11, v7"); e("v_lshl_add_u32 v250, v5, 4, v6")
        e("v_mul_u32_u24 v6, 384, v7"); e("v_lshl_add_u32 v251, v5, 2, v6")
        e(f"v_lshlrev_b32 v6, 4, v{vLANE}"); e(f"s_mul_i32 s{sT0}, s{sWAVE}, 12288"); e(f"v_add_u32 v252, s{sT0}, v6")
    e("s_waitcnt lgkmcnt(0)")
    mktag()
    e(f"s_cmp_lg_u32 s{sWAVE}, 0"); e("s_cbranch_scc1 L_qbar")
    e("s_setprio 2")
    e(f"s_lshl_b32 s{sT0}, s{sH}, 13"); e(f"s_add_u32 s{sT0}, s{sT0}, {QBOX}")
    e(f"s_add_u32 s{sT1}, s{sT0}, 3072")
    e(f"v_lshlrev_b32 v6, 5, v{vLANE}")
    e(f"v_and_b32 v7, 31, v{vLANE}"); e("v_lshlrev_b32 v7, 5, v7"); e("v_add_u32 v7, 2048, v7")
    loads = []
    for b, so in ((0, sT0), (1, sT1)):
        base = (204 if W0PRE else 60) + 16 * b
        loads.append(f"buffer_load_dwordx4 v[{base}:{base+3}], v6, {srd(sWS)}, s{so} offen {SCL}")
        loads.append(f"buffer_load_dwordx4 v[{base+4}:{base+7}], v6, {srd(sWS)}, s{so} offen offset:16 {SCL}")
        loads.append(f"buffer_load_dwordx4 v[{base+8}:{base+11}], v7, {srd(sWS)}, s{so} offen {SCL}")
        loads.append(f"buffer_load_dwordx4 v[{base+12}:{base+15}], v7, {srd(sWS)}, s{so} offen offset:16 {SCL}")
    lane_poll("L_pq", loads, [(205 if W0PRE else 61) + 2*i for i in range(16)], 52)
    e(f"v_lshlrev_b32 v6, 2, v{vLANE}")
    e(f"v_and_b32 v7, 31, v{vLANE}"); e("v_lshlrev_b32 v7, 2, v7")
    for b in range(2):
        base = (204 if W0PRE else 60) + 16 * b
        e(f"v_add_f32 v{base}, v{base}, v{base+4}"); e(f"v_add_f32 v{base+2}, v{base+2}, v{base+6}")
        e(f"v_add_f32 v{base+8}, v{base+8}, v{base+12}"); e(f"v_add_f32 v{base+10}, v{base+10}, v{base+14}")
        e(f"v_cvt_pk_bf16_f32 v{base}, v{base}, v{base+2}"); e(f"v_cvt_pk_bf16_f32 v{base+8}, v{base+8}, v{base+10}")
        e(f"ds_write_b32 v6, v{base} offset:{Q + 384*b}")
        e(f"ds_write_b32 v7, v{base+8} offset:{Q + 384*b + 256}")
    e("s_waitcnt lgkmcnt(0)")
    e("s_setprio 0")
    stamp(2)
    e(f"s_mov_b32 s{sK+2}, {KVREC}"); e(f"s_mov_b32 s{sV+2}, {KVREC}")
    a.label("L_qbar")
    e("s_barrier")
    stamp()
    if DBGT: e("s_memrealtime s[66:67]")
    e(f"s_mov_b32 s{sN}, {1 if CH1 else DL}")
    e(f"v_and_b32 v7, 7, v{vLANE}"); e("v_lshlrev_b32 v6, 4, v7")
    if BX: e(f"s_mul_i32 s{sT0}, s92, 384"); e(f"v_add_u32 v6, s{sT0}, v6")
    for s in range(3): e(f"ds_read_b128 v[{vQ0+4*s}:{vQ0+4*s+3}], v6 offset:{Q + 128*s}")
    if not W0PRE:
        e(f"s_cmp_lg_u32 s{sWAVE}, 0"); e("s_cbranch_scc1 L_w0kv")
        for d in range(min(PRE, NS)): kv_loads(d, sTILE + d)
        a.label("L_w0kv")
    for d in range(min(PRE, NS), NS): kv_loads(d, sTILE + d)
    if not WOLATE: wo_dma('L_nowo')
    if WOLATE >= 2:
        e(f"s_mul_i32 s{sT0}, s{sH}, {192*1280}"); e(f"s_max_u32 s{sT1}, s{sR}, 3"); e(f"s_sub_u32 s{sT1}, s{sT1}, 3"); e(f"s_lshl_b32 s{sT1}, s{sT1}, 8")
        e(f"s_add_u32 s{sT0}, s{sT0}, s{sT1}")
        e(f"s_add_u32 s{sAUX2}, s12, s{sT0}"); e(f"s_addc_u32 s{sAUX2+1}, s13, 0")
        e(f"s_cmp_lt_u32 s{sR}, 3"); e(f"s_cselect_b32 s{sAUX2+2}, 0, {191*1280+256}"); e(f"s_mov_b32 s{sAUX2+3}, 0x20000")
        e(f"v_lshrrev_b32 v6, 4, v{vLANE}"); e("v_mul_u32_u24 v6, 12, v6")
        e(f"s_mul_i32 s{sT0}, s{sWAVE}, 48"); e(f"v_add_u32 v6, s{sT0}, v6")
        e("v_mul_u32_u24 v6, 1280, v6")
        e(f"v_and_b32 v7, 15, v{vLANE}"); e("v_lshl_add_u32 v254, v7, 4, v6")
        e(f"s_mul_i32 s24, s{sWAVE}, 12288"); e(f"s_add_u32 s24, s24, {WOL}")
        if WOLATE in (3, 5): e("s_mov_b32 m0, s24"); e("s_mov_b32 s25, 0")
        if PC:
            e(f"s_lshl_b32 s{sT0}, s{sH}, 15"); e(f"s_add_u32 s4, s{sT0}, {OBOX}")
            for p in range(1, 8): e(f"s_add_u32 s{4+p}, s4, {4096*p}")
            e(f"s_lshl_b32 s{sT1}, s{sR}, 12"); e(f"s_add_u32 s13, s4, s{sT1}")
            e(f"s_mul_i32 s{sT0}, s{sH}, 5"); e(f"s_add_u32 s{sT0}, s{sT0}, s{sR}"); e(f"s_sub_u32 s{sT0}, s{sT0}, 3")
            e(f"s_lshl_b32 s{sT0}, s{sT0}, 11"); e(f"s_add_u32 s12, s{sT0}, {YBOX}")
    for i in range(24): e(f"v_mov_b32 v{vACC0+i}, 0")
    e(f"v_mov_b32 v{vM0}, 0xff000000"); e(f"v_mov_b32 v{vL0}, 0")
    e(f"v_lshlrev_b32 v6, 2, v{vLANE}"); e(f"s_mul_i32 s{sT0}, s{sWAVE}, 768"); e(f"v_add_u32 v6, s{sT0}, v6")
    for c in range(2):
        for k in range(3): e(f"ds_write_b32 v6, v{vL0} offset:{PART + 3072*c + 256*k}")
    e(f"s_lshl_b32 s{sT0}, s{sWAVE}, 3"); e(f"v_mov_b32 v7, s{sT0}")
    e(f"ds_write_b64 v7, v[{vM0}:{vL0}] offset:{STAT}"); e(f"ds_write_b64 v7, v[{vM0}:{vL0}] offset:{STAT+32}")
    e(f"s_mov_b32 s{sLIM}, 512")
    if BX: e(f"s_mul_i32 s{sPOFF}, s92, 3072")
    else: e(f"s_mov_b32 s{sPOFF}, 0")
    e("s_mov_b32 s14, 0x3d93cd3a"); e("s_mov_b32 s15, 0x3fb8aa3b")
    e("s_waitcnt lgkmcnt(0)")
    e(f"s_atomic_add s{sN}, s[{sCTR}:{sCTR+1}], 0 glc")

    def tile_compute(slot, q, acc, m, l, waitV):
        b = RING + 24 * slot
        e(f"v_mov_b32 v46, 0"); e("v_mov_b32 v47, 0")
        for i in range(12): e(f"v_dot2c_f32_bf16 v{46+(i&1)}, v{b+i}, v{q+i}")
        e("v_add_f32 v46, v46, v47")
        allreduce([46], "v_add_f32", None, [0, 1, 2])
        e("v_cvt_pk_bf16_f32 v46, v46, v46"); e("v_and_b32 v46, 0xffff0000, v46")
        e("v_mul_f32 v46, s14, v46")
        e("v_cvt_pk_bf16_f32 v46, v46, v46"); e("v_and_b32 v46, 0xffff0000, v46")
        e("v_mul_f32 v46, s15, v46")
        e(f"v_max_f32 v47, v{m}, v46")
        e(f"v_sub_f32 v48, v{m}, v47"); e("v_sub_f32 v49, v46, v47")
        e("v_exp_f32 v48, v48"); e("v_exp_f32 v49, v49")
        e(f"v_mov_b32 v{m}, v47")
        e(f"v_fma_f32 v{l}, v{l}, v48, v49")
        e("v_cvt_pk_bf16_f32 v50, v49, 0"); e("v_lshlrev_b32 v51, 16, v50")
        for i in range(12):
            e(f"v_pk_mul_f32 v[{acc+2*i}:{acc+2*i+1}], v[{acc+2*i}:{acc+2*i+1}], v[48:49] op_sel_hi:[1,0]")
        e(f"s_waitcnt vmcnt({waitV})")
        for i in range(12):
            e(f"v_dot2c_f32_bf16 v{acc+2*i}, v{b+12+i}, v50")
            e(f"v_dot2c_f32_bf16 v{acc+2*i+1}, v{b+12+i}, v51")
    def refill(d):
        if STATIC:
            if first[0]:
                e(f"s_lshl_b32 s{sT0}, s{sR}, 2"); e(f"s_add_u32 s{sT0}, s{sT0}, s{sWAVE}"); e(f"s_mul_i32 s{sT0}, s{sT0}, {DL}")
                e(f"s_add_u32 s{sTILE+d}, s{sT0}, {32*NS + d}")
            else:
                e(f"s_add_u32 s{sTILE+d}, s{sTILE+d}, {32*DL}")
        elif CH1 and THR and not first[0]:
            e("s_waitcnt lgkmcnt(0)")
            e(f"s_mov_b32 s{sTILE+d}, s{sN}")
            e(f"s_cmp_ge_u32 s{sN}, {THR}"); e("s_cselect_b32 s95, 1, 0")
            e(f"s_cbranch_scc1 L_nopre_{d}")
            e(f"s_mov_b32 s{sN}, 1")
            e(f"s_atomic_add s{sN}, s[{sCTR}:{sCTR+1}], 0 glc")
            a.label(f"L_nopre_{d}")
        elif CH1 and ZS and not first[0]:
            e("s_waitcnt lgkmcnt(0)")
            e(f"s_mov_b32 s{sTILE+d}, s{sN}")
            e("s_add_u32 s94, s94, 1")
            e(f"s_cmp_lt_u32 s{sN}, {1024 - ZS}"); e(f"s_cbranch_scc1 L_grab_{d}")
            e(f"s_cmp_ge_u32 s{sN}, 1024"); e(f"s_cbranch_scc1 L_nograb_{d}")
            e(f"s_cmp_eq_u32 s{sWAVE}, 0"); e(f"s_cbranch_scc1 L_grab_{d}")
            e(f"s_sub_u32 s{sT0}, s{sN}, {32*NS}"); e(f"s_lshl_b32 s{sT0}, s{sT0}, 1")
            e(f"s_mul_i32 s{sT1}, s94, {ZR}")
            e(f"s_cmp_le_u32 s{sT0}, s{sT1}"); e(f"s_cbranch_scc1 L_grab_{d}")
            e(f"s_mov_b32 s{sN}, 1024")
            e(f"s_branch L_nograb_{d}")
            a.label(f"L_grab_{d}")
            e(f"s_mov_b32 s{sN}, 1")
            e(f"s_atomic_add s{sN}, s[{sCTR}:{sCTR+1}], 0 glc")
            a.label(f"L_nograb_{d}")
        elif CH1:
            e("s_waitcnt lgkmcnt(0)")
            e(f"s_mov_b32 s{sTILE+d}, s{sN}")
            if ZS: e("s_add_u32 s94, s94, 1")
            e(f"s_mov_b32 s{sN}, 1")
            e(f"s_atomic_add s{sN}, s[{sCTR}:{sCTR+1}], 0 glc")
        elif d == 0:
            e("s_waitcnt lgkmcnt(0)")
            e(f"s_mov_b32 s{sTILE}, s{sN}")
            e(f"s_add_u32 s{sNEXT}, s{sN}, 1")
            e(f"s_mov_b32 s{sN}, {DL}")
            e(f"s_atomic_add s{sN}, s[{sCTR}:{sCTR+1}], 0 glc")
        else:
            e(f"s_mov_b32 s{sTILE+d}, s{sNEXT}")
            if d < DL - 1: e(f"s_add_u32 s{sNEXT}, s{sNEXT}, 1")
        if WOLATE in (3, 5) and not first[0]:
            e(f"s_cmp_ge_u32 s{sTILE+d}, 1024"); e(f"s_cbranch_scc1 L_dma_{d}")
            kv_loads(d, sTILE + d)
            a.label(f"L_rj_{d}")
        else:
            kv_loads(d, sTILE + d)
    first = [True]
    if ZS: e("s_mov_b32 s94, 0")
    if THR: e("s_mov_b32 s95, 0")
    order = list(range(NS))
    for d in range(NS):
        younger = len(order) - 1 - order.index(d)
        e(f"s_waitcnt vmcnt({6*younger+3})")
        tile_compute(d, vQ0, vACC0, vM0, vL0, 6*younger)
        order.remove(d)
        if d < DL:
            refill(d); order.append(d)
    first[0] = False
    a.label("L_loop")
    for d in range(DL):
        e(f"s_cmp_ge_u32 s{sTILE+d}, s{sLIM}"); e(f"s_cbranch_scc1 L_sw_{d}")
        a.label(f"L_cont_{d}")
        e(f"s_waitcnt vmcnt({6*(DL-1)+3})")
        if THR:
            e("s_cmp_eq_u32 s95, 0"); e(f"s_cbranch_scc1 L_nojit_{d}")
            e(f"s_mov_b32 s{sN}, 1")
            e(f"s_atomic_add s{sN}, s[{sCTR}:{sCTR+1}], 0 glc")
            a.label(f"L_nojit_{d}")
        tile_compute(d, vQ0, vACC0, vM0, vL0, 6*(DL-1))
        refill(d)
    e("s_branch L_loop")
    if WOLATE == 5:
        assert DL == 2
        for d in range(DL):
            a.label(f"L_dma_{d}")
            stamp(4)
            e(f"s_cmp_ge_u32 s{sTILE+1-d}, 1024"); e(f"s_cbranch_scc1 L_dma2_{d}")
            kv_loads(d, sTILE + d)
            e(f"s_branch L_rj_{d}")
            a.label(f"L_dma2_{d}")
            for k in range(12):
                e(f"buffer_load_dwordx4 v254, {srd(sAUX2)}, s25 offen{nt} lds")
                e("s_add_u32 m0, m0, 1024"); e("s_add_u32 s25, s25, 1280")
            e(f"s_branch L_rj_{d}")
    if WOLATE == 3:
        assert DL == 2
        for d in range(DL):
            a.label(f"L_dma_{d}")
            stamp(4)
            for k in range(6):
                e(f"buffer_load_dwordx4 v254, {srd(sAUX2)}, s25 offen{nt} lds")
                e("s_add_u32 m0, m0, 1024"); e("s_add_u32 s25, s25, 1280")
            e(f"s_branch L_rj_{d}")
    for d in range(DL):
        a.label(f"L_sw_{d}")
        e(f"s_cmp_ge_u32 s{sTILE+d}, 1024"); e("s_cbranch_scc1 L_loopend")
        e(f"s_call_b64 s[{sRET1}:{sRET1+1}], L_switch")
        e(f"s_branch L_cont_{d}")
    a.label("L_switch")
    e(f"s_call_b64 s[{sRET2}:{sRET2+1}], L_flush")
    for i in range(24): e(f"v_mov_b32 v{vACC0+i}, 0")
    e(f"v_mov_b32 v{vM0}, 0xff000000"); e(f"v_mov_b32 v{vL0}, 0")
    e(f"v_and_b32 v7, 7, v{vLANE}"); e("v_lshlrev_b32 v6, 4, v7")
    if BX:
        e(f"s_xor_b32 s{sT0}, s92, 1"); e(f"s_mul_i32 s{sT0}, s{sT0}, 384"); e(f"v_add_u32 v6, s{sT0}, v6")
        for s_ in range(3): e(f"ds_read_b128 v[{vQ0+4*s_}:{vQ0+4*s_+3}], v6 offset:{Q + 128*s_}")
        e(f"s_mov_b32 s{sLIM}, 1024"); e(f"s_sub_u32 s{sPOFF}, 3072, s{sPOFF}")
    else:
        for s_ in range(3): e(f"ds_read_b128 v[{vQ0+4*s_}:{vQ0+4*s_+3}], v6 offset:{Q + 384 + 128*s_}")
        e(f"s_mov_b32 s{sLIM}, 1024"); e(f"s_mov_b32 s{sPOFF}, 3072")
    e("s_waitcnt lgkmcnt(0)")
    e(f"s_setpc_b64 s[{sRET1}:{sRET1+1}]")
    def flush_code():
        acc = vACC0
        e(f"v_mov_b32 v46, v{vM0}")
        e(f"v_add_u32 v6, s{sPOFF}, v236")
        e(f"s_lshl_b32 s{sT0}, s{sWAVE}, 3"); e(f"s_lshr_b32 s{sT1}, s{sPOFF}, 6"); e(f"s_and_b32 s{sT1}, s{sT1}, 32"); e(f"s_add_u32 s{sT0}, s{sT0}, s{sT1}")
        allreduce([46], "v_max_f32", [47], [3])
        e(f"v_mov_b32 v7, s{sT0}")
        allreduce([46], "v_max_f32", [47], [4, 5])
        e(f"v_sub_f32 v48, v{vM0}, v46")
        e("v_exp_f32 v48, v48")
        e(f"v_mul_f32 v47, v{vL0}, v48")
        for i in range(12):
            e(f"v_pk_mul_f32 v[{acc+2*i}:{acc+2*i+1}], v[{acc+2*i}:{acc+2*i+1}], v[48:49] op_sel_hi:[1,0]")
        prs5 = [(acc+8*s_+i, acc+8*s_+4+i) for s_ in range(3) for i in range(4)]
        e("v_add_f32_dpp v47, v47, v47 row_ror:8 row_mask:0xf bank_mask:0xf")
        for x, y in prs5: e(f"v_permlane32_swap_b32 v{x}, v{y}")
        e("v_mov_b32 v49, v47")
        for x, y in prs5: e(f"v_add_f32 v{x}, v{x}, v{y}")
        e("v_permlane16_swap_b32 v47, v49")
        prs4 = [(acc+8*s_+i, acc+8*s_+2+i) for s_ in range(3) for i in range(2)]
        for x, y in prs4: e(f"v_permlane16_swap_b32 v{x}, v{y}")
        e("v_add_f32 v47, v47, v49")
        for x, y in prs4: e(f"v_add_f32 v{x}, v{x}, v{y}")
        e("v_mov_b32 v49, v47")
        allreduce([acc+8*s_+i for s_ in range(3) for i in range(2)], "v_add_f32", None, [3])
        e("v_permlane32_swap_b32 v47, v49")
        for s_ in range(3): e(f"ds_write_b64 v6, v[{acc+8*s_}:{acc+8*s_+1}] offset:{PART + 256*s_}")
        e("v_add_f32 v47, v47, v49")
        e(f"ds_write_b64 v7, v[46:47] offset:{STAT}")
    a.label("L_flush")
    flush_code()
    e(f"s_setpc_b64 s[{sRET2}:{sRET2+1}]")
    a.label("L_loopend")
    stamp()
    if DBGT: e("s_memrealtime s[64:65]")
    if WOLATE == 1: wo_dma('L_nowo')
    if WOLATE in (3, 5):
        a.label("L_dmafix")
        e("s_cmp_ge_u32 s25, 15360"); e("s_cbranch_scc1 L_dmafix_done")
        e(f"buffer_load_dwordx4 v254, {srd(sAUX2)}, s25 offen{nt} lds")
        e("s_add_u32 m0, m0, 1024"); e("s_add_u32 s25, s25, 1280")
        e("s_branch L_dmafix")
        a.label("L_dmafix_done")
    if WOLATE == 2:
        n0 = len(a.L)
        flush_code()
        code = a.L[n0:]; del a.L[n0:]
        e("s_mov_b32 m0, s24")
        e("s_mov_b32 s25, 0")
        step = max(1, len(code) // 13)
        k = 0
        for j, l in enumerate(code):
            a.L.append(l)
            if j % step == step - 1 and k < 12:
                a.L.append(f"buffer_load_dwordx4 v254, {srd(sAUX2)}, s25 offen{nt} lds")
                if k < 11:
                    a.L.append("s_add_u32 m0, m0, 1024"); a.L.append("s_add_u32 s25, s25, 1280")
                k += 1
        assert k == 12
    else:
        e(f"s_call_b64 s[{sRET2}:{sRET2+1}], L_flush")
    e("s_waitcnt lgkmcnt(0)")
    stamp(3)
    e("s_barrier")
    e(f"s_bitcmp1_b32 s{sWAVE}, 0"); e("s_cselect_b32 exec_hi, 0, -1")
    for w in range(4): e(f"ds_read_b64 v[{20+2*w}:{21+2*w}], v237 offset:{PART + 768*w}")
    e(f"ds_read_b128 v[28:31], v238 offset:{STAT}"); e(f"ds_read_b128 v[32:35], v238 offset:{STAT+16}")
    e("s_mov_b32 vcc_lo, 0xaaaaaaaa"); e("s_mov_b32 vcc_hi, 0xaaaaaaaa")
    e(f"v_mov_b32 v43, s{sTAG}")
    e("s_waitcnt lgkmcnt(0)")
    e("v_max_f32 v36, v28, v30"); e("v_max3_f32 v36, v36, v32, v34")
    for w in range(4): e(f"v_sub_f32 v{28+2*w}, v{28+2*w}, v36")
    for w in range(4): e(f"v_exp_f32 v{28+2*w}, v{28+2*w}")
    e("v_mul_f32 v40, v20, v28"); e("v_mul_f32 v41, v21, v28"); e("v_mul_f32 v37, v29, v28")
    for w in range(1, 4):
        e(f"v_fmac_f32 v40, v{20+2*w}, v{28+2*w}"); e(f"v_fmac_f32 v41, v{21+2*w}, v{28+2*w}"); e(f"v_fmac_f32 v37, v{29+2*w}, v{28+2*w}")
    e("v_cndmask_b32 v42, v36, v37, vcc")
    e(f"buffer_store_dwordx4 v[40:43], v239, {srd(sWS)}, s13 offen {SCS}")
    a.label("L_pub_done")
    e("s_mov_b64 exec, -1")
    if DBGT: e("s_memrealtime s[68:69]")
    if WOLATE == 4:
        e("s_mov_b32 m0, s24"); e("s_mov_b32 s25, 0")
        for k in range(12):
            e(f"buffer_load_dwordx4 v254, {srd(sAUX2)}, s25 offen{nt} lds")
            if k < 11: e("s_add_u32 m0, m0, 1024"); e("s_add_u32 s25, s25, 1280")
    stamp()
    e(f"s_cmp_lt_u32 s{sR}, 3"); e("s_cbranch_scc1 L_final")
    def wo_reads():
        for i in range(12): e(f"ds_read_b128 v[{100+4*i}:{103+4*i}], v252 offset:{WOL + 1024*i}")
    e(f"s_cmp_eq_u32 s{sWAVE}, 3"); e("s_cbranch_scc1 L_wo_w3")
    lane_poll("L_p1s", [f"buffer_load_dwordx4 v[{60+4*p}:{63+4*p}], v250, {srd(sWS)}, s{4+p} offen {SCL}" for p in range(8)], [63+4*p for p in range(8)], 52)
    stamp(3)
    if PROF == 3: e(f"s_sub_u32 s97, {SPIN}, s{sCNT}")
    wo_reads()
    for p in range(8): e(f"v_mov_b32_dpp v{8+p}, v{62+4*p} quad_perm:[0,0,2,2] row_mask:0xf bank_mask:0xf")
    for p in range(8): e(f"v_mov_b32_dpp v{63+4*p}, v{62+4*p} quad_perm:[1,1,3,3] row_mask:0xf bank_mask:0xf")
    e("v_max3_f32 v36, v8, v9, v10"); e("v_max3_f32 v37, v11, v12, v13"); e("v_max3_f32 v36, v36, v14, v15"); e("v_max_f32 v36, v36, v37")
    for p in range(8): e(f"v_sub_f32 v{8+p}, v{8+p}, v36")
    for p in range(8): e(f"v_exp_f32 v{8+p}, v{8+p}")
    e("v_mul_f32 v40, v60, v8"); e("v_mul_f32 v41, v61, v8"); e("v_mul_f32 v37, v63, v8")
    for p in range(1, 8):
        e(f"v_fmac_f32 v37, v{63+4*p}, v{8+p}"); e(f"v_fmac_f32 v40, v{60+4*p}, v{8+p}"); e(f"v_fmac_f32 v41, v{61+4*p}, v{8+p}")
    e("v_rcp_f32 v37, v37")
    e("v_mul_f32 v40, v40, v37"); e("v_mul_f32 v41, v41, v37")
    e("v_cvt_pk_bf16_f32 v40, v40, v41")
    e(f"ds_write_b32 v251, v40 offset:{SEL}")
    e("s_branch L_wo_bar")
    a.label("L_wo_w3")
    e("s_waitcnt vmcnt(0)")
    wo_reads()
    a.label("L_wo_bar")
    for i in range(4): e(f"v_mov_b32 v{20+i}, 0")
    e("v_lshlrev_b32 v6, 3, v0"); e("v_lshlrev_b32 v7, 4, v0")
    e(f"v_mov_b32 v41, s{sTAG}"); e(f"v_mov_b32 v43, s{sTAG}")
    e("s_waitcnt lgkmcnt(0)")
    e("s_barrier")
    stamp()
    for p in range(3): e(f"ds_read_b64 v[{60+2*p}:{61+2*p}], v248 offset:{SEL + 8*p}")
    e("s_waitcnt lgkmcnt(0)")
    def aperm(i):
        A = 44 + 4 * (i & 1)
        for r in range(4):
            e(f"v_perm_b32 v{A+r}, v{60 + (i >> 1)}, v{60 + (i >> 1)}, v{(244 if i & 1 else 240) + r}")
    aperm(0)
    for i in range(12):
        if i < 11: aperm(i + 1)
        else: e("s_nop 1")
        A = 44 + 4 * (i & 1)
        e(f"v_mfma_f32_16x16x32_bf16 v[20:23], v[{A}:{A+3}], v[{100+4*i}:{103+4*i}], v[20:23]")
    e("s_nop 7")
    e(f"ds_write_b128 v249, v[20:23] offset:{YP}")
    e("s_waitcnt lgkmcnt(0)")
    e("s_barrier")
    e(f"s_cmp_ge_u32 s{sWAVE}, 2"); e("s_cbranch_scc1 L_fin")
    for w in range(4): e(f"ds_read_b64 v[{20+2*w}:{21+2*w}], v6 offset:{YP + 1024*w}")
    e("s_waitcnt lgkmcnt(0)")
    e("v_add_f32 v20, v20, v22"); e("v_add_f32 v21, v21, v23"); e("v_add_f32 v24, v24, v26"); e("v_add_f32 v25, v25, v27")
    e("v_add_f32 v40, v20, v24"); e("v_add_f32 v42, v21, v25")
    e(f"buffer_store_dwordx4 v[40:43], v7, {srd(sWS)}, s12 offen {SCS}")
    stamp(3)
    e("s_branch L_fin")
    a.label("L_final")
    e(f"s_cmp_lg_u32 s{sWAVE}, 0"); e("s_cbranch_scc1 L_fin")
    e(f"s_mul_i32 s14, s{sH}, 3"); e(f"s_add_u32 s14, s14, s{sR}")
    e("s_cmp_ge_u32 s14, 40"); e("s_cbranch_scc1 L_fin")
    e("s_cmp_ge_u32 s14, 20"); e("s_cselect_b32 s15, 1, 0")
    e("s_mul_i32 s16, s15, 20"); e("s_sub_u32 s16, s14, s16")
    e("s_lshr_b32 s17, s16, 2"); e("s_and_b32 s18, s16, 3")
    e("s_mul_i32 s19, s15, 640"); e("s_lshl_b32 s20, s16, 5"); e("s_add_u32 s19, s19, s20")
    e(f"v_and_b32 v7, 7, v{vLANE}"); e("v_lshlrev_b32 v4, 2, v7")
    e(f"v_lshrrev_b32 v5, 5, v{vLANE}"); e("v_lshl_add_u32 v4, v5, 1, v4")
    e(f"v_bfe_u32 v5, v{vLANE}, 4, 1"); e("v_add_u32 v4, v4, v5")
    e("v_add_u32 v4, s19, v4"); e("v_lshlrev_b32 v4, 1, v4")
    e(f"buffer_load_ushort v58, v4, {srd(sX)}, 0 offen")
    e(f"v_lshrrev_b32 v5, 3, v{vLANE}")
    e("v_mul_u32_u24 v6, 10240, v5"); e("v_lshl_add_u32 v6, v7, 5, v6")
    e("s_lshl_b32 s20, s17, 11"); e("s_lshl_b32 s21, s15, 10"); e("s_add_u32 s20, s20, s21"); e("s_lshl_b32 s21, s18, 8"); e("s_add_u32 s20, s20, s21")
    e(f"s_add_u32 s20, s20, {YBOX}")
    e("s_lshl_b32 s21, s19, 3"); e(f"s_add_u32 s21, s21, {FBOX}")
    for i in range(1, 4):
        e(f"s_add_u32 s{4+i}, s20, {81920*i}"); e(f"s_add_u32 s{8+i}, s21, {81920*i}")
    e("s_mov_b32 s4, s20"); e("s_mov_b32 s8, s21")
    def red4(base, n):
        for i in range(1, n):
            for c in range(4): e(f"v_add_f32 v{base+2*c}, v{base+2*c}, v{base+8*i+2*c}")
        swapred([(base, base+4), (base+2, base+6)], 5)
        swapred([(base, base+2)], 4)
        allreduce([base], "v_add_f32", None, [3])
    lds_ = []
    for i in range(3):
        lds_.append(f"buffer_load_dwordx4 v[{100+8*i}:{103+8*i}], v6, {srd(sWS)}, s{8+i} offen {SCL}")
        lds_.append(f"buffer_load_dwordx4 v[{104+8*i}:{107+8*i}], v6, {srd(sWS)}, s{8+i} offen offset:16 {SCL}")
    lane_poll("L_pf", lds_, [101 + 2*k for k in range(12)], 52)
    red4(100, 3)
    e("s_mov_b32 s22, 0xbfb8aa3b")
    e("v_cvt_pk_bf16_f32 v24, v100, v100"); e("v_and_b32 v24, 0xffff0000, v24")
    e("v_mul_f32 v25, s22, v24"); e("v_exp_f32 v25, v25"); e("v_add_f32 v25, 1.0, v25"); e("v_rcp_f32 v25, v25")
    e("v_mul_f32 v24, v24, v25")
    e("v_cvt_pk_bf16_f32 v24, v24, v24"); e("v_and_b32 v24, 0xffff0000, v24")
    e("v_lshlrev_b32 v58, 16, v58")
    stamp(3)
    lds_ = []
    for i in range(4):
        lds_.append(f"buffer_load_dwordx4 v[{60+8*i}:{63+8*i}], v6, {srd(sWS)}, s{4+i} offen {SCL}")
        lds_.append(f"buffer_load_dwordx4 v[{64+8*i}:{67+8*i}], v6, {srd(sWS)}, s{4+i} offen offset:16 {SCL}")
    lane_poll("L_p2", lds_, [61 + 2*k for k in range(16)], 52)
    stamp(3)
    if PROF == 3: e(f"s_sub_u32 s97, {SPIN}, s{sCNT}")
    red4(60, 4)
    e("v_cvt_pk_bf16_f32 v20, v60, v60"); e("v_and_b32 v20, 0xffff0000, v20")
    e("v_mul_f32 v20, v20, v24")
    e("v_cvt_pk_bf16_f32 v20, v20, v20"); e("v_and_b32 v20, 0xffff0000, v20")
    e("v_add_f32 v20, v58, v20")
    e("v_cvt_pk_bf16_f32 v20, v20, v20")
    e(f"buffer_store_short v20, v4, {srd(sOUT)}, 0 offen")
    e("s_cmp_lg_u32 s14, 0"); e("s_cbranch_scc1 L_fin")
    e("s_mov_b64 exec, 1")
    e(f"v_mov_b32 v21, s{sTAG}"); e("v_mov_b32 v22, 0")
    e(f"buffer_store_dword v21, v22, {srd(sWS)}, 0 offen")
    e("s_branch L_fin")

    a.label("L_ffn")
    e("s_setprio 3")
    e("s_sub_u32 s57, s2, 256")
    e(f"s_lshl_b32 s{sT0}, s57, 7")
    e(f"s_add_u32 s{sAUX}, s16, s{sT0}"); e(f"s_addc_u32 s{sAUX+1}, s17, 0"); e(f"s_mov_b32 s{sAUX+2}, {639*3072+128}"); e(f"s_mov_b32 s{sAUX+3}, 0x20000")
    e(f"s_add_u32 s{sAUX2}, s18, s{sT0}"); e(f"s_addc_u32 s{sAUX2+1}, s19, 0"); e(f"s_mov_b32 s{sAUX2+2}, {639*3072+128}"); e(f"s_mov_b32 s{sAUX2+3}, 0x20000")
    e(f"s_mul_i32 s{sT0}, s57, {64*1280}")
    e(f"s_add_u32 s{sK}, s20, s{sT0}"); e(f"s_addc_u32 s{sK+1}, s21, 0"); e(f"s_mov_b32 s{sK+2}, {64*1280}"); e(f"s_mov_b32 s{sK+3}, 0x20000")
    xloads()
    unit_addr(3072, 20, 2)
    e(f"v_lshrrev_b32 v3, 4, v{vLANE}"); e("v_lshlrev_b32 v3, 2, v3")
    e(f"s_lshl_b32 s{sT0}, s{sWAVE}, 4"); e(f"v_add_u32 v3, s{sT0}, v3")
    e("v_mul_u32_u24 v3, 1280, v3")
    e(f"v_and_b32 v7, 15, v{vLANE}"); e("v_lshl_add_u32 v3, v7, 4, v3")
    def fload(n):
        if n < 20:
            e(f"s_mov_b32 s{sT1}, {3072*n}")
            e(f"buffer_load_dwordx4 v[{60+4*n}:{63+4*n}], v2, {srd(sAUX)}, s{sT1} offen{nt}")
        elif n < 40:
            i = n - 20
            e(f"s_mov_b32 s{sT1}, {3072*i}")
            e(f"buffer_load_dwordx4 v[{140+4*i}:{143+4*i}], v2, {srd(sAUX2)}, s{sT1} offen{nt}")
        elif n < 60:
            k = n - 40; i, sg = k // 5, k % 5
            e(f"s_mov_b32 s{sT1}, {1280*i}")
            e(f"buffer_load_dwordx4 v[{60+4*k}:{63+4*k}], v3, {srd(sK)}, s{sT1} offen offset:{256*sg}{nt}")
    if FTHR:
        e("s_waitcnt vmcnt(0)")
        layernorm()
        xp_read(20)
        e("s_waitcnt lgkmcnt(0)")
        mktag()
        e(f"s_lshl_b32 s{sT0}, s57, 13"); e(f"s_add_u32 s{sT0}, s{sT0}, {QBOX}")
        e("v_mov_b32 v6, 0")
        e(f"s_mov_b32 s{sCNT}, {SPIN}")
        a.label("L_ft1")
        e(f"buffer_load_dwordx4 v[48:51], v6, {srd(sWS)}, s{sT0} offen {SCL}")
        e("s_waitcnt vmcnt(0)")
        e(f"v_cmp_ne_u32 vcc, s{sTAG}, v49")
        e("s_cbranch_vccz L_ft1_done")
        e("s_sleep 16")
        e(f"s_sub_u32 s{sCNT}, s{sCNT}, 1"); e(f"s_cmp_lg_u32 s{sCNT}, 0"); e("s_cbranch_scc1 L_ft1")
        a.label("L_ft1_done")
        e(f"s_lshl_b32 s{sT1}, s57, 8"); e(f"s_add_u32 s{sT1}, s{sT1}, {CNT}")
        e(f"s_add_u32 s{sCTR}, s26, s{sT1}"); e(f"s_addc_u32 s{sCTR+1}, s27, 0")
        e(f"s_mov_b32 s{sCNT}, {SPIN}")
        a.label("L_ft2")
        e(f"s_mov_b32 s{sN}, 0")
        e(f"s_atomic_add s{sN}, s[{sCTR}:{sCTR+1}], 0 glc")
        e("s_waitcnt lgkmcnt(0)")
        e(f"s_cmp_ge_u32 s{sN}, {FTHR}"); e("s_cbranch_scc1 L_ft2_done")
        e("s_sleep 16")
        e(f"s_sub_u32 s{sCNT}, s{sCNT}, 1"); e(f"s_cmp_lg_u32 s{sCNT}, 0"); e("s_cbranch_scc1 L_ft2")
        a.label("L_ft2_done")
        for n in range(FLA): fload(n)
    else:
        for n in range(FLA): fload(n)
        e(f"s_waitcnt vmcnt({FLA})")
        layernorm()
        xp_read(20)
    for i in range(32): e(f"v_mov_b32 v{20+i}, 0")
    e("s_waitcnt lgkmcnt(0)")
    for n in range(40):
        issued = min(60, n + FLA)
        e(f"s_waitcnt vmcnt({issued - n - 1})")
        i = n % 20
        sel_ops([XP + (i >> 1), XP + 10 + (i >> 1)], i & 1, 52)
        mac16((60 if n < 20 else 140) + 4*i, 20 if n < 20 else 36, 52)
        if n + FLA < 60: fload(n + FLA)
    unit_reduce(20, QP)
    unit_reduce(36, UP)
    for n in range(40 + FLA, 60): fload(n)
    e("s_waitcnt lgkmcnt(0)")
    e("s_barrier")
    e(f"s_cmp_ge_u32 s{sWAVE}, 2"); e("s_cbranch_scc1 L_ffn_h")
    e("v_lshlrev_b32 v6, 2, v0")
    for w in range(4):
        e(f"ds_read_b32 v{20+w}, v6 offset:{QP + 512*w}"); e(f"ds_read_b32 v{24+w}, v6 offset:{UP + 512*w}")
    e("s_waitcnt lgkmcnt(0)")
    e("v_add_f32 v20, v20, v21"); e("v_add_f32 v22, v22, v23"); e("v_add_f32 v24, v24, v25"); e("v_add_f32 v26, v26, v27")
    e("v_add_f32 v20, v20, v22"); e("v_add_f32 v24, v24, v26")
    e("v_cvt_pk_bf16_f32 v28, v20, v24")
    e("v_lshlrev_b32 v20, 16, v28"); e("v_and_b32 v24, 0xffff0000, v28")
    e("v_mul_f32 v25, v20, v20"); e("v_mul_f32 v25, v25, v20")
    e("s_mov_b32 s22, 0x3d372713"); e("v_fma_f32 v25, v25, s22, v20")
    e("s_mov_b32 s22, 0xc0135761"); e("v_mul_f32 v25, s22, v25")
    e("v_exp_f32 v25, v25"); e("v_add_f32 v25, 1.0, v25"); e("v_rcp_f32 v25, v25")
    e("v_mul_f32 v20, v20, v25")
    e("v_cvt_pk_bf16_f32 v20, v20, v20"); e("v_and_b32 v20, 0xffff0000, v20")
    e("v_mul_f32 v20, v20, v24")
    e("v_cvt_pk_bf16_f32 v20, v20, v20")
    e("v_lshlrev_b32 v6, 1, v0")
    e(f"ds_write_b16 v6, v20 offset:{H}")
    e("s_waitcnt lgkmcnt(0)")
    a.label("L_ffn_h")
    e("s_barrier")
    e(f"v_lshrrev_b32 v6, 4, v{vLANE}"); e("v_lshlrev_b32 v6, 3, v6")
    e(f"s_lshl_b32 s{sT0}, s{sWAVE}, 5"); e(f"v_add_u32 v6, s{sT0}, v6")
    e(f"ds_read_b64 v[56:57], v6 offset:{H}"); e(f"ds_read_b64 v[58:59], v6 offset:{H+128}")
    for i in range(80): e(f"v_mov_b32 v{140+i}, 0")
    e("s_waitcnt vmcnt(0) lgkmcnt(0)")
    for i in range(4):
        sel_ops([56 + (i >> 1), 58 + (i >> 1)], i & 1, 52)
        for sg in range(5):
            mac16(60 + 20*i + 4*sg, 140 + 16*sg, 52)
    for sg in range(5):
        A = 140 + 16*sg
        swapred([(A+i, A+8+i) for i in range(8)], 5)
        swapred([(A+i, A+4+i) for i in range(4)], 4)
    e(f"v_lshrrev_b32 v6, 5, v{vLANE}"); e("v_mul_u32_u24 v6, 2560, v6")
    e(f"v_and_b32 v7, 15, v{vLANE}"); e("v_lshl_add_u32 v6, v7, 5, v6")
    e(f"v_bfe_u32 v7, v{vLANE}, 4, 1"); e("v_lshl_add_u32 v6, v7, 4, v6")
    e(f"s_mul_i32 s{sT0}, s{sWAVE}, 5120"); e(f"v_add_u32 v6, s{sT0}, v6")
    for sg in range(5): e(f"ds_write_b128 v6, v[{140+16*sg}:{143+16*sg}] offset:{DP + 512*sg}")
    e("s_waitcnt lgkmcnt(0)")
    e("s_barrier")
    mktag()
    e(f"s_mul_i32 s{sT0}, s57, 10240"); e(f"s_add_u32 s{sT0}, s{sT0}, {FBOX}")
    e(f"v_mov_b32 v41, s{sTAG}"); e(f"v_mov_b32 v43, s{sTAG}")
    for q in range(3):
        if q == 2:
            e(f"s_cmp_ge_u32 s{sWAVE}, 2"); e("s_cbranch_scc1 L_fin")
        e(f"v_add_u32 v5, {256*q}, v0"); e("v_lshlrev_b32 v6, 3, v5")
        for w in range(4): e(f"ds_read_b64 v[{20+2*w}:{21+2*w}], v6 offset:{DP + 5120*w}")
        e("s_waitcnt lgkmcnt(0)")
        e("v_add_f32 v20, v20, v22"); e("v_add_f32 v21, v21, v23"); e("v_add_f32 v24, v24, v26"); e("v_add_f32 v25, v25, v27")
        e("v_add_f32 v40, v20, v24"); e("v_add_f32 v42, v21, v25")
        e("v_lshlrev_b32 v6, 4, v5")
        e(f"buffer_store_dwordx4 v[40:43], v6, {srd(sWS)}, s{sT0} offen {SCS}")
        e("s_nop 1")

    a.label("L_fin")
    if DBGT:
        e("s_mov_b64 exec, -1")
        e(f"s_cmp_lg_u32 s{sWAVE}, 0"); e("s_cbranch_scc1 L_end")
        e("s_memrealtime s[100:101]")
        e("s_load_dwordx2 s[4:5], s[0:1], 80")
        e("s_waitcnt lgkmcnt(0)")
        e("s_mov_b32 s6, 256"); e("s_mov_b32 s7, 0x20000")
        e("s_not_b32 s98, s98")
        e("v_mov_b32 v20, s98"); e("v_mov_b32 v21, s100"); e("v_mov_b32 v6, 0")
        e("s_mov_b64 exec, 1")
        e("buffer_atomic_umax v20, v6, s[4:7], 0 offen")
        e("buffer_atomic_umax v21, v6, s[4:7], 0 offen offset:4")
        e("s_cmp_ge_u32 s2, 256"); e("s_cbranch_scc0 L_dbg_att")
        e("buffer_atomic_umax v21, v6, s[4:7], 0 offen offset:8")
        e("s_branch L_end")
        a.label("L_dbg_att")
        e("v_mov_b32 v22, s64"); e("v_mov_b32 v23, s66"); e("s_not_b32 s64, s64"); e("v_mov_b32 v24, s64"); e("v_mov_b32 v25, s68")
        e("buffer_atomic_umax v22, v6, s[4:7], 0 offen offset:12")
        e("buffer_atomic_umax v23, v6, s[4:7], 0 offen offset:16")
        e("buffer_atomic_umax v24, v6, s[4:7], 0 offen offset:20")
        e("buffer_atomic_umax v25, v6, s[4:7], 0 offen offset:24")
    if PROF:
        stamp()
        n = prof_n[0]
        e("s_mov_b64 exec, -1")
        e(f"s_cmp_lg_u32 s{sWAVE}, 0"); e("s_cbranch_scc1 L_end")
        e("s_waitcnt lgkmcnt(0)")
        e("s_getreg_b32 s14, hwreg(HW_REG_XCC_ID)")
        e(f"s_lshl_b32 s{sT0}, s2, 7"); e(f"s_add_u32 s{sT0}, s{sT0}, {PROFO}")
        e("v_mov_b32 v6, 0")
        e("s_mov_b64 exec, 1")
        for i in range(n):
            e(f"v_mov_b32 v20, s{SP[i]}"); e(f"v_mov_b32 v21, s{SP[i]+1}")
            e(f"buffer_store_dwordx2 v[20:21], v6, {srd(sWS)}, s{sT0} offen offset:{8*i}")
            e("s_nop 1")
        e("v_mov_b32 v20, s14"); e("v_mov_b32 v21, s97")
        e(f"buffer_store_dwordx2 v[20:21], v6, {srd(sWS)}, s{sT0} offen offset:120")
    a.label("L_end")
    e("s_endpgm")
    body = fix_hazards([l for l in a.L if l is not None])
    out += body
    out += ['.section .rodata,"a"', ".p2align 6", f".amdhsa_kernel {KNAME}", "  .amdhsa_next_free_vgpr 256", "  .amdhsa_next_free_sgpr 102",
            "  .amdhsa_accum_offset 256", "  .amdhsa_group_segment_fixed_size 0", "  .amdhsa_kernarg_size 96", "  .amdhsa_user_sgpr_count 2",
            "  .amdhsa_user_sgpr_kernarg_segment_ptr 1", "  .amdhsa_system_sgpr_workgroup_id_x 1", ".end_amdhsa_kernel"]
    return "\n".join(out) + "\n"

WOLATE_DEFAULT = 1
if __name__ == "__main__":
    import json
    kw = json.loads(sys.argv[2]) if len(sys.argv) > 2 else {}
    open(sys.argv[1], "w").write(gen(**kw))

LAST = 5
```

```python
import sys
sys.path.insert(0, "gen")
from asmlib import Asm, fix_hazards

KNAME = "recurrent_scan__mha_block_cached__geglu_ffn__decode_kernel"

XN, QP, UP, Q, PART, STAT, SEL, YP, RED, H = 0, 2560, 4608, 6656, 7424, 13568, 13696, 14464, 18560, 19584
WOL = 19968
DP = WOL
LDS_BYTES = WOL + 49152
CNT, QBOX, OBOX, YBOX, FBOX, PROFO = 0x1000, 0x4000, 0x50000, 0x150000, 0x1A0000, 0x200000
WS_REC = 0x400000
NFFN = 24
FFN_LAST = 1
NWG = NFFN + 256
SPIN = 1 << 17

sK, sV, sAUX, sWS, sX, sOUT, sAUX2 = 28, 32, 36, 40, 44, 48, 52
sWAVE, sH, sR, sTAG, sE, sT0, sT1, sCNT = 56, 57, 58, 60, 61, 62, 63, 3
sTILE = 80
sN, sNEXT = 86, 87
sRET1, sRET2, sLIM, sPOFF, sPH, sPROD = 84, 22, 59, 21, 20, 19
sCTR = 88
vLANE, vKV, vOFF = 1, 3, 2
RING = 60
vQ0, vQ1 = 8, 204
vACC0, vM0, vL0 = 20, 44, 45
vACC1, vM1, vL1 = 216, 240, 241
WQ = 156
XP = 236
KVREC = 50331648 + 1572864

def srd(s): return f"s[{s}:{s+3}]"

def gen(PROF=0, NT=1, FLA=16, STG=2, SLP=0, EARLY=1, DL=2, NS=6, STATIC=0, CH1=1, SCS='sc0 sc1', SCL='sc0 sc1', DBGT=0, MF=1, PUB1=1, PRE=4, WOLATE=3, THR=0, JIT=0, FTHR=0, W0PRE=1, PC=1, ZS=0, ZR=69, P1S=1, BOP=1, ROT=112, BX=0, PERM=0, CPF=0):
    a = Asm(); e = a.e
    nt = " nt" if NT else ""
    prof_n = [0]
    SP = [64, 66, 68, 70, 72, 74, 76, 78, 90, 92, 98, 100, 4, 6]
    def stamp(level=1):
        if (PROF and level == 1) or PROF == level:
            i = prof_n[0]; prof_n[0] += 1
            e(f"s_memrealtime s[{SP[i]}:{SP[i]+1}]")
    def allreduce(regs, op, tmps, bits):
        for bit in bits:
            if bit in (0, 1, 2, 3, "m"):
                mod = {0: "quad_perm:[1,0,3,2]", 1: "quad_perm:[2,3,0,1]", 2: "row_half_mirror", 3: "row_ror:8", "m": "row_mirror"}[bit]
                for r in regs:
                    e(f"{op}_dpp v{r}, v{r}, v{r} {mod} row_mask:0xf bank_mask:0xf")
            else:
                sw = "v_permlane16_swap_b32" if bit == 4 else "v_permlane32_swap_b32"
                for r, t in zip(regs, tmps): e(f"v_mov_b32 v{t}, v{r}")
                for r, t in zip(regs, tmps): e(f"{sw} v{r}, v{t}")
                for r, t in zip(regs, tmps): e(f"{op} v{r}, v{r}, v{t}")
    def swapred(pairs, bit):
        sw = "v_permlane16_swap_b32" if bit == 4 else "v_permlane32_swap_b32"
        for x, y in pairs: e(f"{sw} v{x}, v{y}")
        for x, y in pairs: e(f"v_add_f32 v{x}, v{x}, v{y}")
    def mktag():
        e(f"s_mul_i32 s{sTAG}, s{sE}, 0x9E3779B1"); e(f"s_add_u32 s{sTAG}, s{sTAG}, 0x7F4A7C15")
    def lane_poll(name, loads, tagregs, tmp):
        e(f"s_mov_b32 s{sCNT}, {SPIN}")
        a.label(name)
        for l in loads: e(l)
        e("s_waitcnt vmcnt(0)")
        e(f"v_xor_b32 v{tmp}, s{sTAG}, v{tagregs[0]}")
        for t in tagregs[1:]:
            if BOP:
                e(f"v_bitop3_b32 v{tmp}, v{tmp}, v{t}, s{sTAG} bitop3:0xf6")
            else:
                e(f"v_xor_b32 v{tmp+1}, s{sTAG}, v{t}")
                e(f"v_or_b32 v{tmp}, v{tmp}, v{tmp+1}")
        e(f"v_cmp_ne_u32 vcc, 0, v{tmp}")
        e("s_mov_b64 exec, vcc")
        e(f"s_cbranch_execz {name}_done")
        if SLP: e(f"s_sleep {SLP}")
        e(f"s_sub_u32 s{sCNT}, s{sCNT}, 1")
        e(f"s_cmp_lg_u32 s{sCNT}, 0")
        e(f"s_cbranch_scc1 {name}")
        a.label(name + "_done")
        e("s_mov_b64 exec, -1")

    def layernorm():
        D_ = [[8, 9, 10, 11, 12], [14, 15, 16, 17, 18]]
        X = [[20 + i for i in range(10)], [30 + i for i in range(10)]]
        for b in range(2):
            for i in range(5):
                e(f"v_lshlrev_b32 v{X[b][2*i]}, 16, v{D_[b][i]}")
                e(f"v_and_b32 v{X[b][2*i+1]}, 0xffff0000, v{D_[b][i]}")
        for b in range(2):
            e(f"v_add_f32 v{40+b}, v{X[b][0]}, v{X[b][1]}")
        for i in range(2, 10):
            for b in range(2): e(f"v_add_f32 v{40+b}, v{40+b}, v{X[b][i]}")
        allreduce([40, 41], "v_add_f32", [46, 47], [0, 1, 2, "m", 4, 5])
        e(f"s_mov_b32 s{sT0}, 0x3acccccd")
        for b in range(2): e(f"v_mul_f32 v{40+b}, s{sT0}, v{40+b}")
        for b in range(2):
            e(f"v_sub_f32 v{48+b}, v{X[b][0]}, v{40+b}")
        for b in range(2):
            e(f"v_mul_f32 v{42+b}, v{48+b}, v{48+b}")
        for i in range(1, 10):
            for b in range(2): e(f"v_sub_f32 v{48+2*(i&1)+b}, v{X[b][i]}, v{40+b}")
            for b in range(2): e(f"v_fmac_f32 v{42+b}, v{48+2*(i&1)+b}, v{48+2*(i&1)+b}")
        allreduce([42, 43], "v_add_f32", [46, 47], [0, 1, 2, "m", 4, 5])
        for b in range(2): e(f"v_mul_f32 v{42+b}, s{sT0}, v{42+b}")
        e("v_cvt_pk_bf16_f32 v46, v40, v41")
        e("v_cvt_pk_bf16_f32 v47, v42, v43")
        e("v_lshlrev_b32 v40, 16, v46"); e("v_and_b32 v41, 0xffff0000, v46")
        e("v_lshlrev_b32 v42, 16, v47"); e("v_and_b32 v43, 0xffff0000, v47")
        e("v_add_f32 v42, 0x3727c5ac, v42"); e("v_add_f32 v43, 0x3727c5ac, v43")
        e("v_cvt_pk_bf16_f32 v46, v42, v43")
        e("v_lshlrev_b32 v42, 16, v46"); e("v_and_b32 v43, 0xffff0000, v46")
        e("v_sqrt_f32 v42, v42"); e("v_sqrt_f32 v43, v43")
        e("v_cvt_pk_bf16_f32 v46, v42, v43")
        e("v_lshlrev_b32 v42, 16, v46"); e("v_and_b32 v43, 0xffff0000, v46")
        e("v_rcp_f32 v42, v42"); e("v_rcp_f32 v43, v43")
        e(f"v_mul_u32_u24 v5, 20, v{vLANE}")
        for i in range(5):
            for b in range(2):
                x0, x1 = X[b][2*i], X[b][2*i+1]
                e(f"v_sub_f32 v{x0}, v{x0}, v{40+b}"); e(f"v_sub_f32 v{x1}, v{x1}, v{40+b}")
            for b in range(2):
                x0, x1 = X[b][2*i], X[b][2*i+1]
                e(f"v_cvt_pk_bf16_f32 v{46+b}, v{x0}, v{x1}")
            for b in range(2):
                x0, x1 = X[b][2*i], X[b][2*i+1]
                e(f"v_lshlrev_b32 v{x0}, 16, v{46+b}"); e(f"v_and_b32 v{x1}, 0xffff0000, v{46+b}")
            for b in range(2):
                x0, x1 = X[b][2*i], X[b][2*i+1]
                e(f"v_mul_f32 v{x0}, v{x0}, v{42+b}"); e(f"v_mul_f32 v{x1}, v{x1}, v{42+b}")
            for b in range(2):
                x0, x1 = X[b][2*i], X[b][2*i+1]
                e(f"v_cvt_pk_bf16_f32 v{x0}, v{x0}, v{x1}")
            for b in range(2):
                e(f"ds_write_b32 v5, v{X[b][2*i]} offset:{XN + 1280*b + 4*i}")

    def xp_read(nrows, base_sgpr=None):
        e(f"v_lshrrev_b32 v6, 3, v{vLANE}")
        e(f"v_mul_u32_u24 v6, {nrows*8}, v6")
        e(f"s_mul_i32 s{sT0}, s{sWAVE}, {nrows*2}")
        if base_sgpr is not None: e(f"s_add_u32 s{sT0}, s{sT0}, s{base_sgpr}")
        e(f"v_add_u32 v6, s{sT0}, v6")
        e("s_waitcnt lgkmcnt(0)")
        n = nrows // 2
        for b in range(2):
            for p in range(n):
                e(f"ds_read_b32 v{XP+10*b+p}, v6 offset:{XN + 1280*b + 4*p}")

    def xloads():
        e(f"v_mul_u32_u24 v4, 20, v{vLANE}")
        e(f"buffer_load_dwordx4 v[8:11], v4, {srd(sX)}, 0 offen")
        e(f"buffer_load_dword v12, v4, {srd(sX)}, 0 offen offset:16")
        e(f"buffer_load_dwordx4 v[14:17], v4, {srd(sX)}, 0 offen offset:1280")
        e(f"buffer_load_dword v18, v4, {srd(sX)}, 0 offen offset:1296")

    def unit_addr(RS, nrows, vdst):
        e(f"v_lshrrev_b32 v6, 3, v{vLANE}")
        e(f"v_mul_u32_u24 v6, {nrows*4}, v6")
        e(f"s_mul_i32 s{sT0}, s{sWAVE}, {nrows}")
        e(f"v_add_u32 v6, s{sT0}, v6")
        e(f"s_mov_b32 s{sT0}, {RS}")
        e(f"v_mul_lo_u32 v6, v6, s{sT0}")
        e(f"v_and_b32 v7, 7, v{vLANE}")
        e(f"v_lshl_add_u32 v{vdst}, v7, 4, v6")

    def sel_ops(src, odd, d):
        for b in range(2):
            if not odd:
                e(f"v_and_b32 v{d+2*b}, 0xffff, v{src[b]}")
                e(f"v_lshlrev_b32 v{d+2*b+1}, 16, v{src[b]}")
            else:
                e(f"v_lshrrev_b32 v{d+2*b}, 16, v{src[b]}")
                e(f"v_and_b32 v{d+2*b+1}, 0xffff0000, v{src[b]}")

    def mac16(W, A, sel):
        for dd in range(4):
            for b in range(2):
                e(f"v_dot2c_f32_bf16 v{A+8*b+2*dd}, v{W+dd}, v{sel+2*b}")
                e(f"v_dot2c_f32_bf16 v{A+8*b+2*dd+1}, v{W+dd}, v{sel+2*b+1}")

    def unit_reduce(A, ldsbase):
        swapred([(A+i, A+8+i) for i in range(8)], 5)
        swapred([(A+i, A+4+i) for i in range(4)], 4)
        allreduce([A, A+1, A+2, A+3], "v_add_f32", None, [3])
        e(f"v_lshrrev_b32 v6, 5, v{vLANE}"); e("v_lshlrev_b32 v6, 8, v6")
        e(f"v_and_b32 v7, 7, v{vLANE}"); e("v_lshl_add_u32 v6, v7, 5, v6")
        e(f"v_bfe_u32 v7, v{vLANE}, 4, 1"); e("v_lshl_add_u32 v6, v7, 4, v6")
        e(f"s_lshl_b32 s{sT0}, s{sWAVE}, 9")
        e(f"v_add_u32 v6, s{sT0}, v6")
        e(f"ds_write_b128 v6, v[{A}:{A+3}] offset:{ldsbase}")

    def kv_loads(slot, t):
        e(f"s_lshr_b32 s{sT0}, s{t}, 9")
        if BX: e(f"s_xor_b32 s{sT0}, s{sT0}, s92"); e(f"s_and_b32 s{sT0}, s{sT0}, 1")
        e(f"s_mul_i32 s{sT0}, s{sT0}, 50331648")
        if PERM:
            B = 4 * PERM
            M = -(-(1 << 20) // B)
            assert all((x * M) >> 20 == x // B for x in range(512))
            lim = (512 // B) * B
            e(f"s_and_b32 s{sT1}, s{t}, 511")
            e(f"s_mul_i32 s16, s{sT1}, {M}"); e("s_lshr_b32 s16, s16, 20")
            e(f"s_mul_i32 s16, s16, {B}"); e(f"s_sub_u32 s17, s{sT1}, s16")
            e("s_and_b32 s18, s17, 3"); e(f"s_mul_i32 s18, s18, {PERM}"); e("s_lshr_b32 s17, s17, 2")
            e("s_add_u32 s16, s16, s18"); e("s_add_u32 s16, s16, s17")
            e(f"s_cmp_lt_u32 s{sT1}, {lim}"); e(f"s_cselect_b32 s{sT1}, s16, s{sT1}")
            e(f"s_add_u32 s{sT1}, s{sT1}, s93"); e(f"s_and_b32 s{sT1}, s{sT1}, 511"); e(f"s_mul_i32 s{sT1}, s{sT1}, 3072")
        elif ROT:
            e(f"s_add_u32 s{sT1}, s{t}, s93"); e(f"s_and_b32 s{sT1}, s{sT1}, 511"); e(f"s_mul_i32 s{sT1}, s{sT1}, 3072")
        else:
            e(f"s_and_b32 s{sT1}, s{t}, 511"); e(f"s_mul_i32 s{sT1}, s{sT1}, 3072")
        e(f"s_add_u32 s{sT0}, s{sT0}, s{sT1}")
        e(f"s_cmp_ge_u32 s{t}, 1024"); e(f"s_cselect_b32 s{sT0}, 0xf0000000, s{sT0}")
        e(f"v_add_u32 v{vOFF}, s{sT0}, v{vKV}")
        b = RING + 24 * slot
        for s in range(3): e(f"buffer_load_dwordx4 v[{b+4*s}:{b+4*s+3}], v{vOFF}, {srd(sK)}, 0 offen offset:{128*s}{nt}")
        for s in range(3): e(f"buffer_load_dwordx4 v[{b+12+4*s}:{b+12+4*s+3}], v{vOFF}, {srd(sV)}, 0 offen offset:{128*s}{nt}")

    def wo_dma(lab):
        e(f"s_cmp_lt_u32 s{sR}, 3"); e(f"s_cbranch_scc1 {lab}")
        e(f"s_mul_i32 s{sT0}, s{sH}, {192*1280}"); e(f"s_sub_u32 s{sT1}, s{sR}, 3"); e(f"s_lshl_b32 s{sT1}, s{sT1}, 8")
        e(f"s_add_u32 s{sT0}, s{sT0}, s{sT1}")
        e(f"s_add_u32 s{sAUX2}, s12, s{sT0}"); e(f"s_addc_u32 s{sAUX2+1}, s13, 0")
        e(f"s_mov_b32 s{sAUX2+2}, {191*1280+256}"); e(f"s_mov_b32 s{sAUX2+3}, 0x20000")
        e(f"v_lshrrev_b32 v6, 4, v{vLANE}"); e("v_mul_u32_u24 v6, 12, v6")
        e(f"s_mul_i32 s{sT0}, s{sWAVE}, 48"); e(f"v_add_u32 v6, s{sT0}, v6")
        e("v_mul_u32_u24 v6, 1280, v6")
        e(f"v_and_b32 v7, 15, v{vLANE}"); e("v_lshl_add_u32 v6, v7, 4, v6")
        e(f"s_mov_b32 s{sT1}, 0")
        e(f"s_mul_i32 s{sT0}, s{sWAVE}, 12288"); e(f"s_add_u32 s{sT0}, s{sT0}, {WOL}")
        for i in range(12):
            e(f"s_mov_b32 m0, s{sT0}"); e("s_nop 0")
            e(f"buffer_load_dwordx4 v6, {srd(sAUX2)}, s{sT1} offen{nt} lds")
            if i < 11: e(f"s_add_u32 s{sT1}, s{sT1}, 1280"); e(f"s_add_u32 s{sT0}, s{sT0}, 1024")
        a.label(lab)

    hdr = open("recurrent_scan__mha_block_cached__geglu_ffn__decode.s.ref").read().split("\n")
    out = []
    for l in hdr:
        if not l.startswith(";"): break
        if "@launch" in l or "Override" in l or "grid=ceil" in l: continue
        out.append(l)
    out.append(f"; @launch grid=({NWG},1,1) block=(256,1,1) lds={LDS_BYTES}")
    out += [
        "; One persistent launch, 256 attention workgroups + 24 FFN workgroups (all co-resident).",
        ";  - q projection: 24 workgroups per XCD-slot compute 64-column x 320-row slices of xn@wq and publish partial sums.",
        ";  - attention: the 8 workgroups of a head share its 2x4096 keys as 1024 tiles of 8 keys, handed out by a per-head",
        ";    atomic counter; every wave keeps an online-softmax state per 8-lane group (true running max).",
        ";  - per-workgroup partials (m, l, o) -> 5 workgroups per head combine them and multiply by a 128-column wo slice",
        ";    (MFMA) -> 40 final waves sum over heads, apply silu(FFN) and write the output.",
        ";  - hand-offs between workgroups: write-through stores of {data, tag} granules, polled with L1-bypassing loads;",
        ";    tag = hash(epoch word found in d_ws), the epoch word is advanced at the end of the launch; all spins are bounded.",
        "; Generated by a Python script (register allocation, unrolling and hazard padding are the script's).",
    ]
    out += ['.amdgcn_target "amdgcn-amd-amdhsa--gfx950"', ".text", f".globl {KNAME}", ".p2align 8", f".type {KNAME},@function", f"{KNAME}:"]

    e(f"s_cmp_ge_u32 s2, {NWG}"); e("s_cbranch_scc1 L_end")
    stamp()
    if DBGT: e("s_memrealtime s[98:99]")
    e("s_load_dwordx8 s[4:11], s[0:1], 0")
    if CPF:
        e("s_getpc_b64 s[28:29]")
        a.label("L_pc")
        e("s_cmp_ge_u32 s2, 24"); e("s_cbranch_scc1 L_nocpf")
        e("v_cmp_le_u32 vcc, 192, v0"); e("s_and_saveexec_b64 s[30:31], vcc"); e("s_cbranch_execz L_cpf_rest")
        e("v_and_b32 v6, 63, v0"); e("v_lshlrev_b32 v6, 7, v6")
        for i in range(CPF):
            e("v_min_u32 v7, L_end-L_pc, v6")
            e("v_mov_b32 v5, s29")
            e("v_add_co_u32 v4, vcc, s28, v7"); e("v_addc_co_u32 v5, vcc, 0, v5, vcc")
            e("global_load_dword v255, v[4:5], off")
            e("v_add_u32 v6, 0x2000, v6")
        a.label("L_cpf_rest")
        e("s_mov_b64 exec, s[30:31]")
        a.label("L_nocpf")
    e("s_load_dwordx2 s[12:13], s[0:1], 32")
    e("s_load_dwordx4 s[24:27], s[0:1], 80")
    e("s_load_dwordx4 s[16:19], s[0:1], 48")
    e("s_load_dwordx4 s[20:23], s[0:1], 64")
    e(f"v_and_b32 v{vLANE}, 63, v0")
    e("v_lshrrev_b32 v2, 6, v0")
    e(f"v_readfirstlane_b32 s{sWAVE}, v2")
    e(f"s_and_b32 s{sR}, s2, 7")
    e(f"s_lshr_b32 s{sH}, s2, 3")
    e(f"s_lshl_b32 s{sT1}, s{sR}, 2"); e(f"s_add_u32 s{sH}, s{sH}, s{sT1}"); e(f"s_and_b32 s{sH}, s{sH}, 31")
    e(f"s_lshr_b32 s{sT1}, s{sH}, 2"); e(f"s_sub_u32 s{sR}, s{sR}, s{sT1}"); e(f"s_add_u32 s{sR}, s{sR}, 7"); e(f"s_and_b32 s{sR}, s{sR}, 7")
    e("s_lshr_b32 s94, s2, 3"); e("s_sub_u32 s94, s94, 3")
    e("s_mul_i32 s95, s94, 43"); e("s_lshr_b32 s95, s95, 8")
    e("s_and_b32 s96, s2, 7"); e("s_lshl_b32 s96, s96, 2"); e("s_add_u32 s96, s96, s95")
    e("s_mul_i32 s95, s95, 6"); e("s_sub_u32 s95, s94, s95")
    e("s_cmp_ge_u32 s95, 3"); e("s_cselect_b32 s15, 1, 0")
    e("s_mul_i32 s14, s15, 3"); e("s_sub_u32 s14, s95, s14")
    e(f"s_mov_b32 s{sX+2}, 2560"); e(f"s_mov_b32 s{sX+3}, 0x20000")
    e(f"s_mov_b32 s{sWS+2}, {WS_REC}"); e(f"s_mov_b32 s{sWS+3}, 0x20000")
    e(f"s_mov_b32 s{sOUT+2}, 2560"); e(f"s_mov_b32 s{sOUT+3}, 0x20000")
    e(f"v_mul_u32_u24 v4, 20, v{vLANE}")
    e("s_waitcnt lgkmcnt(0)")
    stamp(2)
    e(f"s_mov_b32 s{sX}, s4"); e(f"s_mov_b32 s{sX+1}, s5")
    e(f"s_load_dword s{sE}, s[26:27], 0")
    e(f"s_mov_b32 s{sWS}, s26"); e(f"s_mov_b32 s{sWS+1}, s27")
    e(f"s_mov_b32 s{sOUT}, s22"); e(f"s_mov_b32 s{sOUT+1}, s23")
    e(f"s_cmp_ge_u32 s2, 256"); e("s_cbranch_scc1 L_ffn")

    e("s_cmp_ge_u32 s94, 24"); e("s_cbranch_scc1 L_setup")
    xloads()
    e(f"s_mul_i32 s{sT0}, s96, 384"); e(f"s_lshl_b32 s{sT1}, s14, 7"); e(f"s_add_u32 s{sT0}, s{sT0}, s{sT1}")
    e(f"s_mul_i32 s{sT1}, s15, {320*12288}"); e(f"s_add_u32 s{sT0}, s{sT0}, s{sT1}")
    e(f"s_add_u32 s{sAUX}, s10, s{sT0}"); e(f"s_addc_u32 s{sAUX+1}, s11, 0")
    e(f"s_mov_b32 s{sAUX+2}, {319*12288+128}"); e(f"s_mov_b32 s{sAUX+3}, 0x20000")
    unit_addr(12288, 10, 4)
    e(f"s_mov_b32 s{sT1}, 0")
    for i in range(10):
        e(f"buffer_load_dwordx4 v[{WQ+4*i}:{WQ+4*i+3}], v4, {srd(sAUX)}, s{sT1} offen{nt}")
        if i < 9: e(f"s_add_u32 s{sT1}, s{sT1}, 12288")
    a.label("L_setup")
    if BX: e(f"s_and_b32 s92, s{sH}, 1")
    if ROT and ROT < 1000: e(f"s_mul_i32 s93, s{sH}, {ROT}")
    if ROT >= 1000:
        e(f"s_add_u32 s93, s{sH}, {ROT}"); e(f"s_mul_i32 s93, s93, 0x9E3779B1"); e("s_lshr_b32 s93, s93, 23")
    e(f"s_mul_i32 s{sT1}, s{sH}, 1572864")
    e(f"s_add_u32 s{sK}, s6, s{sT1}"); e(f"s_addc_u32 s{sK+1}, s7, 0"); e(f"s_mov_b32 s{sK+3}, 0x20000")
    e(f"s_add_u32 s{sV}, s8, s{sT1}"); e(f"s_addc_u32 s{sV+1}, s9, 0"); e(f"s_mov_b32 s{sV+3}, 0x20000")
    if W0PRE:
        e(f"s_mov_b32 s{sK+2}, {KVREC}"); e(f"s_mov_b32 s{sV+2}, {KVREC}")
    else:
        e(f"s_cmp_eq_u32 s{sWAVE}, 0")
        e(f"s_cselect_b32 s{sK+2}, 0, {KVREC}"); e(f"s_cselect_b32 s{sV+2}, 0, {KVREC}")
    e(f"s_lshl_b32 s{sT1}, s{sH}, 8"); e(f"s_add_u32 s{sT1}, s{sT1}, {CNT}")
    e(f"s_add_u32 s{sCTR}, s26, s{sT1}"); e(f"s_addc_u32 s{sCTR+1}, s27, 0")
    e(f"v_lshrrev_b32 v6, 3, v{vLANE}"); e(f"v_mul_u32_u24 v{vKV}, 384, v6")
    e(f"v_and_b32 v7, 7, v{vLANE}"); e(f"v_lshl_add_u32 v{vKV}, v7, 4, v{vKV}")
    e(f"s_lshl_b32 s{sT0}, s{sR}, 2"); e(f"s_add_u32 s{sT0}, s{sT0}, s{sWAVE}"); e(f"s_mul_i32 s{sT0}, s{sT0}, {NS}")
    for d in range(NS): e(f"s_add_u32 s{sTILE+d}, s{sT0}, {d}")
    e(f"s_or_b32 s{sT0}, s95, s{sWAVE}"); e(f"s_cmp_lg_u32 s{sT0}, 0"); e("s_cbranch_scc1 L_noinit")
    e("s_cmp_ge_u32 s94, 24"); e("s_cbranch_scc1 L_noinit")
    e(f"s_lshl_b32 s{sT1}, s96, 8"); e(f"s_add_u32 s{sT1}, s{sT1}, {CNT}")
    e(f"s_add_u32 s16, s26, s{sT1}"); e(f"s_addc_u32 s17, s27, 0")
    e(f"s_mov_b32 s{sN}, {32*NS}")
    e(f"s_atomic_swap s{sN}, s[16:17], 0 glc")
    a.label("L_noinit")
    e("s_cmp_ge_u32 s94, 24"); e("s_cbranch_scc1 L_nowq")
    stamp(2)
    e("s_waitcnt vmcnt(10)")
    stamp(2)
    layernorm()
    e(f"s_mul_i32 s{sT1}, s15, 640")
    xp_read(10, sT1)
    for d in range(EARLY): kv_loads(d, sTILE + d)
    for i in range(16): e(f"v_mov_b32 v{20+i}, 0")
    e("s_waitcnt lgkmcnt(0)")
    stamp(2)
    for i in range(10):
        e(f"s_waitcnt vmcnt({6*EARLY + 9 - i})")
        sel_ops([XP + (i >> 1), XP + 10 + (i >> 1)], i & 1, 52)
        mac16(WQ + 4*i, 20, 52)
    stamp(2)
    unit_reduce(20, QP)
    e("s_waitcnt lgkmcnt(0)")
    e("s_barrier")
    stamp(2)
    e(f"s_cmp_lg_u32 s{sWAVE}, 0"); e("s_cbranch_scc1 L_kvrest0")
    e(f"v_lshlrev_b32 v6, 3, v{vLANE}")
    for w in range(4): e(f"ds_read_b64 v[{20+2*w}:{21+2*w}], v6 offset:{QP + 512*w}")
    mktag()
    e(f"v_lshrrev_b32 v6, 5, v{vLANE}"); e("v_mul_u32_u24 v6, 3072, v6")
    e(f"v_and_b32 v7, 31, v{vLANE}"); e("v_lshl_add_u32 v6, v7, 5, v6")
    e(f"s_lshl_b32 s{sT0}, s96, 13"); e(f"s_lshl_b32 s{sT1}, s14, 10"); e(f"s_add_u32 s{sT0}, s{sT0}, s{sT1}")
    e(f"s_lshl_b32 s{sT1}, s15, 4"); e(f"s_add_u32 s{sT0}, s{sT0}, s{sT1}")
    e(f"s_add_u32 s{sT0}, s{sT0}, {QBOX}")
    e("s_waitcnt lgkmcnt(0)")
    e("v_add_f32 v20, v20, v22"); e("v_add_f32 v21, v21, v23"); e("v_add_f32 v24, v24, v26"); e("v_add_f32 v25, v25, v27")
    e("v_add_f32 v40, v20, v24"); e("v_add_f32 v42, v21, v25")
    e(f"v_mov_b32 v41, s{sTAG}"); e(f"v_mov_b32 v43, s{sTAG}")
    e(f"buffer_store_dwordx4 v[40:43], v6, {srd(sWS)}, s{sT0} offen {SCS}")
    if PUB1: e("s_barrier")
    e("s_branch L_kvrest" if W0PRE else "s_branch L_qwait")
    a.label("L_kvrest0")
    if PUB1: e("s_barrier")
    e("s_branch L_kvrest")
    a.label("L_nowq")
    if not W0PRE:
        e(f"s_cmp_eq_u32 s{sWAVE}, 0"); e("s_cbranch_scc1 L_qwait")
    for d in range(EARLY): kv_loads(d, sTILE + d)
    a.label("L_kvrest")
    for d in range(EARLY, PRE):
        if STG: e(f"s_waitcnt vmcnt({6*(STG-1)})")
        kv_loads(d, sTILE + d)
    a.label("L_qwait")
    stamp(2)
    if PC:
        e(f"v_and_b32 v6, 7, v{vLANE}"); e("v_lshlrev_b32 v6, 5, v6")
        e(f"v_lshrrev_b32 v7, 5, v{vLANE}"); e("v_lshl_add_u32 v6, v7, 4, v6")
        e(f"v_bfe_u32 v7, v{vLANE}, 4, 1"); e("v_lshl_add_u32 v6, v7, 3, v6")
        e(f"s_mul_i32 s{sT0}, s{sWAVE}, 768"); e(f"v_add_u32 v236, s{sT0}, v6")
        e("v_and_b32 v5, 127, v0"); e("v_lshrrev_b32 v4, 7, v0")
        e("v_mul_u32_u24 v6, 3072, v4"); e("v_lshl_add_u32 v237, v5, 3, v6")
        e("v_lshlrev_b32 v238, 5, v4")
        e("v_lshlrev_b32 v6, 11, v4"); e("v_lshl_add_u32 v239, v5, 4, v6")
        e(f"v_and_b32 v24, 7, v{vLANE}"); e("v_and_b32 v25, 1, v24"); e("v_lshrrev_b32 v24, 1, v24")
        e("v_cmp_eq_u32 vcc, 1, v25")
        e("v_mov_b32 v26, 0x0c0c0100"); e("v_mov_b32 v27, 0x01000c0c"); e("v_mov_b32 v28, 0x0c0c0302"); e("v_mov_b32 v29, 0x03020c0c")
        e("v_cndmask_b32 v26, v26, v27, vcc"); e("v_cndmask_b32 v28, v28, v29, vcc")
        e("v_mov_b32 v27, 0x0c0c0c0c")
        for r in range(4):
            e(f"v_cmp_eq_u32 vcc, {r}, v24")
            e(f"v_cndmask_b32 v{240+r}, v27, v26, vcc"); e(f"v_cndmask_b32 v{244+r}, v27, v28, vcc")
        e(f"v_lshrrev_b32 v6, 4, v{vLANE}"); e("v_mul_u32_u24 v6, 24, v6")
        e(f"v_bfe_u32 v7, v{vLANE}, 3, 1"); e("v_mul_u32_u24 v7, 384, v7"); e("v_add_u32 v6, v6, v7")
        e(f"s_mul_i32 s{sT0}, s{sWAVE}, 96"); e(f"v_add_u32 v248, s{sT0}, v6")
        e(f"v_lshrrev_b32 v6, 5, v{vLANE}"); e("v_lshlrev_b32 v6, 9, v6")
        e(f"v_and_b32 v7, 15, v{vLANE}"); e("v_lshl_add_u32 v6, v7, 5, v6")
        e(f"v_bfe_u32 v7, v{vLANE}, 4, 1"); e("v_lshl_add_u32 v6, v7, 4, v6")
        e(f"s_lshl_b32 s{sT0}, s{sWAVE}, 10"); e(f"v_add_u32 v249, s{sT0}, v6")
        e("v_cmp_le_u32 vcc, 96, v0")
        e("v_cndmask_b32 v7, 0, 1, vcc")
        e("v_mul_u32_u24 v5, 96, v7"); e("v_sub_u32 v5, v0, v5")
        e("v_lshlrev_b32 v6, 11, v7"); e("v_lshl_add_u32 v250, v5, 4, v6")
        e("v_mul_u32_u24 v6, 384, v7"); e("v_lshl_add_u32 v251, v5, 2, v6")
        e(f"v_lshlrev_b32 v6, 4, v{vLANE}"); e(f"s_mul_i32 s{sT0}, s{sWAVE}, 12288"); e(f"v_add_u32 v252, s{sT0}, v6")
    e("s_waitcnt lgkmcnt(0)")
    mktag()
    e(f"s_cmp_lg_u32 s{sWAVE}, 0"); e("s_cbranch_scc1 L_qbar")
    e("s_setprio 2")
    e(f"s_lshl_b32 s{sT0}, s{sH}, 13"); e(f"s_add_u32 s{sT0}, s{sT0}, {QBOX}")
    e(f"s_add_u32 s{sT1}, s{sT0}, 3072")
    e(f"v_lshlrev_b32 v6, 5, v{vLANE}")
    e(f"v_and_b32 v7, 31, v{vLANE}"); e("v_lshlrev_b32 v7, 5, v7"); e("v_add_u32 v7, 2048, v7")
    loads = []
    for b, so in ((0, sT0), (1, sT1)):
        base = (204 if W0PRE else 60) + 16 * b
        loads.append(f"buffer_load_dwordx4 v[{base}:{base+3}], v6, {srd(sWS)}, s{so} offen {SCL}")
        loads.append(f"buffer_load_dwordx4 v[{base+4}:{base+7}], v6, {srd(sWS)}, s{so} offen offset:16 {SCL}")
        loads.append(f"buffer_load_dwordx4 v[{base+8}:{base+11}], v7, {srd(sWS)}, s{so} offen {SCL}")
        loads.append(f"buffer_load_dwordx4 v[{base+12}:{base+15}], v7, {srd(sWS)}, s{so} offen offset:16 {SCL}")
    lane_poll("L_pq", loads, [(205 if W0PRE else 61) + 2*i for i in range(16)], 52)
    e(f"v_lshlrev_b32 v6, 2, v{vLANE}")
    e(f"v_and_b32 v7, 31, v{vLANE}"); e("v_lshlrev_b32 v7, 2, v7")
    for b in range(2):
        base = (204 if W0PRE else 60) + 16 * b
        e(f"v_add_f32 v{base}, v{base}, v{base+4}"); e(f"v_add_f32 v{base+2}, v{base+2}, v{base+6}")
        e(f"v_add_f32 v{base+8}, v{base+8}, v{base+12}"); e(f"v_add_f32 v{base+10}, v{base+10}, v{base+14}")
        e(f"v_cvt_pk_bf16_f32 v{base}, v{base}, v{base+2}"); e(f"v_cvt_pk_bf16_f32 v{base+8}, v{base+8}, v{base+10}")
        e(f"ds_write_b32 v6, v{base} offset:{Q + 384*b}")
        e(f"ds_write_b32 v7, v{base+8} offset:{Q + 384*b + 256}")
    e("s_waitcnt lgkmcnt(0)")
    e("s_setprio 0")
    stamp(2)
    e(f"s_mov_b32 s{sK+2}, {KVREC}"); e(f"s_mov_b32 s{sV+2}, {KVREC}")
    a.label("L_qbar")
    e("s_barrier")
    stamp()
    if DBGT: e("s_memrealtime s[66:67]")
    e(f"s_mov_b32 s{sN}, {1 if CH1 else DL}")
    e(f"v_and_b32 v7, 7, v{vLANE}"); e("v_lshlrev_b32 v6, 4, v7")
    if BX: e(f"s_mul_i32 s{sT0}, s92, 384"); e(f"v_add_u32 v6, s{sT0}, v6")
    for s in range(3): e(f"ds_read_b128 v[{vQ0+4*s}:{vQ0+4*s+3}], v6 offset:{Q + 128*s}")
    if not W0PRE:
        e(f"s_cmp_lg_u32 s{sWAVE}, 0"); e("s_cbranch_scc1 L_w0kv")
        for d in range(min(PRE, NS)): kv_loads(d, sTILE + d)
        a.label("L_w0kv")
    for d in range(min(PRE, NS), NS): kv_loads(d, sTILE + d)
    if not WOLATE: wo_dma('L_nowo')
    if WOLATE >= 2:
        e(f"s_mul_i32 s{sT0}, s{sH}, {192*1280}"); e(f"s_max_u32 s{sT1}, s{sR}, 3"); e(f"s_sub_u32 s{sT1}, s{sT1}, 3"); e(f"s_lshl_b32 s{sT1}, s{sT1}, 8")
        e(f"s_add_u32 s{sT0}, s{sT0}, s{sT1}")
        e(f"s_add_u32 s{sAUX2}, s12, s{sT0}"); e(f"s_addc_u32 s{sAUX2+1}, s13, 0")
        e(f"s_cmp_lt_u32 s{sR}, 3"); e(f"s_cselect_b32 s{sAUX2+2}, 0, {191*1280+256}"); e(f"s_mov_b32 s{sAUX2+3}, 0x20000")
        e(f"v_lshrrev_b32 v6, 4, v{vLANE}"); e("v_mul_u32_u24 v6, 12, v6")
        e(f"s_mul_i32 s{sT0}, s{sWAVE}, 48"); e(f"v_add_u32 v6, s{sT0}, v6")
        e("v_mul_u32_u24 v6, 1280, v6")
        e(f"v_and_b32 v7, 15, v{vLANE}"); e("v_lshl_add_u32 v254, v7, 4, v6")
        e(f"s_mul_i32 s24, s{sWAVE}, 12288"); e(f"s_add_u32 s24, s24, {WOL}")
        if WOLATE in (3, 5): e("s_mov_b32 m0, s24"); e("s_mov_b32 s25, 0")
        if PC:
            e(f"s_lshl_b32 s{sT0}, s{sH}, 15"); e(f"s_add_u32 s4, s{sT0}, {OBOX}")
            for p in range(1, 8): e(f"s_add_u32 s{4+p}, s4, {4096*p}")
            e(f"s_lshl_b32 s{sT1}, s{sR}, 12"); e(f"s_add_u32 s13, s4, s{sT1}")
            e(f"s_mul_i32 s{sT0}, s{sH}, 5"); e(f"s_add_u32 s{sT0}, s{sT0}, s{sR}"); e(f"s_sub_u32 s{sT0}, s{sT0}, 3")
            e(f"s_lshl_b32 s{sT0}, s{sT0}, 11"); e(f"s_add_u32 s12, s{sT0}, {YBOX}")
    for i in range(24): e(f"v_mov_b32 v{vACC0+i}, 0")
    e(f"v_mov_b32 v{vM0}, 0xff000000"); e(f"v_mov_b32 v{vL0}, 0")
    e(f"v_lshlrev_b32 v6, 2, v{vLANE}"); e(f"s_mul_i32 s{sT0}, s{sWAVE}, 768"); e(f"v_add_u32 v6, s{sT0}, v6")
    for c in range(2):
        for k in range(3): e(f"ds_write_b32 v6, v{vL0} offset:{PART + 3072*c + 256*k}")
    e(f"s_lshl_b32 s{sT0}, s{sWAVE}, 3"); e(f"v_mov_b32 v7, s{sT0}")
    e(f"ds_write_b64 v7, v[{vM0}:{vL0}] offset:{STAT}"); e(f"ds_write_b64 v7, v[{vM0}:{vL0}] offset:{STAT+32}")
    e(f"s_mov_b32 s{sLIM}, 512")
    if BX: e(f"s_mul_i32 s{sPOFF}, s92, 3072")
    else: e(f"s_mov_b32 s{sPOFF}, 0")
    e("s_mov_b32 s14, 0x3d93cd3a"); e("s_mov_b32 s15, 0x3fb8aa3b")
    e("s_waitcnt lgkmcnt(0)")
    e(f"s_atomic_add s{sN}, s[{sCTR}:{sCTR+1}], 0 glc")

    def tile_compute(slot, q, acc, m, l, waitV):
        b = RING + 24 * slot
        e(f"v_mov_b32 v46, 0"); e("v_mov_b32 v47, 0")
        for i in range(12): e(f"v_dot2c_f32_bf16 v{46+(i&1)}, v{b+i}, v{q+i}")
        e("v_add_f32 v46, v46, v47")
        allreduce([46], "v_add_f32", None, [0, 1, 2])
        e("v_cvt_pk_bf16_f32 v46, v46, v46"); e("v_and_b32 v46, 0xffff0000, v46")
        e("v_mul_f32 v46, s14, v46")
        e("v_cvt_pk_bf16_f32 v46, v46, v46"); e("v_and_b32 v46, 0xffff0000, v46")
        e("v_mul_f32 v46, s15, v46")
        e(f"v_max_f32 v47, v{m}, v46")
        e(f"v_sub_f32 v48, v{m}, v47"); e("v_sub_f32 v49, v46, v47")
        e("v_exp_f32 v48, v48"); e("v_exp_f32 v49, v49")
        e(f"v_mov_b32 v{m}, v47")
        e(f"v_fma_f32 v{l}, v{l}, v48, v49")
        e("v_cvt_pk_bf16_f32 v50, v49, 0"); e("v_lshlrev_b32 v51, 16, v50")
        for i in range(12):
            e(f"v_pk_mul_f32 v[{acc+2*i}:{acc+2*i+1}], v[{acc+2*i}:{acc+2*i+1}], v[48:49] op_sel_hi:[1,0]")
        e(f"s_waitcnt vmcnt({waitV})")
        for i in range(12):
            e(f"v_dot2c_f32_bf16 v{acc+2*i}, v{b+12+i}, v50")
            e(f"v_dot2c_f32_bf16 v{acc+2*i+1}, v{b+12+i}, v51")
    def refill(d):
        if STATIC:
            if first[0]:
                e(f"s_lshl_b32 s{sT0}, s{sR}, 2"); e(f"s_add_u32 s{sT0}, s{sT0}, s{sWAVE}"); e(f"s_mul_i32 s{sT0}, s{sT0}, {DL}")
                e(f"s_add_u32 s{sTILE+d}, s{sT0}, {32*NS + d}")
            else:
                e(f"s_add_u32 s{sTILE+d}, s{sTILE+d}, {32*DL}")
        elif CH1 and THR and not first[0]:
            e("s_waitcnt lgkmcnt(0)")
            e(f"s_mov_b32 s{sTILE+d}, s{sN}")
            e(f"s_cmp_ge_u32 s{sN}, {THR}"); e("s_cselect_b32 s95, 1, 0")
            e(f"s_cbranch_scc1 L_nopre_{d}")
            e(f"s_mov_b32 s{sN}, 1")
            e(f"s_atomic_add s{sN}, s[{sCTR}:{sCTR+1}], 0 glc")
            a.label(f"L_nopre_{d}")
        elif CH1 and ZS and not first[0]:
            e("s_waitcnt lgkmcnt(0)")
            e(f"s_mov_b32 s{sTILE+d}, s{sN}")
            e("s_add_u32 s94, s94, 1")
            e(f"s_cmp_lt_u32 s{sN}, {1024 - ZS}"); e(f"s_cbranch_scc1 L_grab_{d}")
            e(f"s_cmp_ge_u32 s{sN}, 1024"); e(f"s_cbranch_scc1 L_nograb_{d}")
            e(f"s_cmp_eq_u32 s{sWAVE}, 0"); e(f"s_cbranch_scc1 L_grab_{d}")
            e(f"s_sub_u32 s{sT0}, s{sN}, {32*NS}"); e(f"s_lshl_b32 s{sT0}, s{sT0}, 1")
            e(f"s_mul_i32 s{sT1}, s94, {ZR}")
            e(f"s_cmp_le_u32 s{sT0}, s{sT1}"); e(f"s_cbranch_scc1 L_grab_{d}")
            e(f"s_mov_b32 s{sN}, 1024")
            e(f"s_branch L_nograb_{d}")
            a.label(f"L_grab_{d}")
            e(f"s_mov_b32 s{sN}, 1")
            e(f"s_atomic_add s{sN}, s[{sCTR}:{sCTR+1}], 0 glc")
            a.label(f"L_nograb_{d}")
        elif CH1:
            e("s_waitcnt lgkmcnt(0)")
            e(f"s_mov_b32 s{sTILE+d}, s{sN}")
            if ZS: e("s_add_u32 s94, s94, 1")
            e(f"s_mov_b32 s{sN}, 1")
            e(f"s_atomic_add s{sN}, s[{sCTR}:{sCTR+1}], 0 glc")
        elif d == 0:
            e("s_waitcnt lgkmcnt(0)")
            e(f"s_mov_b32 s{sTILE}, s{sN}")
            e(f"s_add_u32 s{sNEXT}, s{sN}, 1")
            e(f"s_mov_b32 s{sN}, {DL}")
            e(f"s_atomic_add s{sN}, s[{sCTR}:{sCTR+1}], 0 glc")
        else:
            e(f"s_mov_b32 s{sTILE+d}, s{sNEXT}")
            if d < DL - 1: e(f"s_add_u32 s{sNEXT}, s{sNEXT}, 1")
        if WOLATE in (3, 5) and not first[0]:
            e(f"s_cmp_ge_u32 s{sTILE+d}, 1024"); e(f"s_cbranch_scc1 L_dma_{d}")
            kv_loads(d, sTILE + d)
            a.label(f"L_rj_{d}")
        else:
            kv_loads(d, sTILE + d)
    first = [True]
    if ZS: e("s_mov_b32 s94, 0")
    if THR: e("s_mov_b32 s95, 0")
    order = list(range(NS))
    for d in range(NS):
        younger = len(order) - 1 - order.index(d)
        e(f"s_waitcnt vmcnt({6*younger+3})")
        tile_compute(d, vQ0, vACC0, vM0, vL0, 6*younger)
        order.remove(d)
        if d < DL:
            refill(d); order.append(d)
    first[0] = False
    a.label("L_loop")
    for d in range(DL):
        e(f"s_cmp_ge_u32 s{sTILE+d}, s{sLIM}"); e(f"s_cbranch_scc1 L_sw_{d}")
        a.label(f"L_cont_{d}")
        e(f"s_waitcnt vmcnt({6*(DL-1)+3})")
        if THR:
            e("s_cmp_eq_u32 s95, 0"); e(f"s_cbranch_scc1 L_nojit_{d}")
            e(f"s_mov_b32 s{sN}, 1")
            e(f"s_atomic_add s{sN}, s[{sCTR}:{sCTR+1}], 0 glc")
            a.label(f"L_nojit_{d}")
        tile_compute(d, vQ0, vACC0, vM0, vL0, 6*(DL-1))
        refill(d)
    e("s_branch L_loop")
    if WOLATE == 5:
        assert DL == 2
        for d in range(DL):
            a.label(f"L_dma_{d}")
            stamp(4)
            e(f"s_cmp_ge_u32 s{sTILE+1-d}, 1024"); e(f"s_cbranch_scc1 L_dma2_{d}")
            kv_loads(d, sTILE + d)
            e(f"s_branch L_rj_{d}")
            a.label(f"L_dma2_{d}")
            for k in range(12):
                e(f"buffer_load_dwordx4 v254, {srd(sAUX2)}, s25 offen{nt} lds")
                e("s_add_u32 m0, m0, 1024"); e("s_add_u32 s25, s25, 1280")
            e(f"s_branch L_rj_{d}")
    if WOLATE == 3:
        assert DL == 2
        for d in range(DL):
            a.label(f"L_dma_{d}")
            stamp(4)
            for k in range(6):
                e(f"buffer_load_dwordx4 v254, {srd(sAUX2)}, s25 offen{nt} lds")
                e("s_add_u32 m0, m0, 1024"); e("s_add_u32 s25, s25, 1280")
            e(f"s_branch L_rj_{d}")
    for d in range(DL):
        a.label(f"L_sw_{d}")
        e(f"s_cmp_ge_u32 s{sTILE+d}, 1024"); e("s_cbranch_scc1 L_loopend")
        e(f"s_call_b64 s[{sRET1}:{sRET1+1}], L_switch")
        e(f"s_branch L_cont_{d}")
    a.label("L_switch")
    e(f"s_call_b64 s[{sRET2}:{sRET2+1}], L_flush")
    for i in range(24): e(f"v_mov_b32 v{vACC0+i}, 0")
    e(f"v_mov_b32 v{vM0}, 0xff000000"); e(f"v_mov_b32 v{vL0}, 0")
    e(f"v_and_b32 v7, 7, v{vLANE}"); e("v_lshlrev_b32 v6, 4, v7")
    if BX:
        e(f"s_xor_b32 s{sT0}, s92, 1"); e(f"s_mul_i32 s{sT0}, s{sT0}, 384"); e(f"v_add_u32 v6, s{sT0}, v6")
        for s_ in range(3): e(f"ds_read_b128 v[{vQ0+4*s_}:{vQ0+4*s_+3}], v6 offset:{Q + 128*s_}")
        e(f"s_mov_b32 s{sLIM}, 1024"); e(f"s_sub_u32 s{sPOFF}, 3072, s{sPOFF}")
    else:
        for s_ in range(3): e(f"ds_read_b128 v[{vQ0+4*s_}:{vQ0+4*s_+3}], v6 offset:{Q + 384 + 128*s_}")
        e(f"s_mov_b32 s{sLIM}, 1024"); e(f"s_mov_b32 s{sPOFF}, 3072")
    e("s_waitcnt lgkmcnt(0)")
    e(f"s_setpc_b64 s[{sRET1}:{sRET1+1}]")
    def flush_code():
        acc = vACC0
        e(f"v_mov_b32 v46, v{vM0}")
        e(f"v_add_u32 v6, s{sPOFF}, v236")
        e(f"s_lshl_b32 s{sT0}, s{sWAVE}, 3"); e(f"s_lshr_b32 s{sT1}, s{sPOFF}, 6"); e(f"s_and_b32 s{sT1}, s{sT1}, 32"); e(f"s_add_u32 s{sT0}, s{sT0}, s{sT1}")
        allreduce([46], "v_max_f32", [47], [3])
        e(f"v_mov_b32 v7, s{sT0}")
        allreduce([46], "v_max_f32", [47], [4, 5])
        e(f"v_sub_f32 v48, v{vM0}, v46")
        e("v_exp_f32 v48, v48")
        e(f"v_mul_f32 v47, v{vL0}, v48")
        for i in range(12):
            e(f"v_pk_mul_f32 v[{acc+2*i}:{acc+2*i+1}], v[{acc+2*i}:{acc+2*i+1}], v[48:49] op_sel_hi:[1,0]")
        prs5 = [(acc+8*s_+i, acc+8*s_+4+i) for s_ in range(3) for i in range(4)]
        e("v_add_f32_dpp v47, v47, v47 row_ror:8 row_mask:0xf bank_mask:0xf")
        for x, y in prs5: e(f"v_permlane32_swap_b32 v{x}, v{y}")
        e("v_mov_b32 v49, v47")
        for x, y in prs5: e(f"v_add_f32 v{x}, v{x}, v{y}")
        e("v_permlane16_swap_b32 v47, v49")
        prs4 = [(acc+8*s_+i, acc+8*s_+2+i) for s_ in range(3) for i in range(2)]
        for x, y in prs4: e(f"v_permlane16_swap_b32 v{x}, v{y}")
        e("v_add_f32 v47, v47, v49")
        for x, y in prs4: e(f"v_add_f32 v{x}, v{x}, v{y}")
        e("v_mov_b32 v49, v47")
        allreduce([acc+8*s_+i for s_ in range(3) for i in range(2)], "v_add_f32", None, [3])
        e("v_permlane32_swap_b32 v47, v49")
        for s_ in range(3): e(f"ds_write_b64 v6, v[{acc+8*s_}:{acc+8*s_+1}] offset:{PART + 256*s_}")
        e("v_add_f32 v47, v47, v49")
        e(f"ds_write_b64 v7, v[46:47] offset:{STAT}")
    a.label("L_flush")
    flush_code()
    e(f"s_setpc_b64 s[{sRET2}:{sRET2+1}]")
    a.label("L_loopend")
    stamp()
    if DBGT: e("s_memrealtime s[64:65]")
    if WOLATE == 1: wo_dma('L_nowo')
    if WOLATE in (3, 5):
        a.label("L_dmafix")
        e("s_cmp_ge_u32 s25, 15360"); e("s_cbranch_scc1 L_dmafix_done")
        e(f"buffer_load_dwordx4 v254, {srd(sAUX2)}, s25 offen{nt} lds")
        e("s_add_u32 m0, m0, 1024"); e("s_add_u32 s25, s25, 1280")
        e("s_branch L_dmafix")
        a.label("L_dmafix_done")
    if WOLATE == 2:
        n0 = len(a.L)
        flush_code()
        code = a.L[n0:]; del a.L[n0:]
        e("s_mov_b32 m0, s24")
        e("s_mov_b32 s25, 0")
        step = max(1, len(code) // 13)
        k = 0
        for j, l in enumerate(code):
            a.L.append(l)
            if j % step == step - 1 and k < 12:
                a.L.append(f"buffer_load_dwordx4 v254, {srd(sAUX2)}, s25 offen{nt} lds")
                if k < 11:
                    a.L.append("s_add_u32 m0, m0, 1024"); a.L.append("s_add_u32 s25, s25, 1280")
                k += 1
        assert k == 12
    else:
        e(f"s_call_b64 s[{sRET2}:{sRET2+1}], L_flush")
    e("s_waitcnt lgkmcnt(0)")
    stamp(3)
    e("s_barrier")
    e(f"s_bitcmp1_b32 s{sWAVE}, 0"); e("s_cselect_b32 exec_hi, 0, -1")
    for w in range(4): e(f"ds_read_b64 v[{20+2*w}:{21+2*w}], v237 offset:{PART + 768*w}")
    e(f"ds_read_b128 v[28:31], v238 offset:{STAT}"); e(f"ds_read_b128 v[32:35], v238 offset:{STAT+16}")
    e("s_mov_b32 vcc_lo, 0xaaaaaaaa"); e("s_mov_b32 vcc_hi, 0xaaaaaaaa")
    e(f"v_mov_b32 v43, s{sTAG}")
    e("s_waitcnt lgkmcnt(0)")
    e("v_max_f32 v36, v28, v30"); e("v_max3_f32 v36, v36, v32, v34")
    for w in range(4): e(f"v_sub_f32 v{28+2*w}, v{28+2*w}, v36")
    for w in range(4): e(f"v_exp_f32 v{28+2*w}, v{28+2*w}")
    e("v_mul_f32 v40, v20, v28"); e("v_mul_f32 v41, v21, v28"); e("v_mul_f32 v37, v29, v28")
    for w in range(1, 4):
        e(f"v_fmac_f32 v40, v{20+2*w}, v{28+2*w}"); e(f"v_fmac_f32 v41, v{21+2*w}, v{28+2*w}"); e(f"v_fmac_f32 v37, v{29+2*w}, v{28+2*w}")
    e("v_cndmask_b32 v42, v36, v37, vcc")
    e(f"buffer_store_dwordx4 v[40:43], v239, {srd(sWS)}, s13 offen {SCS}")
    a.label("L_pub_done")
    e("s_mov_b64 exec, -1")
    if DBGT: e("s_memrealtime s[68:69]")
    if WOLATE == 4:
        e("s_mov_b32 m0, s24"); e("s_mov_b32 s25, 0")
        for k in range(12):
            e(f"buffer_load_dwordx4 v254, {srd(sAUX2)}, s25 offen{nt} lds")
            if k < 11: e("s_add_u32 m0, m0, 1024"); e("s_add_u32 s25, s25, 1280")
    stamp()
    e(f"s_cmp_lt_u32 s{sR}, 3"); e("s_cbranch_scc1 L_final")
    def wo_reads():
        for i in range(12): e(f"ds_read_b128 v[{100+4*i}:{103+4*i}], v252 offset:{WOL + 1024*i}")
    e(f"s_cmp_eq_u32 s{sWAVE}, 3"); e("s_cbranch_scc1 L_wo_w3")
    lane_poll("L_p1s", [f"buffer_load_dwordx4 v[{60+4*p}:{63+4*p}], v250, {srd(sWS)}, s{4+p} offen {SCL}" for p in range(8)], [63+4*p for p in range(8)], 52)
    stamp(3)
    if PROF == 3: e(f"s_sub_u32 s97, {SPIN}, s{sCNT}")
    wo_reads()
    for p in range(8): e(f"v_mov_b32_dpp v{8+p}, v{62+4*p} quad_perm:[0,0,2,2] row_mask:0xf bank_mask:0xf")
    for p in range(8): e(f"v_mov_b32_dpp v{63+4*p}, v{62+4*p} quad_perm:[1,1,3,3] row_mask:0xf bank_mask:0xf")
    e("v_max3_f32 v36, v8, v9, v10"); e("v_max3_f32 v37, v11, v12, v13"); e("v_max3_f32 v36, v36, v14, v15"); e("v_max_f32 v36, v36, v37")
    for p in range(8): e(f"v_sub_f32 v{8+p}, v{8+p}, v36")
    for p in range(8): e(f"v_exp_f32 v{8+p}, v{8+p}")
    e("v_mul_f32 v40, v60, v8"); e("v_mul_f32 v41, v61, v8"); e("v_mul_f32 v37, v63, v8")
    for p in range(1, 8):
        e(f"v_fmac_f32 v37, v{63+4*p}, v{8+p}"); e(f"v_fmac_f32 v40, v{60+4*p}, v{8+p}"); e(f"v_fmac_f32 v41, v{61+4*p}, v{8+p}")
    e("v_rcp_f32 v37, v37")
    e("v_mul_f32 v40, v40, v37"); e("v_mul_f32 v41, v41, v37")
    e("v_cvt_pk_bf16_f32 v40, v40, v41")
    e(f"ds_write_b32 v251, v40 offset:{SEL}")
    e("s_branch L_wo_bar")
    a.label("L_wo_w3")
    e("s_waitcnt vmcnt(0)")
    wo_reads()
    a.label("L_wo_bar")
    for i in range(4): e(f"v_mov_b32 v{20+i}, 0")
    e("v_lshlrev_b32 v6, 3, v0"); e("v_lshlrev_b32 v7, 4, v0")
    e(f"v_mov_b32 v41, s{sTAG}"); e(f"v_mov_b32 v43, s{sTAG}")
    e("s_waitcnt lgkmcnt(0)")
    e("s_barrier")
    stamp()
    for p in range(3): e(f"ds_read_b64 v[{60+2*p}:{61+2*p}], v248 offset:{SEL + 8*p}")
    e("s_waitcnt lgkmcnt(0)")
    def aperm(i):
        A = 44 + 4 * (i & 1)
        for r in range(4):
            e(f"v_perm_b32 v{A+r}, v{60 + (i >> 1)}, v{60 + (i >> 1)}, v{(244 if i & 1 else 240) + r}")
    aperm(0)
    for i in range(12):
        if i < 11: aperm(i + 1)
        else: e("s_nop 1")
        A = 44 + 4 * (i & 1)
        e(f"v_mfma_f32_16x16x32_bf16 v[20:23], v[{A}:{A+3}], v[{100+4*i}:{103+4*i}], v[20:23]")
    e("s_nop 7")
    e(f"ds_write_b128 v249, v[20:23] offset:{YP}")
    e("s_waitcnt lgkmcnt(0)")
    e("s_barrier")
    e(f"s_cmp_ge_u32 s{sWAVE}, 2"); e("s_cbranch_scc1 L_fin")
    for w in range(4): e(f"ds_read_b64 v[{20+2*w}:{21+2*w}], v6 offset:{YP + 1024*w}")
    e("s_waitcnt lgkmcnt(0)")
    e("v_add_f32 v20, v20, v22"); e("v_add_f32 v21, v21, v23"); e("v_add_f32 v24, v24, v26"); e("v_add_f32 v25, v25, v27")
    e("v_add_f32 v40, v20, v24"); e("v_add_f32 v42, v21, v25")
    e(f"buffer_store_dwordx4 v[40:43], v7, {srd(sWS)}, s12 offen {SCS}")
    stamp(3)
    e("s_branch L_fin")
    a.label("L_final")
    e(f"s_cmp_lg_u32 s{sWAVE}, 0"); e("s_cbranch_scc1 L_fin")
    e(f"s_mul_i32 s14, s{sH}, 3"); e(f"s_add_u32 s14, s14, s{sR}")
    e("s_cmp_ge_u32 s14, 40"); e("s_cbranch_scc1 L_fin")
    e("s_cmp_ge_u32 s14, 20"); e("s_cselect_b32 s15, 1, 0")
    e("s_mul_i32 s16, s15, 20"); e("s_sub_u32 s16, s14, s16")
    e("s_lshr_b32 s17, s16, 2"); e("s_and_b32 s18, s16, 3")
    e("s_mul_i32 s19, s15, 640"); e("s_lshl_b32 s20, s16, 5"); e("s_add_u32 s19, s19, s20")
    e(f"v_and_b32 v7, 7, v{vLANE}"); e("v_lshlrev_b32 v4, 2, v7")
    e(f"v_lshrrev_b32 v5, 5, v{vLANE}"); e("v_lshl_add_u32 v4, v5, 1, v4")
    e(f"v_bfe_u32 v5, v{vLANE}, 4, 1"); e("v_add_u32 v4, v4, v5")
    e("v_add_u32 v4, s19, v4"); e("v_lshlrev_b32 v4, 1, v4")
    e(f"buffer_load_ushort v58, v4, {srd(sX)}, 0 offen")
    e(f"v_lshrrev_b32 v5, 3, v{vLANE}")
    e("v_mul_u32_u24 v6, 10240, v5"); e("v_lshl_add_u32 v6, v7, 5, v6")
    e("s_lshl_b32 s20, s17, 11"); e("s_lshl_b32 s21, s15, 10"); e("s_add_u32 s20, s20, s21"); e("s_lshl_b32 s21, s18, 8"); e("s_add_u32 s20, s20, s21")
    e(f"s_add_u32 s20, s20, {YBOX}")
    e("s_lshl_b32 s21, s19, 3"); e(f"s_add_u32 s21, s21, {FBOX}")
    for i in range(1, 4):
        e(f"s_add_u32 s{4+i}, s20, {81920*i}"); e(f"s_add_u32 s{8+i}, s21, {81920*i}")
    e("s_mov_b32 s4, s20"); e("s_mov_b32 s8, s21")
    def red4(base, n):
        for i in range(1, n):
            for c in range(4): e(f"v_add_f32 v{base+2*c}, v{base+2*c}, v{base+8*i+2*c}")
        swapred([(base, base+4), (base+2, base+6)], 5)
        swapred([(base, base+2)], 4)
        allreduce([base], "v_add_f32", None, [3])
    lds_ = []
    for i in range(3):
        lds_.append(f"buffer_load_dwordx4 v[{100+8*i}:{103+8*i}], v6, {srd(sWS)}, s{8+i} offen {SCL}")
        lds_.append(f"buffer_load_dwordx4 v[{104+8*i}:{107+8*i}], v6, {srd(sWS)}, s{8+i} offen offset:16 {SCL}")
    lane_poll("L_pf", lds_, [101 + 2*k for k in range(12)], 52)
    red4(100, 3)
    e("s_mov_b32 s22, 0xbfb8aa3b")
    e("v_cvt_pk_bf16_f32 v24, v100, v100"); e("v_and_b32 v24, 0xffff0000, v24")
    e("v_mul_f32 v25, s22, v24"); e("v_exp_f32 v25, v25"); e("v_add_f32 v25, 1.0, v25"); e("v_rcp_f32 v25, v25")
    e("v_mul_f32 v24, v24, v25")
    e("v_cvt_pk_bf16_f32 v24, v24, v24"); e("v_and_b32 v24, 0xffff0000, v24")
    e("v_lshlrev_b32 v58, 16, v58")
    stamp(3)
    lds_ = []
    for i in range(4):
        lds_.append(f"buffer_load_dwordx4 v[{60+8*i}:{63+8*i}], v6, {srd(sWS)}, s{4+i} offen {SCL}")
        lds_.append(f"buffer_load_dwordx4 v[{64+8*i}:{67+8*i}], v6, {srd(sWS)}, s{4+i} offen offset:16 {SCL}")
    lane_poll("L_p2", lds_, [61 + 2*k for k in range(16)], 52)
    stamp(3)
    if PROF == 3: e(f"s_sub_u32 s97, {SPIN}, s{sCNT}")
    red4(60, 4)
    e("v_cvt_pk_bf16_f32 v20, v60, v60"); e("v_and_b32 v20, 0xffff0000, v20")
    e("v_mul_f32 v20, v20, v24")
    e("v_cvt_pk_bf16_f32 v20, v20, v20"); e("v_and_b32 v20, 0xffff0000, v20")
    e("v_add_f32 v20, v58, v20")
    e("v_cvt_pk_bf16_f32 v20, v20, v20")
    e(f"buffer_store_short v20, v4, {srd(sOUT)}, 0 offen")
    e("s_cmp_lg_u32 s14, 0"); e("s_cbranch_scc1 L_fin")
    e("s_mov_b64 exec, 1")
    e(f"v_mov_b32 v21, s{sTAG}"); e("v_mov_b32 v22, 0")
    e(f"buffer_store_dword v21, v22, {srd(sWS)}, 0 offen")
    e("s_branch L_fin")

    a.label("L_ffn")
    e("s_setprio 3")
    e("s_sub_u32 s57, s2, 256")
    e(f"s_lshl_b32 s{sT0}, s57, 7")
    e(f"s_add_u32 s{sAUX}, s16, s{sT0}"); e(f"s_addc_u32 s{sAUX+1}, s17, 0"); e(f"s_mov_b32 s{sAUX+2}, {639*3072+128}"); e(f"s_mov_b32 s{sAUX+3}, 0x20000")
    e(f"s_add_u32 s{sAUX2}, s18, s{sT0}"); e(f"s_addc_u32 s{sAUX2+1}, s19, 0"); e(f"s_mov_b32 s{sAUX2+2}, {639*3072+128}"); e(f"s_mov_b32 s{sAUX2+3}, 0x20000")
    e(f"s_mul_i32 s{sT0}, s57, {64*1280}")
    e(f"s_add_u32 s{sK}, s20, s{sT0}"); e(f"s_addc_u32 s{sK+1}, s21, 0"); e(f"s_mov_b32 s{sK+2}, {64*1280}"); e(f"s_mov_b32 s{sK+3}, 0x20000")
    xloads()
    unit_addr(3072, 20, 2)
    e(f"v_lshrrev_b32 v3, 4, v{vLANE}"); e("v_lshlrev_b32 v3, 2, v3")
    e(f"s_lshl_b32 s{sT0}, s{sWAVE}, 4"); e(f"v_add_u32 v3, s{sT0}, v3")
    e("v_mul_u32_u24 v3, 1280, v3")
    e(f"v_and_b32 v7, 15, v{vLANE}"); e("v_lshl_add_u32 v3, v7, 4, v3")
    def fload(n):
        if n < 20:
            e(f"s_mov_b32 s{sT1}, {3072*n}")
            e(f"buffer_load_dwordx4 v[{60+4*n}:{63+4*n}], v2, {srd(sAUX)}, s{sT1} offen{nt}")
        elif n < 40:
            i = n - 20
            e(f"s_mov_b32 s{sT1}, {3072*i}")
            e(f"buffer_load_dwordx4 v[{140+4*i}:{143+4*i}], v2, {srd(sAUX2)}, s{sT1} offen{nt}")
        elif n < 60:
            k = n - 40; i, sg = k // 5, k % 5
            e(f"s_mov_b32 s{sT1}, {1280*i}")
            e(f"buffer_load_dwordx4 v[{60+4*k}:{63+4*k}], v3, {srd(sK)}, s{sT1} offen offset:{256*sg}{nt}")
    if FTHR:
        e("s_waitcnt vmcnt(0)")
        layernorm()
        xp_read(20)
        e("s_waitcnt lgkmcnt(0)")
        mktag()
        e(f"s_lshl_b32 s{sT0}, s57, 13"); e(f"s_add_u32 s{sT0}, s{sT0}, {QBOX}")
        e("v_mov_b32 v6, 0")
        e(f"s_mov_b32 s{sCNT}, {SPIN}")
        a.label("L_ft1")
        e(f"buffer_load_dwordx4 v[48:51], v6, {srd(sWS)}, s{sT0} offen {SCL}")
        e("s_waitcnt vmcnt(0)")
        e(f"v_cmp_ne_u32 vcc, s{sTAG}, v49")
        e("s_cbranch_vccz L_ft1_done")
        e("s_sleep 16")
        e(f"s_sub_u32 s{sCNT}, s{sCNT}, 1"); e(f"s_cmp_lg_u32 s{sCNT}, 0"); e("s_cbranch_scc1 L_ft1")
        a.label("L_ft1_done")
        e(f"s_lshl_b32 s{sT1}, s57, 8"); e(f"s_add_u32 s{sT1}, s{sT1}, {CNT}")
        e(f"s_add_u32 s{sCTR}, s26, s{sT1}"); e(f"s_addc_u32 s{sCTR+1}, s27, 0")
        e(f"s_mov_b32 s{sCNT}, {SPIN}")
        a.label("L_ft2")
        e(f"s_mov_b32 s{sN}, 0")
        e(f"s_atomic_add s{sN}, s[{sCTR}:{sCTR+1}], 0 glc")
        e("s_waitcnt lgkmcnt(0)")
        e(f"s_cmp_ge_u32 s{sN}, {FTHR}"); e("s_cbranch_scc1 L_ft2_done")
        e("s_sleep 16")
        e(f"s_sub_u32 s{sCNT}, s{sCNT}, 1"); e(f"s_cmp_lg_u32 s{sCNT}, 0"); e("s_cbranch_scc1 L_ft2")
        a.label("L_ft2_done")
        for n in range(FLA): fload(n)
    else:
        for n in range(FLA): fload(n)
        e(f"s_waitcnt vmcnt({FLA})")
        layernorm()
        xp_read(20)
    for i in range(32): e(f"v_mov_b32 v{20+i}, 0")
    e("s_waitcnt lgkmcnt(0)")
    for n in range(40):
        issued = min(60, n + FLA)
        e(f"s_waitcnt vmcnt({issued - n - 1})")
        i = n % 20
        sel_ops([XP + (i >> 1), XP + 10 + (i >> 1)], i & 1, 52)
        mac16((60 if n < 20 else 140) + 4*i, 20 if n < 20 else 36, 52)
        if n + FLA < 60: fload(n + FLA)
    unit_reduce(20, QP)
    unit_reduce(36, UP)
    for n in range(40 + FLA, 60): fload(n)
    e("s_waitcnt lgkmcnt(0)")
    e("s_barrier")
    e(f"s_cmp_ge_u32 s{sWAVE}, 2"); e("s_cbranch_scc1 L_ffn_h")
    e("v_lshlrev_b32 v6, 2, v0")
    for w in range(4):
        e(f"ds_read_b32 v{20+w}, v6 offset:{QP + 512*w}"); e(f"ds_read_b32 v{24+w}, v6 offset:{UP + 512*w}")
    e("s_waitcnt lgkmcnt(0)")
    e("v_add_f32 v20, v20, v21"); e("v_add_f32 v22, v22, v23"); e("v_add_f32 v24, v24, v25"); e("v_add_f32 v26, v26, v27")
    e("v_add_f32 v20, v20, v22"); e("v_add_f32 v24, v24, v26")
    e("v_cvt_pk_bf16_f32 v28, v20, v24")
    e("v_lshlrev_b32 v20, 16, v28"); e("v_and_b32 v24, 0xffff0000, v28")
    e("v_mul_f32 v25, v20, v20"); e("v_mul_f32 v25, v25, v20")
    e("s_mov_b32 s22, 0x3d372713"); e("v_fma_f32 v25, v25, s22, v20")
    e("s_mov_b32 s22, 0xc0135761"); e("v_mul_f32 v25, s22, v25")
    e("v_exp_f32 v25, v25"); e("v_add_f32 v25, 1.0, v25"); e("v_rcp_f32 v25, v25")
    e("v_mul_f32 v20, v20, v25")
    e("v_cvt_pk_bf16_f32 v20, v20, v20"); e("v_and_b32 v20, 0xffff0000, v20")
    e("v_mul_f32 v20, v20, v24")
    e("v_cvt_pk_bf16_f32 v20, v20, v20")
    e("v_lshlrev_b32 v6, 1, v0")
    e(f"ds_write_b16 v6, v20 offset:{H}")
    e("s_waitcnt lgkmcnt(0)")
    a.label("L_ffn_h")
    e("s_barrier")
    e(f"v_lshrrev_b32 v6, 4, v{vLANE}"); e("v_lshlrev_b32 v6, 3, v6")
    e(f"s_lshl_b32 s{sT0}, s{sWAVE}, 5"); e(f"v_add_u32 v6, s{sT0}, v6")
    e(f"ds_read_b64 v[56:57], v6 offset:{H}"); e(f"ds_read_b64 v[58:59], v6 offset:{H+128}")
    for i in range(80): e(f"v_mov_b32 v{140+i}, 0")
    e("s_waitcnt vmcnt(0) lgkmcnt(0)")
    for i in range(4):
        sel_ops([56 + (i >> 1), 58 + (i >> 1)], i & 1, 52)
        for sg in range(5):
            mac16(60 + 20*i + 4*sg, 140 + 16*sg, 52)
    for sg in range(5):
        A = 140 + 16*sg
        swapred([(A+i, A+8+i) for i in range(8)], 5)
        swapred([(A+i, A+4+i) for i in range(4)], 4)
    e(f"v_lshrrev_b32 v6, 5, v{vLANE}"); e("v_mul_u32_u24 v6, 2560, v6")
    e(f"v_and_b32 v7, 15, v{vLANE}"); e("v_lshl_add_u32 v6, v7, 5, v6")
    e(f"v_bfe_u32 v7, v{vLANE}, 4, 1"); e("v_lshl_add_u32 v6, v7, 4, v6")
    e(f"s_mul_i32 s{sT0}, s{sWAVE}, 5120"); e(f"v_add_u32 v6, s{sT0}, v6")
    for sg in range(5): e(f"ds_write_b128 v6, v[{140+16*sg}:{143+16*sg}] offset:{DP + 512*sg}")
    e("s_waitcnt lgkmcnt(0)")
    e("s_barrier")
    mktag()
    e(f"s_mul_i32 s{sT0}, s57, 10240"); e(f"s_add_u32 s{sT0}, s{sT0}, {FBOX}")
    e(f"v_mov_b32 v41, s{sTAG}"); e(f"v_mov_b32 v43, s{sTAG}")
    for q in range(3):
        if q == 2:
            e(f"s_cmp_ge_u32 s{sWAVE}, 2"); e("s_cbranch_scc1 L_fin")
        e(f"v_add_u32 v5, {256*q}, v0"); e("v_lshlrev_b32 v6, 3, v5")
        for w in range(4): e(f"ds_read_b64 v[{20+2*w}:{21+2*w}], v6 offset:{DP + 5120*w}")
        e("s_waitcnt lgkmcnt(0)")
        e("v_add_f32 v20, v20, v22"); e("v_add_f32 v21, v21, v23"); e("v_add_f32 v24, v24, v26"); e("v_add_f32 v25, v25, v27")
        e("v_add_f32 v40, v20, v24"); e("v_add_f32 v42, v21, v25")
        e("v_lshlrev_b32 v6, 4, v5")
        e(f"buffer_store_dwordx4 v[40:43], v6, {srd(sWS)}, s{sT0} offen {SCS}")
        e("s_nop 1")

    a.label("L_fin")
    if DBGT:
        e("s_mov_b64 exec, -1")
        e(f"s_cmp_lg_u32 s{sWAVE}, 0"); e("s_cbranch_scc1 L_end")
        e("s_memrealtime s[100:101]")
        e("s_load_dwordx2 s[4:5], s[0:1], 80")
        e("s_waitcnt lgkmcnt(0)")
        e("s_mov_b32 s6, 256"); e("s_mov_b32 s7, 0x20000")
        e("s_not_b32 s98, s98")
        e("v_mov_b32 v20, s98"); e("v_mov_b32 v21, s100"); e("v_mov_b32 v6, 0")
        e("s_mov_b64 exec, 1")
        e("buffer_atomic_umax v20, v6, s[4:7], 0 offen")
        e("buffer_atomic_umax v21, v6, s[4:7], 0 offen offset:4")
        e("s_cmp_ge_u32 s2, 256"); e("s_cbranch_scc0 L_dbg_att")
        e("buffer_atomic_umax v21, v6, s[4:7], 0 offen offset:8")
        e("s_branch L_end")
        a.label("L_dbg_att")
        e("v_mov_b32 v22, s64"); e("v_mov_b32 v23, s66"); e("s_not_b32 s64, s64"); e("v_mov_b32 v24, s64"); e("v_mov_b32 v25, s68")
        e("buffer_atomic_umax v22, v6, s[4:7], 0 offen offset:12")
        e("buffer_atomic_umax v23, v6, s[4:7], 0 offen offset:16")
        e("buffer_atomic_umax v24, v6, s[4:7], 0 offen offset:20")
        e("buffer_atomic_umax v25, v6, s[4:7], 0 offen offset:24")
    if PROF:
        stamp()
        n = prof_n[0]
        e("s_mov_b64 exec, -1")
        e(f"s_cmp_lg_u32 s{sWAVE}, 0"); e("s_cbranch_scc1 L_end")
        e("s_waitcnt lgkmcnt(0)")
        e("s_getreg_b32 s14, hwreg(HW_REG_XCC_ID)")
        e(f"s_lshl_b32 s{sT0}, s2, 7"); e(f"s_add_u32 s{sT0}, s{sT0}, {PROFO}")
        e("v_mov_b32 v6, 0")
        e("s_mov_b64 exec, 1")
        for i in range(n):
            e(f"v_mov_b32 v20, s{SP[i]}"); e(f"v_mov_b32 v21, s{SP[i]+1}")
            e(f"buffer_store_dwordx2 v[20:21], v6, {srd(sWS)}, s{sT0} offen offset:{8*i}")
            e("s_nop 1")
        e("v_mov_b32 v20, s14"); e("v_mov_b32 v21, s97")
        e(f"buffer_store_dwordx2 v[20:21], v6, {srd(sWS)}, s{sT0} offen offset:120")
    a.label("L_end")
    e("s_endpgm")
    body = fix_hazards([l for l in a.L if l is not None])
    out += body
    out += ['.section .rodata,"a"', ".p2align 6", f".amdhsa_kernel {KNAME}", "  .amdhsa_next_free_vgpr 256", "  .amdhsa_next_free_sgpr 102",
            "  .amdhsa_accum_offset 256", "  .amdhsa_group_segment_fixed_size 0", "  .amdhsa_kernarg_size 96", "  .amdhsa_user_sgpr_count 2",
            "  .amdhsa_user_sgpr_kernarg_segment_ptr 1", "  .amdhsa_system_sgpr_workgroup_id_x 1", ".end_amdhsa_kernel"]
    return "\n".join(out) + "\n"

WOLATE_DEFAULT = 1
if __name__ == "__main__":
    import json
    kw = json.loads(sys.argv[2]) if len(sys.argv) > 2 else {}
    open(sys.argv[1], "w").write(gen(**kw))

LAST = 5
```
